```python
import torch

def _softmax(x, axis=-1):
    return torch.softmax(x, dim=axis)
def _gelu(x):
    return torch.nn.functional.gelu(x, approximate="tanh")
def _silu(x):
    return torch.nn.functional.silu(x)
def _sigmoid(x):
    return torch.sigmoid(x)
def _layernorm(x, axis=-1, eps=1e-5):
    m = x.mean(dim=axis, keepdim=True)
    v = x.var(dim=axis, keepdim=True, unbiased=False)
    return (x - m) / torch.sqrt(v + eps)
def _scatter_add(tgt, idx, src, axis=0):
    return tgt.clone().index_add_(axis, idx, src)
def _segment_sum(src, seg, n):
    out = torch.zeros((n,) + src.shape[1:], dtype=src.dtype)
    return out.index_add_(0, seg, src)
def _pad(x, pw):
    flat = tuple(v for pair in reversed(pw) for v in pair)
    return torch.nn.functional.pad(x, flat)

kernel_name = 'parallel_sum__ssm_conv_s4__glu_gated_bilinear__prompt'

def setup_inputs():

    _w = (lambda a: (lambda t: t.to(torch.bfloat16) if t.is_floating_point() else t)(torch.as_tensor(a)))
    def _A_setup():
        B, L, D, N = 1, 2048, 512, 128
        A_re = -(lambda _x: torch.exp(torch.as_tensor(_x)))((lambda *s: torch.randn(*s, dtype=torch.bfloat16) * 6.4)(D, N))
        A_im = torch.pi * (lambda *s: torch.randn(*s, dtype=torch.bfloat16) * 0.05)(D, N)
        B_re = (lambda *s: torch.randn(*s, dtype=torch.bfloat16) * 0.1)(D, N)
        B_im = (lambda *s: torch.randn(*s, dtype=torch.bfloat16) * 0.1)(D, N)
        C_re = (lambda *s: torch.randn(*s, dtype=torch.bfloat16) * 0.1)(D, N)
        C_im = (lambda *s: torch.randn(*s, dtype=torch.bfloat16) * 0.1)(D, N)
        log_dt = (lambda *s: torch.randn(*s, dtype=torch.bfloat16) * 0.05)(D) * 0.5 - 4.0
        Dskip = (lambda *s: torch.randn(*s, dtype=torch.bfloat16) * 0.05)(D)
        return {
            "u": _w((lambda *s: torch.randn(*s, dtype=torch.bfloat16) * 0.05)(B, L, D)),
            "A_re": _w(A_re),
            "A_im": _w(A_im),
            "B_re": _w(B_re),
            "B_im": _w(B_im),
            "C_re": _w(C_re),
            "C_im": _w(C_im),
            "log_dt": _w(log_dt),
            "Dskip": _w(Dskip),
        }
    _A_in = _A_setup()

    def _B_setup():
        B, S, D, F = 1, 2048, 512, 1376
        return {
            "x": _w((lambda *s: torch.randn(*s, dtype=torch.bfloat16) * 0.05)(B, S, D)),
            "w_gate": _w((lambda *s: torch.randn(*s, dtype=torch.bfloat16) * 0.4)(D, F) * (D ** -0.5)),
            "w_up": _w((lambda *s: torch.randn(*s, dtype=torch.bfloat16) * 0.4)(D, F) * (D ** -0.5)),
            "w_down": _w((lambda *s: torch.randn(*s, dtype=torch.bfloat16) * 0.4)(F, D) * (F ** -0.5)),
        }
    _B_in = _B_setup()

    return {
        "A_u": _A_in["u"],
        "A_A_re": _A_in["A_re"],
        "A_A_im": _A_in["A_im"],
        "A_B_re": _A_in["B_re"],
        "A_B_im": _A_in["B_im"],
        "A_C_re": _A_in["C_re"],
        "A_C_im": _A_in["C_im"],
        "A_log_dt": _A_in["log_dt"],
        "A_Dskip": _A_in["Dskip"],
        "B_x": _B_in["x"],
        "B_w_gate": _B_in["w_gate"],
        "B_w_up": _B_in["w_up"],
        "B_w_down": _B_in["w_down"],
    }

def reference(A_u, A_A_re, A_A_im, A_B_re, A_B_im, A_C_re, A_C_im, A_log_dt, A_Dskip, B_x, B_w_gate, B_w_up, B_w_down):
    def _A_ref(u, A_re, A_im, B_re, B_im, C_re, C_im, log_dt, Dskip):
        Bsz, L, D = u.shape
        dt = torch.exp(log_dt)[:, None]
        A = A_re + 1j * A_im
        Bc = B_re + 1j * B_im
        Cc = C_re + 1j * C_im
        logdA = dt * A
        dB = dt * Bc
        l = (lambda x, dt: x.to(dt))(torch.arange(L), A_re.dtype)
        P = torch.exp(logdA[:, :, None] * l[None, None, :])
        K = torch.einsum("dn,dnl,dn->dl", Cc, P, dB).real
        L2 = 2 * L
        Kp = _pad(K, ((0, 0), (0, L)))
        up = (lambda x, *d: x.permute(*d))(u, 0, 2, 1)
        up = _pad(up, ((0, 0), (0, 0), (0, L)))
        Kf = (lambda x, axes=(-2,-1): torch.fft.rfft2(x.float(), dim=axes))(Kp[:, None, :], axes=(-2, -1))
        Uf = (lambda x, axes=(-2,-1): torch.fft.rfft2(x.float(), dim=axes))(up[:, :, None, :], axes=(-2, -1))
        Yf = Uf * Kf[None, :, :, :]
        y = (lambda x, s, axes=(-2,-1): torch.fft.irfft2(x, s=s, dim=axes).to(torch.bfloat16))(Yf, (1, L2), axes=(-2, -1))[:, :, 0, :L]
        y = (lambda x, *d: x.permute(*d))(y, 0, 2, 1) + u * Dskip[None, None, :]
        return y

    def _B_ref(x, w_gate, w_up, w_down):
        g = torch.einsum("bsd,df->bsf", x, w_gate)
        u = torch.einsum("bsd,df->bsf", x, w_up)
        h = g * u
        return torch.einsum("bsf,fd->bsd", h, w_down)

    x = A_u
    xn = _layernorm(x, axis=-1)
    return x + _A_ref(xn, A_A_re, A_A_im, A_B_re, A_B_im, A_C_re, A_C_im, A_log_dt, A_Dskip) + _B_ref(xn, B_w_gate, B_w_up, B_w_down)
```

```python
import re

def _regs(tok):
    t = tok.strip()
    t = t.lstrip('-')
    if t.startswith('abs(') and t.endswith(')'): t = t[4:-1]
    if t.startswith('|') and t.endswith('|'): t = t[1:-1]
    m = re.fullmatch(r'([vs])(\d+)', t)
    if m: return m.group(1), {int(m.group(2))}
    m = re.fullmatch(r'([vs])\[(\d+):(\d+)\]', t)
    if m: return m.group(1), set(range(int(m.group(2)), int(m.group(3)) + 1))
    if t == 'vcc': return 's', {106, 107}
    if t == 'vcc_lo': return 's', {106}
    if t == 'vcc_hi': return 's', {107}
    if t == 'exec': return 's', {126, 127}
    if t == 'exec_lo': return 's', {126}
    if t == 'exec_hi': return 's', {127}
    if t == 'm0': return 's', {124}
    return None, set()

TRANS = ('v_exp_f32', 'v_log_f32', 'v_rcp_f32', 'v_rsq_f32', 'v_sqrt_f32', 'v_sin_f32', 'v_cos_f32')

class I:
    __slots__ = ('text', 'op', 'cls', 'vd', 'vs', 'sd', 'ss', 'mfma', 'srcC', 'srcAB', 'dpp', 'perm', 'trans',
                 'dot', 'ldsdma', 'store_data', 'is_load', 'target', 'nop', 'region', 'rdlane', 'tag')
    def __init__(self, text, region=()):
        self.text = text; self.region = region; self.tag = None
        body = text.split(';')[0].strip()
        self.vd = set(); self.vs = set(); self.sd = set(); self.ss = set()
        self.mfma = 0; self.srcC = set(); self.srcAB = set(); self.dpp = False; self.perm = False
        self.trans = False; self.dot = False; self.ldsdma = False; self.store_data = set(); self.is_load = False
        self.target = None; self.nop = 0; self.rdlane = False
        if body.endswith(':'):
            self.op = body; self.cls = 'label'; return
        parts = body.split(None, 1)
        op = parts[0]; self.op = op
        rest = parts[1] if len(parts) > 1 else ''
        ops = []; depth = 0; cur = ''
        for ch in rest:
            if ch in '[(': depth += 1
            if ch in '])': depth -= 1
            if ch == ',' and depth == 0: ops.append(cur.strip()); cur = ''
            else: cur += ch
        mods = ''
        if cur.strip():
            c = cur.strip(); depth = 0; cut = len(c)
            for k, ch in enumerate(c):
                if ch in '[(': depth += 1
                if ch in '])': depth -= 1
                if ch == ' ' and depth == 0: cut = k; break
            ops.append(c[:cut]); mods = c[cut:]
        def addsrc(tok):
            k, r = _regs(tok)
            if k == 'v': self.vs |= r
            elif k == 's': self.ss |= r
        def adddst(tok):
            k, r = _regs(tok)
            if k == 'v': self.vd |= r
            elif k == 's': self.sd |= r
        if op.startswith('v_mfma'):
            self.cls = 'mfma'
            self.mfma = 8 if '32x32x16' in op else 4 if '16x16x32' in op else None
            assert self.mfma, op
            adddst(ops[0])
            for t in ops[1:]: addsrc(t)
            self.srcAB = _regs(ops[1])[1] | _regs(ops[2])[1]
            k, r = _regs(ops[3]); self.srcC = r if k == 'v' else set()
        elif op.startswith('v_'):
            self.cls = 'valu'
            base = re.sub(r'_(e32|e64|dpp|sdwa)$', '', op)
            self.trans = base in TRANS
            self.dot = base.startswith('v_dot')
            self.dpp = any(x in mods for x in ('quad_perm', 'row_', 'wave_')) or op.endswith('_dpp')
            if base.startswith('v_permlane') or base == 'v_swap_b32':
                self.perm = base.startswith('v_permlane')
                for t in ops[:2]: adddst(t); addsrc(t)
            elif base in ('v_nop',):
                pass
            elif base.startswith('v_cmpx'):
                adddst(ops[0]); self.sd |= {126, 127}
                for t in ops[1:]: addsrc(t)
            elif base in ('v_add_co_u32', 'v_sub_co_u32', 'v_addc_co_u32', 'v_subb_co_u32', 'v_mad_u64_u32'):
                adddst(ops[0]); adddst(ops[1])
                for t in ops[2:]: addsrc(t)
            else:
                adddst(ops[0])
                for t in ops[1:]: addsrc(t)
                if base in ('v_fmac_f32', 'v_pk_fmac_f16', 'v_writelane_b32') or base.startswith('v_dot2c') or self.dpp or 'sdwa' in op:
                    addsrc(ops[0])
                if base in ('v_readfirstlane_b32', 'v_readlane_b32'): self.rdlane = True
                if base == 'v_cndmask_b32' and len(ops) == 3: self.ss |= {106, 107}
        elif op.startswith('ds_'):
            self.cls = 'ds'
            if op.startswith('ds_read') or '_rtn' in op or 'permute' in op or 'swizzle' in op:
                adddst(ops[0]); self.is_load = True
                for t in ops[1:]: addsrc(t)
            else:
                for t in ops: addsrc(t)
        elif op.startswith('buffer_') or op.startswith('global_'):
            self.cls = 'vm'
            lds = ' lds' in (' ' + mods + ' ').replace(' lds ', ' lds  ') and re.search(r'\blds\b', mods) is not None
            if lds:
                self.ldsdma = True
                for t in ops: addsrc(t)
                self.ss |= {124}
            elif '_load' in op:
                adddst(ops[0]); self.is_load = True
                for t in ops[1:]: addsrc(t)
            elif '_store' in op:
                for t in ops: addsrc(t)
                d = ops[0] if op.startswith('buffer_') else ops[1]
                r = _regs(d)[1]
                if len(r) > 2: self.store_data = r
            elif op == 'buffer_wbl2':
                pass
            elif '_atomic' in op:
                for t in ops: addsrc(t)
                if 'sc0' in mods: adddst(ops[0]); self.is_load = True
            else:
                raise ValueError(text)
        elif op.startswith('s_load') or op in ('s_memtime', 's_memrealtime'):
            self.cls = 'smem'
            adddst(ops[0])
            for t in ops[1:]: addsrc(t)
        elif op == 's_waitcnt': self.cls = 'wait'
        elif op == 's_nop': self.cls = 'nop'; self.nop = int(ops[0], 0) + 1
        elif op in ('s_branch',) or op.startswith('s_cbranch'):
            self.cls = 'branch'; self.target = ops[0]
        elif op in ('s_barrier', 's_endpgm', 's_setprio', 's_sleep'):
            self.cls = 'sopp'
        elif op.startswith('s_cmp') or op.startswith('s_bitcmp'):
            self.cls = 'salu'
            for t in ops: addsrc(t)
        elif op.startswith('s_'):
            self.cls = 'salu'
            adddst(ops[0])
            for t in ops[1:]: addsrc(t)
            if 'saveexec' in op: self.sd |= {126, 127}
            if op in ('s_addk_i32', 's_mulk_i32'): addsrc(ops[0])
        else:
            raise ValueError('unknown instruction: ' + text)

class Prog:
    def __init__(self):
        self.ins = []
        self.vmq = []
        self.dsq = []
        self.region = ()
        self.nreg = 0
        self.nlabel = 0
        self.auto = True
    def cond_begin(self):
        self.nreg += 1; self.region = self.region + (self.nreg,)
    def cond_end(self):
        self.region = self.region[:-1]
    def _definite(self, reg):
        return reg == self.region[:len(reg)]
    def reset_counters(self):
        self.vmq = []; self.dsq = []
    def newlabel(self, base='L'):
        self.nlabel += 1; return f'{base}_{self.nlabel}'
    def label(self, name): self.ins.append(I(name + ':', self.region))
    def _need(self, q, idx):
        return sum(1 for e in q[idx + 1:] if self._definite(e['region']))
    def _emit_wait(self, vm=None, ds=None):
        s = []
        if vm is not None:
            vm = min(vm, 63); s.append(f'vmcnt({vm})')
        if ds is not None:
            ds = min(ds, 15); s.append(f'lgkmcnt({ds})')
        self._apply_wait(vm, ds)
        self.ins.append(I('s_waitcnt ' + ' '.join(s), self.region))
    def _apply_wait(self, vm, ds):
        def trim(q, n):
            k = len(q); cnt = 0
            while k > 0:
                if self._definite(q[k - 1]['region']):
                    if cnt == n: break
                    cnt += 1
                k -= 1
            return q[k:]
        if self.region and not getattr(self, '_trim_in_cond', False):
            pass
        if vm is not None: self.vmq = self._trim_keep(self.vmq, trim(self.vmq, vm))
        if ds is not None: self.dsq = self._trim_keep(self.dsq, trim(self.dsq, ds))
    def _trim_keep(self, old, new):
        if not self.region: return new
        drop = old[:len(old) - len(new)]
        keep = []
        for e in drop:
            if e['region'][:len(self.region)] == self.region: continue
            e = dict(e); e['done_in'] = self.region; keep.append(e)
        return keep + new
    def _is_done(self, e):
        d = e.get('done_in')
        return d is not None and d == self.region[:len(d)]
    def __call__(self, s, tag=None):
        last = None
        for l in s.split('\n'):
            l = l.strip()
            if not l or l.startswith(';'): continue
            last = self._one(l, tag)
        return last
    def _one(self, l, tag):
        ins = I(l, self.region); ins.tag = tag
        if ins.cls == 'label':
            self.ins.append(ins); return None
        if ins.cls == 'wait':
            m = re.search(r'vmcnt\((\d+)\)', l); vm = int(m.group(1)) if m else None
            m = re.search(r'lgkmcnt\((\d+)\)', l); ds = int(m.group(1)) if m else None
            self._apply_wait(vm, ds); self.ins.append(ins); return None
        if self.auto:
            touched = ins.vs | ins.vd
            vm = ds = None
            for idx, e in enumerate(self.vmq):
                if e['regs'] & touched and not self._is_done(e):
                    n = self._need(self.vmq, idx); vm = n if vm is None else min(vm, n)
            for idx, e in enumerate(self.dsq):
                if e['regs'] & touched and not self._is_done(e):
                    n = self._need(self.dsq, idx); ds = n if ds is None else min(ds, n)
            if vm is not None or ds is not None: self._emit_wait(vm, ds)
        self.ins.append(ins)
        if ins.cls == 'vm':
            e = dict(regs=set(ins.vd) if ins.is_load else set(), region=self.region, id=object())
            self.vmq.append(e); return e['id']
        if ins.cls == 'ds':
            e = dict(regs=set(ins.vd) if ins.is_load else set(), region=self.region, id=object())
            self.dsq.append(e); return e['id']
        return None
    def wait_vm(self, h):
        for idx, e in enumerate(self.vmq):
            if e['id'] is h:
                if not self._is_done(e): self._emit_wait(vm=self._need(self.vmq, idx))
                return
    def wait_ds(self, h):
        for idx, e in enumerate(self.dsq):
            if e['id'] is h:
                if not self._is_done(e): self._emit_wait(ds=self._need(self.dsq, idx))
                return
    def finalize(self):
        snap = {}
        for it in range(3):
            out, snap2 = self._hazard_pass(snap)
            snap = snap2
        return out
    def _hazard_pass(self, snap_in):
        CAP = 24
        st = {}
        snap = {}
        out = []
        def merge(a, b):
            r = dict(a)
            for k, v in b.items(): r[k] = min(v, r.get(k, CAP))
            return r
        def age(n):
            for k in list(st):
                st[k] += n
                if st[k] >= CAP: del st[k]
        dead = False
        for ins in self.ins:
            if ins.cls == 'label':
                name = ins.op[:-1]
                if dead: st = {}
                dead = False
                for src in (snap.get(name), snap_in.get(name)):
                    if src is not None: st = merge(st, src)
                out.append(ins.text); continue
            need = 0
            def req(kind, regs, n):
                nonlocal need
                for r in regs:
                    a = st.get((kind, r))
                    if a is not None and a < n: need = max(need, n - a)
            c = ins.cls
            if c == 'mfma':
                req('vw', ins.vs, 2); req('dot', ins.vs, 3)
                req('md8', ins.srcAB, 12); req('md4', ins.srcAB, 8)
                key = (ins.mfma, min(ins.vd))
                for r in (ins.srcC | ins.vd):
                    for kind, n in (('md8', 10), ('md4', 6)):
                        a = st.get((kind, r))
                        if a is not None and st.get(('mk', r, key)) is None and a < n: need = max(need, n - a)
                req('vexec', {0}, 4)
            if c == 'valu':
                req('md8', ins.vs | ins.vd, 12); req('md4', ins.vs | ins.vd, 8)
                req('mc8', ins.vd, 7); req('mc4', ins.vd, 3)
                if not ins.trans: req('tr', ins.vs, 1)
                else: req('tr', ins.vs, 1)
                if ins.rdlane: req('vw', ins.vs, 1)
                if ins.dpp: req('vw', ins.vs, 2); req('vexec', {0}, 5)
                if ins.perm: req('vw', ins.vs, 2); req('vexec', {0}, 4)
                req('vsw', ins.ss, 2)
                if ins.rdlane or ins.op.startswith('v_writelane'): req('vsw', ins.ss, 4); req('vexec', {0}, 4)
                req('st', ins.vd, 2)
                if not ins.dot: req('dot', ins.vs | ins.vd, 3)
                else: req('dot', (ins.vs - ins.vd), 3)
            if c in ('vm', 'ds'):
                req('md8', ins.vs | ins.vd, 12); req('md4', ins.vs | ins.vd, 8)
                req('dot', ins.vs, 3); req('tr', ins.vs, 1)
                req('st', ins.vd, 1)
                if c == 'vm': req('vsw', ins.ss, 5)
                if ins.ldsdma or 'addtid' in ins.op: req('m0', {0}, 1)
            if c == 'smem': req('vsw', ins.ss, 5)
            if need:
                n = need
                while n > 0:
                    k = min(n, 16); out.append(f's_nop {k - 1}'); n -= k
                age(need)
            out.append(ins.text)
            age(ins.nop if c == 'nop' else 1)
            if c == 'valu':
                for r in ins.vd:
                    st[('vw', r)] = 0
                    if ins.trans: st[('tr', r)] = 0
                    else: st.pop(('tr', r), None)
                    if ins.dot: st[('dot', r)] = 0
                    else: st.pop(('dot', r), None)
                for r in ins.sd:
                    st[('vsw', r)] = 0
                    if r in (126, 127): st[('vexec', 0)] = 0
            if c == 'mfma':
                k = 'md8' if ins.mfma == 8 else 'md4'
                key = (ins.mfma, min(ins.vd))
                for r in ins.vd:
                    for kk in [x for x in st if x[0] == 'mk' and x[1] == r]: del st[kk]
                    st[(k, r)] = 0; st[('mk', r, key)] = 0
                for r in ins.srcC: st[('mc8' if ins.mfma == 8 else 'mc4', r)] = 0
            if c == 'vm':
                for r in ins.store_data: st[('st', r)] = 0
            if c == 'salu' and 124 in ins.sd: st[('m0', 0)] = 0
            if c == 'branch':
                snap[ins.target] = merge(snap.get(ins.target, {}), st) if ins.target in snap else dict(st)
                if ins.op == 's_branch': dead = True
            if ins.op == 's_endpgm': dead = True
        return out, snap
    def text(self):
        lines = self.finalize()
        return '\n'.join((l if l.endswith(':') else '    ' + l) for l in lines) + '\n'
```

```python
KNAME = 'parallel_sum__ssm_conv_s4__glu_gated_bilinear__prompt'

class Asm:
    def __init__(self):
        self.lines = []
        self.nlabel = 0
    def __call__(self, s=''):
        for l in s.split('\n'):
            self.lines.append('    ' + l.strip() if l.strip() and not l.strip().endswith(':') else l.strip())
    def label(self, name):
        self.lines.append(name + ':')
    def newlabel(self, base='L'):
        self.nlabel += 1
        return f'{base}_{self.nlabel}'
    def text(self):
        return '\n'.join(self.lines) + '\n'

def kernel_header(name):
    return f'.globl {name}\n.p2align 8\n.type {name},@function\n{name}:\n'

def kernel_desc(name, vgpr=256, sgpr=102, accum=256, wgy=False):
    s = f'''.amdhsa_kernel {name}
  .amdhsa_next_free_vgpr {vgpr}
  .amdhsa_next_free_sgpr {sgpr}
  .amdhsa_accum_offset {accum}
  .amdhsa_group_segment_fixed_size 0
  .amdhsa_kernarg_size 128
  .amdhsa_user_sgpr_count 2
  .amdhsa_user_sgpr_kernarg_segment_ptr 1
  .amdhsa_system_sgpr_workgroup_id_x 1
'''
    if wgy: s += '  .amdhsa_system_sgpr_workgroup_id_y 1\n'
    s += '  .amdhsa_float_denorm_mode_32 3\n'
    s += '.end_amdhsa_kernel\n'
    return s

def build_file(kernels, header_comment=''):
    out = header_comment
    single = len(kernels) == 1 and kernels[0]['name'] == KNAME + '_kernel'
    for k in kernels:
        g = k['grid']; b = k['block']
        if single:
            out += f"; @launch grid=({g[0]},{g[1]},{g[2]}) block=({b[0]},{b[1]},{b[2]}) lds={k['lds']}\n"
        else:
            out += f"; @launch kernel={k['name']} grid=({g[0]},{g[1]},{g[2]}) block=({b[0]},{b[1]},{b[2]}) lds={k['lds']}\n"
    out += '.amdgcn_target "amdgcn-amd-amdhsa--gfx950"\n.text\n'
    seen = set()
    for k in kernels:
        if k['name'] in seen: continue
        seen.add(k['name'])
        out += kernel_header(k['name']) + k['body']
    out += '.section .rodata,"a"\n'
    seen = set()
    for k in kernels:
        if k['name'] in seen: continue
        seen.add(k['name'])
        out += '.p2align 6\n' + kernel_desc(k['name'], k.get('vgpr', 256), k.get('sgpr', 102), k.get('accum', 256), k.get('wgy', False))
    return out

A_U, A_ARE, A_AIM, A_BRE, A_BIM, A_CRE, A_CIM, A_LOGDT, A_DSKIP, B_X, W_GATE, W_UP, W_DOWN, D_OUT, D_DBG, D_WS = [8*i for i in range(16)]
```

```python
import sys, copy
from asmlib import build_file, KNAME
from asm2 import Prog

WS_E = 0; WS_FA = 1024; WS_FH = 2048; WS_FY = 3072; WS_ST = 4096; WS_CSP = 32768
WS_XNT = 0x40000; WS_YT = 0x240000; WS_H = 0x440000; WS_DBG = 0x1000000
WS_SIZE = 0x2000000
BIG = 0x40000000
XR = 0; GR = 49152; UR = 86048; KS = 122944; TT = 157760; TCH = 2704; MISC = 163168; LDS_SIZE = 163840
LNS = 32768; UP = 73728; CCH = 16640; CST = 4160
CSB = TT; MB = TT + 1024
C_L, C_A, C_H, C_8, C_F, C_Y, F1, F2 = [MISC + 4 * i for i in (0, 1, 2, 3, 4, 5, 8, 12)]
sW = 3
X, WG, WU, WD, OUT, WS = 36, 40, 44, 48, 52, 56
sTAG, sRB, sCB, sTB, sRB2, sCB2 = 60, 61, 62, 63, 64, 65
XD = 36
def srd(b): return f's[{b}:{b + 3}]'
def vr(a, n): return f'v[{a}:{a + n - 1}]'
LOG2E = 0x3FB8AA3B; LOG2E_LO = 0x32A57060; LN2 = 0x3F317218; INV2PI = 0x3E22F983

class Cfg:
    ts = False
    pk = True
    hwin = 10
    dma_gap = 8
    spin = 1 << 16
    tsa = False

def gen(cfg):
    p = Prog()
    tsn = {'n': 0}
    def ts(i, real=False):
        if cfg.ts: p(f'{"s_memrealtime" if real else "s_memtime"} s[{80 + 2 * i}:{81 + 2 * i}]')
    def one_lane(f):
        p('s_mov_b64 exec, 1'); r = f(); p('s_mov_b64 exec, -1'); return r
    def lds_spin(addr_v, off, target, tmpv, cmpop='ge'):
        L = p.newlabel('SPIN'); Lx = p.newlabel('SPINX')
        p(f's_mov_b32 s79, {cfg.spin * 8}')
        p.label(L)
        p(f'ds_read_b32 v{tmpv}, v{addr_v} offset:{off}')
        p(f'v_readfirstlane_b32 s78, v{tmpv}')
        p(f's_cmp_ge_u32 s78, {target}')
        p(f's_cbranch_scc1 {Lx}')
        p('s_sub_u32 s79, s79, 1')
        p('s_cmp_lg_u32 s79, 0')
        p(f's_cbranch_scc1 {L}')
        p.label(Lx)

    p('s_cmp_ge_u32 s2, 256\ns_cbranch_scc1 L_END')
    p('s_load_dwordx16 s[4:19], s[0:1], 0\ns_load_dwordx16 s[20:35], s[0:1], 64')
    ts(0, True); ts(1)
    p('v_lshrrev_b32 v1, 6, v0')
    p('v_lshlrev_b32 v2, 4, v0')
    p(f'v_readfirstlane_b32 s{sW}, v1')
    p(f'v_cmp_gt_u32 vcc, {(LDS_SIZE - TT) // 16}, v0')
    p(f'v_add_u32 v2, {TT}, v2')
    p('v_and_b32 v0, 63, v0')
    p('v_mov_b64 v[4:5], 0\nv_mov_b64 v[6:7], 0')
    p('s_mov_b64 exec, vcc')
    p('ds_write_b128 v2, v[4:7]')
    p('s_mov_b64 exec, -1')
    p(f'''s_and_b32 s66, s2, 7
      s_lshr_b32 s67, s2, 3
      s_and_b32 s68, s66, 3
      s_lshr_b32 s69, s66, 2
      s_and_b32 s70, s67, 3
      s_lshl_b32 s71, s68, 2
      s_add_u32 s{sRB}, s71, s70
      s_lshl_b32 s{sRB2}, s66, 2
      s_add_u32 s{sRB2}, s{sRB2}, s70
      s_lshr_b32 s{sCB2}, s67, 2
      s_mul_i32 s{sCB}, s69, 7
      s_add_u32 s{sCB}, s{sCB}, s{sCB2}
      s_and_b32 s70, s67, 1
      s_add_u32 s71, s71, s70
      s_lshl_b32 s69, s69, 1
      s_add_u32 s71, s71, s69
      s_bfe_u32 s70, s67, 0x10001
      s_add_u32 s70, s70, 14
      s_cmp_lt_u32 s67, 28
      s_cselect_b32 s{sRB}, s{sRB}, s71
      s_cselect_b32 s{sCB}, s{sCB}, s70
      s_lshl_b32 s{sTB}, s{sRB}, 4
      s_add_u32 s{sTB}, s{sTB}, s{sCB}''')
    p(f's_cmp_ge_u32 s{sW}, 4')
    p('s_cbranch_scc1 L_S')
    st0 = (copy.deepcopy(p.vmq), copy.deepcopy(p.dsq))

    def srds(role):
        p(f's_load_dword s{sTAG}, s[34:35], {WS_E}')
        p(f's_cmp_eq_u32 s{sCB}, 15')
        if role == 'S':
            p(f'''s_mov_b32 s{XD}, s4\ns_mov_b32 s{XD+1}, s5\ns_cselect_b32 s{XD+2}, 0, 0x200000\ns_mov_b32 s{XD+3}, 0x20000
              s_mov_b32 s{WG}, s24\ns_mov_b32 s{WG+1}, s25\ns_cselect_b32 s{WG+2}, 0, {512*2752}\ns_mov_b32 s{WG+3}, 0x20000
              s_mov_b32 s{WU}, s26\ns_mov_b32 s{WU+1}, s27\ns_mov_b32 s{WU+2}, s{WG+2}\ns_mov_b32 s{WU+3}, 0x20000''')
        else:
            p(f's_mov_b32 s{WD}, s28\ns_mov_b32 s{WD+1}, s29\ns_mov_b32 s{WD+2}, {1376*1024}\ns_mov_b32 s{WD+3}, 0x20000')
        p(f'''s_mov_b32 s{WS}, s34\ns_mov_b32 s{WS+1}, s35\ns_mov_b32 s{WS+2}, {WS_SIZE}\ns_mov_b32 s{WS+3}, 0x20000
          s_mov_b32 s{OUT}, s30\ns_mov_b32 s{OUT+1}, s31\ns_mov_b32 s{OUT+2}, 0x200000\ns_mov_b32 s{OUT+3}, 0x20000''')
    def mktag():
        p('s_waitcnt lgkmcnt(0)')
        p(f's_mul_i32 s{sTAG}, s{sTAG}, 0x9E3779B1\ns_add_u32 s{sTAG}, s{sTAG}, 0x7F4A7C15')

    fX, fD, fST, fY, fB, fP = 160, 164, 168, 170, 176, 80
    fOFF, fPA, fYA = 184, 185, 186
    def final_addr():
        return f'''v_and_b32 v1, 15, v0
          v_lshrrev_b32 v2, 4, v0
          s_and_b32 s66, s{sW}, 3
          s_lshr_b32 s67, s{sW}, 2
          s_lshl_b32 s68, s{sRB2}, 6
          s_lshl_b32 s69, s66, 4
          s_add_u32 s68, s68, s69
          v_add_u32 v3, s68, v1
          s_lshl_b32 s68, s{sCB2}, 7
          s_lshl_b32 s69, s67, 6
          s_add_u32 s68, s68, s69
          v_lshl_add_u32 v4, v2, 4, s68
          v_lshl_add_u32 v{fOFF}, v3, 10, v4
          v_lshlrev_b32 v3, 3, v3
          s_lshl_b32 s68, s67, 13
          s_lshr_b32 s69, s66, 1
          s_lshl_b32 s69, s69, 12
          s_add_u32 s68, s68, s69
          s_and_b32 s69, s66, 1
          s_lshl_b32 s69, s69, 8
          s_add_u32 s68, s68, s69
          v_lshlrev_b32 v5, 10, v2
          v_lshl_add_u32 v5, v1, 4, v5
          v_add_u32 v{fPA}, s68, v5
          s_mul_i32 s68, s67, {CCH}
          s_lshl_b32 s69, s66, 5
          s_add_u32 s68, s68, s69
          s_add_u32 s68, s68, {KS + 8192}
          v_lshrrev_b32 v5, 2, v1
          v_lshl_add_u32 v5, v2, 3, v5
          v_mul_u32_u24 v5, 160, v5
          v_and_b32 v6, 3, v0
          v_lshl_add_u32 v5, v6, 3, v5
          v_add_u32 v{fYA}, s68, v5'''.split('\n')
    def final_loads():
        return [f'global_load_dwordx4 {vr(fX, 4)}, v{fOFF}, s[4:5]',
                f'global_load_dwordx4 {vr(fD, 4)}, v4, s[20:21]',
                f'buffer_load_dwordx2 {vr(fST, 2)}, v3, {srd(WS)}, 0 offen offset:0 sc1'.replace(', 0 offen', f', s76 offen')]
    def final_base():
        o = []
        for j in range(4):
            o += [f'v_lshlrev_b32 v{fB + 2*j}, 16, v{fX + j}', f'v_and_b32 v{fB + 2*j + 1}, 0xffff0000, v{fX + j}',
                  f'v_lshlrev_b32 v1, 16, v{fD + j}', f'v_and_b32 v2, 0xffff0000, v{fD + j}',
                  f'v_mul_f32 v1, v1, v{fST + 1}', f'v_mul_f32 v2, v2, v{fST + 1}',
                  f'v_sub_f32 v3, v{fB + 2*j}, v{fST}', f'v_sub_f32 v4, v{fB + 2*j + 1}, v{fST}',
                  f'v_fmac_f32 v{fB + 2*j}, v3, v1', f'v_fmac_f32 v{fB + 2*j + 1}, v4, v2']
        o += [f'v_mul_f32 v{fST + 1}, v{fST + 1}, v{fST + 1}']
        return o
    def final_tail():
        p('s_barrier')
        ts(8)
        p(f'ds_read_b64_tr_b16 {vr(fY, 2)}, v{fYA}\nds_read_b64_tr_b16 {vr(fY + 2, 2)}, v{fYA} offset:640')
        for w in range(4):
            for hh in range(2):
                p(f'ds_read_b128 {vr(fP + 8*w + 4*hh, 4)}, v{fPA} offset:{16384*w + 512*hh}')
        for j in range(4):
            p(f'v_lshlrev_b32 v1, 16, v{fY + j}\nv_and_b32 v2, 0xffff0000, v{fY + j}')
            p(f'v_add_f32 v{fB + 2*j}, v{fB + 2*j}, v1\nv_add_f32 v{fB + 2*j + 1}, v{fB + 2*j + 1}, v2')
        for e in range(8): p(f'v_add_f32 v{fP + e}, v{fP + e}, v{fP + 8 + e}')
        for e in range(8): p(f'v_add_f32 v{fP + 16 + e}, v{fP + 16 + e}, v{fP + 24 + e}')
        for e in range(8): p(f'v_add_f32 v{fP + e}, v{fP + e}, v{fP + 16 + e}')
        for e in range(8): p(f'v_fmac_f32 v{fB + e}, v{fP + e}, v{fST + 1}')
        for j in range(4): p(f'v_cvt_pk_bf16_f32 v{fX + j}, v{fB + 2*j}, v{fB + 2*j + 1}')
        p(f'buffer_store_dwordx4 {vr(fX, 4)}, v{fOFF}, {srd(OUT)}, 0 offen')
        if cfg.ts:
            p('s_waitcnt vmcnt(0)')
            ts(9)
            p('s_waitcnt lgkmcnt(0)')
            for i in range(10): p(f'v_writelane_b32 v1, s{80 + 2*i}, {i}')
            p(f's_lshl_b32 s66, s2, 3\ns_add_u32 s66, s66, s{sW}\ns_lshl_b32 s66, s66, 6\ns_add_u32 s66, s66, {WS_DBG}')
            p('v_lshlrev_b32 v2, 2, v0')
            p('s_mov_b64 exec, 0x3ff')
            p(f'buffer_store_dword v1, v2, {srd(WS)}, s66 offen')
        p('s_endpgm')

    vXa, vWg, vWu, vW1, vCS1, vCS2, vH01, vH2, vWd, vA, vHl, vHz, vCnt = 16, 20, 21, 22, 23, 24, 25, 26, 27, 31, 37, 38, 39
    FR = [120, 140]
    ACC = 160
    cA, cB, cs = 40, 56, 64
    p('s_waitcnt lgkmcnt(0)')
    p(f'''v_lshlrev_b32 v{vHl}, 4, v0
      s_lshl_b32 s66, s{sTB}, 13
      s_lshl_b32 s67, s{sW}, 11
      s_add_u32 s66, s66, s67
      v_add_u32 v3, s66, v{vHl}
      global_load_dwordx4 v[8:11], v3, s[4:5]
      global_load_dwordx4 v[12:15], v3, s[4:5] offset:1024''')
    srds('G')
    p(f's_and_b32 s74, s{sW}, 1\ns_lshr_b32 s75, s{sW}, 1\ns_mov_b32 s76, {WS_ST}')
    p(f'''v_and_b32 v1, 31, v0
      v_lshrrev_b32 v2, 5, v0
      v_bfe_u32 v3, v0, 1, 3
      v_xor_b32 v3, v3, v2
      s_lshl_b32 s66, s74, 13
      v_lshl_add_u32 v4, v1, 7, s66''')
    for ks in range(4):
        p(f'v_xor_b32 v5, {2*ks}, v3\nv_lshl_add_u32 v{vXa + ks}, v5, 4, v4')
    p(f'''v_bfe_u32 v3, v0, 2, 2
      v_lshl_add_u32 v3, v2, 3, v3
      v_mul_u32_u24 v3, 192, v3
      v_and_b32 v4, 3, v0
      v_lshl_add_u32 v3, v4, 3, v3
      s_mul_i32 s66, s75, 96
      v_add_u32 v3, s66, v3
      v_bfe_u32 v4, v0, 4, 1
      v_lshl_add_u32 v5, v4, 5, v3
      v_add_u32 v{vWg}, {GR}, v5
      v_add_u32 v{vWu}, {UR}, v5
      v_mul_u32_u24 v4, {UR - GR}, v4
      v_add_u32 v3, {GR + 64}, v3
      v_add_u32 v{vW1}, v3, v4''')
    p(f'''s_cmp_eq_u32 s74, 0
      s_cselect_b32 s66, 0, {BIG}
      v_lshl_add_u32 v{vCS1}, v0, 2, s66
      v_lshlrev_b32 v3, 30, v2
      v_add_u32 v{vCS2}, v3, v{vCS1}
      s_mul_i32 s66, s{sCB}, 6
      s_mul_i32 s67, s75, 3
      s_add_u32 s66, s66, s67
      s_cmp_le_u32 s66, 84
      s_cselect_b32 s67, 0, {BIG}
      v_add_u32 v{vH01}, s67, v{vHl}
      s_cmp_le_u32 s66, 83
      s_cselect_b32 s67, 0, {BIG}
      v_add_u32 v{vH2}, s67, v{vHl}
      s_lshl_b32 s67, s{sRB}, 2
      s_lshl_b32 s68, s74, 1
      s_add_u32 s67, s67, s68
      s_mul_i32 s67, s67, 86
      s_add_u32 s66, s66, s67
      s_lshl_b32 s66, s66, 10
      s_add_u32 s70, s66, {WS_H}
      s_add_u32 s71, s70, {86*1024}''')
    p(f'''v_lshrrev_b32 v3, 3, v0
      v_bfe_u32 v4, v0, 4, 1
      v_lshlrev_b32 v4, 2, v4
      v_and_b32 v5, 7, v0
      v_xor_b32 v4, v4, v5
      v_lshlrev_b32 v4, 4, v4
      v_lshl_add_u32 v{vWd}, v3, 10, v4''')
    for i in range(1, 4): p(f'v_add_u32 v{vWd + i}, {7168*i}, v{vWd}')
    p(f'''v_bfe_u32 v3, v0, 2, 2
      v_lshl_add_u32 v3, v2, 2, v3
      v_bfe_u32 v4, v3, 1, 1
      v_lshlrev_b32 v4, 6, v4
      v_lshl_add_u32 v3, v3, 7, v4
      v_bfe_u32 v4, v0, 4, 1
      v_lshl_add_u32 v3, v4, 5, v3
      v_and_b32 v4, 3, v0
      v_lshl_add_u32 v3, v4, 3, v3
      v_xor_b32 v4, 64, v3
      s_lshl_b32 s66, s{sW}, 12
      s_mul_i32 s67, s{sW}, 3072
      s_add_u32 s68, s67, {GR}
      s_add_u32 s69, s67, {UR}
      v_add_u32 v{vA}, s66, v3
      v_add_u32 v{vA + 1}, s66, v4
      v_add_u32 v{vA + 2}, s68, v3
      v_add_u32 v{vA + 3}, s68, v4
      v_add_u32 v{vA + 4}, s69, v3
      v_add_u32 v{vA + 5}, s69, v4
      s_cmp_ge_u32 s{sW}, 2
      s_cselect_b32 s66, {BIG}, 0
      v_add_u32 v{vHz}, s66, v{vHl}
      v_mov_b32 v{vCnt}, {MISC}''')
    for r in range(cA, cA + 12, 2): p(f'v_mov_b64 v[{r}:{r+1}], 0')
    for r in range(cB, cB + 8, 2): p(f'v_mov_b64 v[{r}:{r+1}], 0')
    p(f'''s_lshl_b32 s66, s74, 2
      s_add_u32 s66, s66, s75
      s_mul_i32 s66, s66, 1088
      s_add_u32 s66, s66, {LNS}
      v_add_u32 v6, s66, v{vHl}
      v_bfe_u32 v3, v0, 2, 2
      v_mul_u32_u24 v3, 1088, v3
      v_lshrrev_b32 v4, 4, v0
      v_lshl_add_u32 v3, v4, 5, v3
      v_and_b32 v4, 3, v0
      v_lshl_add_u32 v3, v4, 3, v3
      s_lshl_b32 s66, s{sW}, 8
      s_add_u32 s66, s66, {LNS}
      v_add_u32 v7, s66, v3
      v_lshrrev_b32 v3, 1, v0
      v_and_b32 v4, 1, v0
      v_lshlrev_b32 v4, 4, v4
      v_lshl_add_u32 v60, v3, 13, v4
      s_mov_b32 s77, 0x3f803f80''')
    mktag()
    p('s_barrier')
    xa = 64
    def reduce2(a, b, t):
        p(f'v_permlane32_swap_b32 v{a}, v{b}')
        p(f'v_add_f32 v{a}, v{a}, v{b}')
        p(f'v_mov_b32 v{t}, v{a}')
        p(f'v_permlane16_swap_b32 v{a}, v{t}')
        p(f'v_add_f32 v{a}, v{a}, v{t}')
        for m in ('quad_perm:[1,0,3,2]', 'quad_perm:[2,3,0,1]', 'row_half_mirror', 'row_mirror'):
            p(f'v_add_f32_dpp v{a}, v{a}, v{a} {m} row_mask:0xf bank_mask:0xf')
        p(f'v_mov_b32 v{b}, v{a}')
        p(f'v_permlane32_swap_b32 v{a}, v{b}')
    for r in range(2):
        p(f'v_dot2_f32_bf16 v{1 + r}, v{8 + 4*r}, s77, 0')
    ts(2)
    for j in range(1, 4):
        for r in range(2): p(f'v_dot2_f32_bf16 v{1 + r}, v{8 + 4*r + j}, s77, v{1 + r}')
    for r in range(2):
        for j in range(4):
            p(f'v_lshlrev_b32 v{xa + 8*r + 2*j}, 16, v{8 + 4*r + j}\nv_and_b32 v{xa + 8*r + 2*j + 1}, 0xffff0000, v{8 + 4*r + j}')
    reduce2(1, 2, 3)
    p(f'v_mul_f32 v8, {1.0/512}, v1\nv_mul_f32 v10, {1.0/512}, v2'.replace('0.001953125', '0x3b000000'))
    for r in range(2):
        for e in range(8): p(f'v_sub_f32 v{xa + 8*r + e}, v{xa + 8*r + e}, v{8 + 2*r}')
    for r in range(2): p(f'v_mul_f32 v{1 + r}, v{xa + 8*r}, v{xa + 8*r}')
    for e in range(1, 8):
        for r in range(2): p(f'v_fmac_f32 v{1 + r}, v{xa + 8*r + e}, v{xa + 8*r + e}')
    reduce2(1, 2, 3)
    p('v_mov_b32 v3, 0x3727c5ac')
    p('v_fmac_f32 v3, 0x3b000000, v1\nv_mov_b32 v4, 0x3727c5ac\nv_fmac_f32 v4, 0x3b000000, v2')
    p('v_rsq_f32 v9, v3\nv_rsq_f32 v11, v4')
    for r in range(2):
        for e in range(8): p(f'v_mul_f32 v{xa + 8*r + e}, v{xa + 8*r + e}, v{9 + 2*r}')
        for j in range(4): p(f'v_cvt_pk_bf16_f32 v{80 + 4*r + j}, v{xa + 8*r + 2*j}, v{xa + 8*r + 2*j + 1}')
        p(f'ds_write_b128 v6, {vr(80 + 4*r, 4)} offset:{2176*r}')
    p(f'''v_mov_b32 v1, 1
      s_lshl_b32 s66, s{sTB}, 6
      s_lshl_b32 s67, s{sW}, 4
      s_add_u32 s66, s66, s67
      s_add_u32 s66, s66, {WS_ST}
      v_mov_b32 v2, 0''')
    one_lane(lambda: p(f'ds_add_u32 v{vCnt}, v1 offset:{C_L - MISC}\nbuffer_store_dwordx4 v[8:11], v2, {srd(WS)}, s66 offen sc1'))
    p(f'''s_lshl_b32 s66, s{sW}, 19
      s_lshl_b32 s67, s{sTB}, 5
      s_add_u32 s66, s66, s67
      s_add_u32 s66, s66, {WS_XNT}
      s_add_u32 s67, s66, {32*8192}''')
    lds_spin(vCnt, C_L - MISC, 4, 1)
    for h2 in range(2):
        for s in range(2):
            p(f'ds_read_b64_tr_b16 {vr(88 + 4*h2 + 2*s, 2)}, v7 offset:{4352*s + 128*h2}')
    for h2 in range(2):
        p(f'buffer_store_dwordx4 {vr(88 + 4*h2, 4)}, v60, {srd(WS)}, s{66 + h2} offen sc1')
    p('s_barrier')
    ts(3)
    def reads(g):
        s, ks = g >> 2, g & 3; sl = s % 3; b = FR[g & 1]
        wo = sl * 12288 + ks * 16 * 192
        xr = lambda tt: f'ds_read_b128 {vr(b + 12 + 4*tt, 4)}, v{vXa + ks} offset:{sl*16384 + tt*4096}'
        wr = lambda T, j: f'ds_read_b64_tr_b16 {vr(b + 4*T + 2*j, 2)}, v{(vWg, vW1, vWu)[T]} offset:{wo + j*768}'
        return [xr(0), wr(0, 0), wr(0, 1), xr(1), wr(1, 0), wr(1, 1), wr(2, 0), wr(2, 1)]
    extra = {}
    def add(g, m, item): extra.setdefault((g, m), []).append(item)
    def piece_loc(P):
        P %= 27
        groups = [(0, 4, 0, 32768), (4, 3, 2, 24576), (7, 4, 0, 0), (11, 3, 1, 0), (14, 3, 2, 0),
                  (17, 4, 0, 16384), (21, 3, 1, 12288), (24, 3, 2, 12288)]
        for (p0, n, reg, imm) in groups:
            if p0 <= P < p0 + n: return reg, imm, P - p0
    wdh = {}
    wd_state = {'grp': None}
    def wd_dma(P):
        reg, imm, i = piece_loc(P)
        grp = P - i
        if wd_state['grp'] != grp:
            wd_state['grp'] = grp
            p(f's_add_u32 m0, s{(66, 67, 68)[reg]}, {imm}')
            p(f's_add_u32 s69, s73, {8192 * grp}')
        wdh[P] = p(f'buffer_load_dwordx4 v{vWd + i}, {srd(WD)}, s69 offen offset:{1024*i} lds')
    def wd_setup():
        p(f'''s_lshl_b32 s66, s{sW}, 12
          s_mul_i32 s68, s{sW}, 3072
          s_add_u32 s67, s68, {GR}
          s_add_u32 s68, s68, {UR}
          s_mul_i32 s72, s{sW}, 22
          s_cmp_eq_u32 s{sW}, 3
          s_cselect_b32 s72, 65, s72
          s_lshl_b32 s73, s72, 14
          s_lshl_b32 s69, s{sCB2}, 7
          s_add_u32 s73, s73, s69''')
    for g in range(32):
        nxt = reads(g + 1) if g < 31 else []
        if (g & 3) == 3:
            dist = {2: nxt[0:2], 3: nxt[2:4], 4: nxt[4:6], 5: nxt[6:8]}
            if g < 31: add(g, 2, 'BARRIER')
        else:
            dist = {0: nxt[0:2], 1: nxt[2:3], 2: nxt[3:5], 3: nxt[5:6], 4: nxt[6:7], 5: nxt[7:8]}
        for m, l in dist.items():
            for x in l: add(g, m, x)
    for g in range(2):
        for T in range(3):
            for r in range(4):
                c = '0' if (g == 0 and r == 0) else f'v{cs + T}'
                add(g, 2*T + (r >> 1), f'v_dot2_f32_bf16 v{cs + T}, v{FR[g] + 4*T + r}, s77, {c}')
    def cs_pub():
        p(f'''s_lshl_b32 s66, s{sCB}, 4
          s_add_u32 s66, s66, s{sRB}
          s_mul_i32 s66, s66, 768
          s_mul_i32 s67, s75, 384
          s_add_u32 s66, s66, s67
          s_add_u32 s66, s66, {WS_CSP}''')
        p(f'buffer_store_dword v{cs}, v{vCS1}, {srd(WS)}, s66 offen sc1')
        p(f'buffer_store_dword v{cs + 2}, v{vCS2}, {srd(WS)}, s66 offen offset:256 sc1')
    add(2, 0, f'v_mov_b32 v{cs + 3}, v{cs + 2}'); add(2, 0, f'v_permlane32_swap_b32 v{cs}, v{cs + 1}')
    add(2, 1, f'v_permlane32_swap_b32 v{cs + 2}, v{cs + 3}'); add(2, 1, f'v_add_f32 v{cs}, v{cs}, v{cs + 1}')
    add(2, 2, f'v_add_f32 v{cs + 2}, v{cs + 2}, v{cs + 3}')
    add(2, 3, cs_pub)
    def fa_arrive():
        if cfg.tsa: ts(4)
        p('s_waitcnt vmcnt(0)')
        if cfg.tsa: ts(5)
        p('v_mov_b32 v1, 1')
        one_lane(lambda: p(f'ds_add_rtn_u32 v2, v{vCnt}, v1 offset:{C_A - MISC}'))
    def publish(tmpv, soff_lines):
        L = p.newlabel('PUB')
        p(f'v_readfirstlane_b32 s78, v{tmpv}')
        p('s_cmp_eq_u32 s78, 3')
        p(f's_cbranch_scc0 {L}')
        p.cond_begin()
        p(soff_lines)
        p(f'v_mov_b32 v1, s{sTAG}\nv_mov_b32 v2, 0')
        one_lane(lambda: p(f'buffer_store_dword v1, v2, {srd(WS)}, s79 offen sc1'))
        p.cond_end()
        p.label(L)
    add(6, 0, fa_arrive)
    add(7, 0, lambda: publish(2, f's_lshl_b32 s79, s{sTB}, 2\ns_add_u32 s79, s79, {WS_FA}'))
    add(22, 0, wd_setup)
    for k, P in enumerate(range(0, 7)): add(24 + k // 3, 2 * (k % 3), (lambda P=P: wd_dma(P)))
    for k, P in enumerate(range(7, 17)): add(28 + k // 3, 2 * (k % 3) + 1, (lambda P=P: wd_dma(P)))
    def corr_reads():
        p(f'''v_and_b32 v1, 31, v0
          s_mul_i32 s78, s75, 384
          s_add_u32 s78, s78, {CSB}
          v_lshl_add_u32 v2, v1, 2, s78
          s_lshl_b32 s78, s74, 9
          s_add_u32 s78, s78, {MB}
          v_lshl_add_u32 v1, v1, 3, s78
          s_mov_b32 exec_hi, 0''')
        for T in range(3): p(f'ds_read2_b32 {vr(cA + 4*T, 2)}, v2 offset0:{32*T} offset1:{32*T}')
        for tt in range(2): p(f'ds_read_b64 {vr(cB + 4*tt, 2)}, v1 offset:{256*tt}')
        p('s_mov_b64 exec, -1')
    add(28, 0, corr_reads)
    def b8_arrive():
        p('s_waitcnt lgkmcnt(0)')
        p('v_mov_b32 v1, 1')
        one_lane(lambda: p(f'ds_add_u32 v{vCnt}, v1 offset:{C_8 - MISC}'))
    add(31, 3, b8_arrive)
    for x in reads(0): p(x)
    nb = 0
    for g in range(32):
        b = FR[g & 1]
        for m in range(6):
            T, tt = m >> 1, m & 1
            a = ACC + 16 * (2*T + tt)
            c = '0' if g == 0 else vr(a, 16)
            p(f'v_mfma_f32_32x32x16_bf16 {vr(a, 16)}, {vr(b + 4*T, 4)}, {vr(b + 12 + 4*tt, 4)}, {c}')
            for x in extra.get((g, m), []):
                if x == 'BARRIER':
                    p('s_waitcnt lgkmcnt(0)\ns_barrier'); nb += 1
                    if nb == 4 and not cfg.tsa: ts(4)
                    if nb == 7 and not cfg.tsa: ts(5)
                elif callable(x): x()
                else: p(x)
    for tt in range(2):
        for T in (0, 2, 1):
            a = ACC + 16 * (2*T + tt)
            p(f'v_mfma_f32_32x32x16_bf16 {vr(a, 16)}, {vr(cA + 4*T, 4)}, {vr(cB + 4*tt, 4)}, {vr(a, 16)}')
    HS = 56
    for tt in range(2):
        for q in range(3):
            if q < 2: ga, ua = ACC + 16*tt + 8*q, ACC + 16*(4 + tt) + 8*q
            else: ga, ua = ACC + 16*(2 + tt), ACC + 16*(2 + tt) + 8
            d = HS + 4 * (3*tt + q)
            for e in range(8): p(f'v_mul_f32 v{ga + e}, v{ga + e}, v{ua + e}')
            for j in range(4): p(f'v_cvt_pk_bf16_f32 v{d + j}, v{ga + 2*j}, v{ga + 2*j + 1}')
            hst = p(f'buffer_store_dwordx4 {vr(d, 4)}, v{vH2 if q == 2 else vH01}, {srd(WS)}, s{70 + tt} offen offset:{1024*q} sc1')
    ts(6)
    lds_spin(vCnt, C_8 - MISC, 4, 1)
    for P in range(17, 27): wd_dma(P)
    p.wait_vm(hst)
    p('v_mov_b32 v1, 1')
    one_lane(lambda: p(f'ds_add_rtn_u32 v2, v{vCnt}, v1 offset:{C_H - MISC}'))
    publish(2, f's_lshl_b32 s79, s{sRB}, 4\ns_add_u32 s79, s79, s{sCB}\ns_lshl_b32 s79, s79, 2\ns_add_u32 s79, s79, {WS_FH}')
    wd_state['grp'] = None
    for x in final_addr(): p(x)
    for x in final_loads(): p(x)
    wd_setup()
    p(f'''s_lshr_b32 s70, s{sRB2}, 1
      s_lshl_b32 s70, s70, 6
      s_add_u32 s70, s70, {WS_FH}
      v_and_b32 v1, 15, v0
      v_lshlrev_b32 v1, 2, v1
      s_mov_b32 s71, 0x000f
      s_cmp_eq_u32 s{sW}, 1
      s_cselect_b32 s71, 0x00f8, s71
      s_cmp_eq_u32 s{sW}, 2
      s_cselect_b32 s71, 0x0780, s71
      s_cmp_eq_u32 s{sW}, 3
      s_cselect_b32 s71, 0x7c00, s71
      s_mov_b32 s79, {cfg.spin}''')
    L = p.newlabel('PH'); Lx = p.newlabel('PHX')
    p.label(L)
    p(f'buffer_load_dword v2, v1, {srd(WS)}, s70 offen sc1')
    p(f'v_cmp_eq_u32 vcc, s{sTAG}, v2')
    p('s_and_b32 s78, vcc_lo, s71\ns_cmp_eq_u32 s78, s71')
    p(f's_cbranch_scc1 {Lx}')
    p(f's_sub_u32 s79, s79, 1\ns_cmp_lg_u32 s79, 0\ns_cbranch_scc1 {L}')
    p.label(Lx)
    ts(7)
    HW = cfg.hwin; HB = 160 - 8 * HW; AF = [40, 48]; AC2 = 192
    p(f'''s_lshl_b32 s70, s{sRB2}, 1
      s_mul_i32 s70, s70, 86
      s_add_u32 s70, s70, s72
      s_lshl_b32 s70, s70, 10
      s_add_u32 s70, s70, {WS_H}
      s_add_u32 s71, s70, {86*1024}''')
    def hload(n, tt):
        r = HB + 8 * (n % HW) + 4 * tt
        p(f'buffer_load_dwordx4 {vr(r, 4)}, v{vHz if n == 21 else vHl}, {srd(WS)}, s{70 + tt} offen offset:{1024*(n & 3)} sc1')
        if (n & 3) == 3: p(f's_add_u32 s{70 + tt}, s{70 + tt}, 4096')
    def aread(n, dt, s):
        P = 2*n + s
        reg, imm, i = piece_loc(P)
        p.wait_vm(wdh[P])
        p(f'ds_read_b64_tr_b16 {vr(AF[n & 1] + 4*dt + 2*s, 2)}, v{vA + 2*reg + dt} offset:{imm + 1024*i}')
    for n in range(HW):
        for tt in range(2): hload(n, tt)
    for dt in range(2):
        for s in range(2): aread(0, dt, s)
    fb = final_base()
    for n in range(22):
        for m in range(4):
            dt, tt = m >> 1, m & 1
            a = AC2 + 16 * m
            c = '0' if n == 0 else vr(a, 16)
            p(f'v_mfma_f32_32x32x16_bf16 {vr(a, 16)}, {vr(AF[n & 1] + 4*dt, 4)}, {vr(HB + 8*(n % HW) + 4*tt, 4)}, {c}')
            if n < 21: aread(n + 1, m >> 1, m & 1)
            if m == 2 and 2*n + 27 < 44: wd_dma(2*n + 27)
            if m == 3 and 2*n + 28 < 44: wd_dma(2*n + 28)
            if m == 3 and n + HW < 22:
                hload(n + HW, 0); hload(n + HW, 1)
            if n >= 10 and fb: p(fb.pop(0))
            if n == 21 and m == 2:
                p('v_mov_b32 v5, 1')
                one_lane(lambda: p(f'ds_add_u32 v{vCnt}, v5 offset:{C_F - MISC}'))
    while fb: p(fb.pop(0))
    p(f's_lshl_b32 s66, s{sW}, 14\nv_add_u32 v6, s66, v{vHl}')
    lds_spin(vCnt, C_F - MISC, 4, 5)
    for m in range(4):
        for Q in range(4):
            p(f'ds_write_b128 v6, {vr(AC2 + 16*m + 4*Q, 4)} offset:{(4*m + Q) * 1024}')
    p('s_waitcnt lgkmcnt(0)')
    final_tail()

    p.label('L_S')
    p.vmq, p.dsq = st0
    vXo, vWo, vIdx, vPar = 10, 14, 20, 32
    LAM, Wv, P1, P2, P4, Q, Q2, E256, cA_, cB_, cC_, T0, T1 = 40, 42, 44, 46, 48, 50, 52, 54, 56, 58, 60, 62, 64
    vSW, vSR, vTA = 70, 71, 72
    AFr, BFr, DK = 80, 112, 144
    p('s_waitcnt lgkmcnt(0)')
    p(f'''s_sub_u32 s74, s{sW}, 4
      s_lshr_b32 s75, s74, 1
      s_and_b32 s77, s74, 1
      s_lshl_b32 s66, s2, 1
      s_add_u32 s66, s66, s75
      s_lshl_b32 s67, s66, 8
      s_lshl_b32 s68, s77, 7
      s_add_u32 s67, s67, s68
      v_lshl_add_u32 v1, v0, 1, s67
      s_lshl_b32 s66, s66, 1
      v_mov_b32 v2, s66''')
    p(f'global_load_ushort v{vPar + 6}, v2, s[18:19]')
    for i in range(6): p(f'global_load_ushort v{vPar + i}, v1, s[{6 + 2*i}:{7 + 2*i}]')
    srds('S')
    p(f'''s_and_b32 s66, s{sRB}, 1
      s_lshl_b32 s67, s66, 2
      v_and_b32 v1, 7, v0
      v_lshrrev_b32 v2, 4, v0
      v_xor_b32 v1, v1, v2
      v_xor_b32 v1, s67, v1
      v_lshrrev_b32 v2, 3, v0
      s_lshl_b32 s68, s74, 15
      v_lshl_add_u32 v2, v2, 10, s68
      v_lshl_add_u32 v{vXo}, v1, 4, v2
      v_xor_b32 v1, 4, v1
      v_lshl_add_u32 v2, v1, 4, v2
      v_add_u32 v{vXo + 1}, {7168}, v2
      v_add_u32 v{vXo + 2}, {2*7168}, v{vXo}
      v_add_u32 v{vXo + 3}, {3*7168}, v2
      s_lshl_b32 s66, s66, 5
      s_lshl_b32 s67, s74, 4
      s_movk_i32 s68, 2752''')
    for i in range(3):
        p(f'''v_add_u32 v1, {64*i}, v0
          v_mul_u32_u24 v2, 0x5556, v1
          v_lshrrev_b32 v2, 18, v2
          v_mul_u32_u24 v3, 12, v2
          v_sub_u32 v3, v1, v3
          v_add_u32 v2, s67, v2
          v_xor_b32 v2, s66, v2
          v_lshlrev_b32 v3, 4, v3
          v_mad_u32_u24 v2, v2, s68, v3
          v_subrev_u32 v{vWo + i}, {1024*i}, v2''')
    p(f'''s_lshl_b32 s66, s74, 12
      s_mul_i32 s68, s74, 3072
      s_add_u32 s67, s68, {GR}
      s_add_u32 s68, s68, {UR}
      s_lshl_b32 s69, s{sRB}, 17
      s_mul_i32 s70, s{sCB}, 192
      s_lshr_b32 s71, s{sRB}, 1''')
    slabh = {}
    def dma_items(s):
        sl = s % 3
        it = []
        def x(i):
            if i == 0:
                p(f's_add_u32 s78, s71, {s}\ns_and_b32 s78, s78, 7\ns_lshl_b32 s76, s78, 7\ns_add_u32 s76, s76, s69')
                p(f's_mul_i32 s79, s78, {64*2752}\ns_add_u32 m0, s66, {sl*16384}\ns_add_u32 s79, s79, s70')
            p(f'buffer_load_dwordx4 v{vXo + i}, {srd(XD)}, s76 offen offset:{1024*i} lds')
        def w(k, i):
            if i == 0: p(f's_add_u32 m0, s{67 + k}, {sl*12288}')
            slabh[s] = p(f'buffer_load_dwordx4 v{vWo + i}, {srd((WG, WU)[k])}, s79 offen offset:{1024*i} lds')
        for i in range(4): it.append(lambda i=i: x(i))
        for k in range(2):
            for i in range(3): it.append(lambda k=k, i=i: w(k, i))
        return it
    def emit(x):
        if callable(x): x()
        else: p(x)
    def seg(work, dma=(), gap=None):
        gap = cfg.dma_gap if gap is None else gap
        work = list(work); dma = list(dma)
        while work or dma:
            if dma: emit(dma.pop(0))
            for _ in range(gap):
                if work: emit(work.pop(0))
    seg([], dma_items(0))
    mktag()
    p('s_barrier')
    w_idx = []
    A = w_idx.append
    A(f's_lshl_b32 s72, s74, 6'); A(f'v_add_u32 v9, s72, v0')
    A(f'v_lshlrev_b32 v1, 3, v9'); A(f'v_lshlrev_b32 v2, 5, v9'); A(f'v_add_u32 v2, {TT + 16}, v2')
    A(f's_mov_b32 s72, {(TT + 16 - 4*17024) & 0xffffffff}')
    for e in range(0, 11, 2):
        es = [e] if e == 10 else [e, e + 1]
        for k, ee in enumerate(es):
            A(f'v_add_u32 v{3 + k}, {ee - 3}, v1'); A(f'v_max_i32 v{3 + k}, 0x80, v{3 + k}'); A(f'v_cvt_f32_i32 v{3 + k}, v{3 + k}')
        A(f'v_cvt_pk_bf16_f32 v5, v3, v{3 + len(es) - 1}')
        for k, ee in enumerate(es):
            A('v_and_b32 v6, 0xffff, v5' if k == 0 else 'v_lshrrev_b32 v6, 16, v5')
            A('v_lshl_add_u32 v6, v6, 2, s72'); A(f'v_add_u32 v7, {4*(ee - 3)}, v2'); A(f'v_min_i32 v{vIdx + ee}, v6, v7')
    A(f's_mul_i32 s72, s74, 8704'); A(f's_add_u32 s72, s72, {KS}')
    A(f'v_lshl_add_u32 v{vSW}, v0, 2, s72')
    A('v_and_b32 v1, 31, v0'); A('v_lshrrev_b32 v2, 5, v0'); A('v_mul_u32_u24 v3, 272, v1'); A('v_lshl_add_u32 v3, v2, 4, v3')
    A(f'v_add_u32 v{vSR}, s72, v3')
    A(f's_mul_i32 s72, s75, {TCH}'); A(f's_add_u32 s72, s72, {TT + 16}')
    A('v_lshlrev_b32 v3, 3, v1'); A('v_lshl_add_u32 v3, v2, 2, v3'); A(f'v_lshl_add_u32 v{vTA}, v3, 2, s72')
    A('v_sub_u32 v4, 2, v2'); A('v_lshlrev_b32 v3, v4, v1'); A('v_lshl_add_u32 v4, v2, 7, v3'); A('v_add_u32 v4, 0x100, v4')
    A(f'v_lshl_add_u32 v{vTA + 1}, v4, 2, s72')
    A('v_mul_u32_u24 v4, 190, v2'); A('v_add_u32 v4, v4, v3'); A('v_add_u32 v4, 0x102, v4'); A(f'v_lshl_add_u32 v{vTA + 2}, v4, 2, s72')
    A('v_lshl_add_u32 v4, v2, 7, v1'); A('v_add_u32 v4, 0x200, v4'); A(f'v_lshl_add_u32 v{vTA + 3}, v4, 2, s72')

    def cmul(o, d, x, y, t):
        if cfg.pk:
            o.append(f'v_pk_mul_f32 {vr(t, 2)}, {vr(x, 2)}, {vr(y, 2)} op_sel:[0,0] op_sel_hi:[1,0]')
            o.append(f'v_pk_fma_f32 {vr(d, 2)}, {vr(x, 2)}, {vr(y, 2)}, {vr(t, 2)} op_sel:[1,1,0] op_sel_hi:[0,1,1] neg_lo:[1,0,0]')
        else:
            o.append(f'v_mul_f32 v{t}, v{x}, v{y}'); o.append(f'v_mul_f32 v{t + 1}, v{x + 1}, v{y}')
            o.append(f'v_fma_f32 v{t}, -v{x + 1}, v{y + 1}, v{t}'); o.append(f'v_fma_f32 v{d + 1}, v{x}, v{y + 1}, v{t + 1}')
            o.append(f'v_mov_b32 v{d}, v{t}') if d == x else o.__setitem__(-2, f'v_fma_f32 v{d}, -v{x + 1}, v{y + 1}, v{t}')
    cv = [0]
    def put(o, row, x, neg):
        r = 66 + cv[0] % 4; cv[0] += 1
        o.append(f'v_cvt_pk_bf16_f32 v{r}, v{x}, {"-" if neg else ""}v{x + 1}')
        o.append(f'ds_write_b32 v{vSW}, v{r} offset:{272*row}')
    w_set = []
    A = w_set.append
    for i in range(7): A(f'v_lshlrev_b32 v{vPar + i}, 16, v{vPar + i}')
    ld = vPar + 6
    A(f's_mov_b32 s72, {LOG2E}'); A(f'v_mul_f32 v1, s72, v{ld}'); A(f'v_fma_f32 v2, v{ld}, s72, -v1')
    A(f'v_fmac_f32 v2, {LOG2E_LO}, v{ld}'); A('v_exp_f32 v1, v1'); A(f'v_mul_f32 v2, {LN2}, v2'); A('v_fmac_f32 v1, v1, v2')
    A('v_cvt_pk_bf16_f32 v1, v1, v1'); A('v_and_b32 v1, 0xffff0000, v1')
    for i in range(4): A(f'v_mul_f32 v{vPar + i}, v{vPar + i}, v1')
    A(f'v_mul_f32 v{LAM}, s72, v{vPar}'); A(f'v_mul_f32 v{LAM + 1}, {INV2PI}, v{vPar + 1}')
    for (dst, n) in ((P1, 1), (Q, 8), (E256, 256)):
        if n == 1: A(f'v_exp_f32 v1, v{LAM}'); A(f'v_fract_f32 v2, v{LAM + 1}')
        else:
            lit = {8: 0x41000000, 256: 0x43800000}[n]
            A(f'v_mul_f32 v1, {lit}, v{LAM}'); A(f'v_mul_f32 v2, {lit}, v{LAM + 1}'); A('v_exp_f32 v1, v1'); A('v_fract_f32 v2, v2')
        A('v_cos_f32 v3, v2'); A('v_sin_f32 v4, v2'); A(f'v_mul_f32 v{dst}, v1, v3'); A(f'v_mul_f32 v{dst + 1}, v1, v4')
    cmul(w_set, Wv, vPar + 4, vPar + 2, T0)
    cmul(w_set, P2, P1, P1, T1); cmul(w_set, cB_, Wv, E256, T0); cmul(w_set, P4, P2, P2, T1)
    w_hi = []
    put(w_hi, 0, Wv, True); put(w_hi, 8, cB_, True)
    cmul(w_hi, cA_, Wv, P1, T0); cmul(w_hi, cC_, cB_, P2, T1); put(w_hi, 1, cA_, True); put(w_hi, 9, cC_, True)
    for i in (2, 3):
        cmul(w_hi, cA_, cA_, P1, T0); cmul(w_hi, cC_, cC_, P2, T1); put(w_hi, i, cA_, True); put(w_hi, 8 + i, cC_, True)
    cmul(w_hi, cA_, cA_, P1, T0); cmul(w_hi, cB_, cB_, E256, T1); put(w_hi, 4, cA_, True); put(w_hi, 12, cB_, True)
    cmul(w_hi, cA_, cA_, P1, T0); cmul(w_hi, cC_, cB_, P4, T1); put(w_hi, 5, cA_, True); put(w_hi, 13, cC_, True)
    cmul(w_hi, cA_, cA_, P1, T0); cmul(w_hi, cB_, cB_, E256, T1); put(w_hi, 6, cA_, True); put(w_hi, 14, cB_, True)
    cmul(w_hi, cA_, cA_, P1, T0); cmul(w_hi, cC_, cB_, P4, T1); put(w_hi, 7, cA_, True); put(w_hi, 15, cC_, True)
    cmul(w_hi, Q2, Q, Q, T0)
    for i in range(5):
        cmul(w_hi, cB_, cB_, E256, T1); put(w_hi, 16 + i, cB_, True)
    w_lo = []
    for ks in range(8): w_lo.append(f'ds_read_b128 {vr(AFr + 4*ks, 4)}, v{vSR} offset:{32*ks}')
    w_lo.append('v_mov_b32 v1, 0x3f80'); w_lo.append(f'ds_write_b32 v{vSW}, v1')
    put(w_lo, 1, Q, False); put(w_lo, 2, Q2, False)
    cmul(w_lo, cA_, Q, Q2, T0); cmul(w_lo, cB_, Q2, Q2, T1); put(w_lo, 3, cA_, False); put(w_lo, 4, cB_, False)
    for j in range(5, 32, 2):
        cmul(w_lo, cA_, cA_, Q2, T0)
        if j < 31: cmul(w_lo, cB_, cB_, Q2, T1)
        put(w_lo, j, cA_, False)
        if j < 31: put(w_lo, j + 1, cB_, False)
    w_mm = []
    for ks in range(8): w_mm.append(f'ds_read_b128 {vr(BFr + 4*ks, 4)}, v{vSR} offset:{32*ks}')
    for ks in range(8):
        w_mm.append(f'v_mfma_f32_32x32x16_bf16 {vr(DK, 16)}, {vr(AFr + 4*ks, 4)}, {vr(BFr + 4*ks, 4)}, {"0" if ks == 0 else vr(DK, 16)}')
    for v in range(12):
        areg, off = ((vTA, 4*v) if v < 4 else (vTA + 1 + ((v - 4) >> 1), 4*(v & 1)) if v < 8 else (vTA + 3, 128*(v - 8)))
        if v == 9: w_mm.append('s_mov_b32 exec_hi, 0')
        x = f'ds_add_f32 v{areg}, v{DK + v} offset:{off}'
        if v >= 9: w_mm[-1] += '\n' + x
        else: w_mm.append(x)
    w_mm[-1] += '\ns_mov_b64 exec, -1'
    w_exp = []
    A = w_exp.append
    for c in range(2):
        for e in range(11): A(f'ds_read_b32 v{80 + 12*c + e}, v{vIdx + e} offset:{TCH*c}')
    A(f'v_lshlrev_b32 v1, 4, v9'); A(f'v_add_u32 v1, {KS + 32}, v1')
    A('v_lshrrev_b32 v2, 1, v0'); A(f'v_mul_u32_u24 v2, {CST}, v2'); A('v_and_b32 v3, 1, v0'); A('v_lshl_add_u32 v2, v3, 4, v2')
    A(f'v_add_u32 v2, {KS}, v2'); A('v_mov_b64 v[4:5], 0'); A('v_mov_b64 v[6:7], 0')
    A('s_mov_b64 exec, 0xffff\nds_write_b128 v2, v[4:7]\ns_mov_b64 exec, -1')
    for c in range(2):
        for g in range(4):
            d = 104 + 16*c + 4*g
            for j in range(4): A(f'v_cvt_pk_bf16_f32 v{d + j}, v{80 + 12*c + 3 - g + 2*j}, v{80 + 12*c + 4 - g + 2*j}')
            A(f'ds_write_b128 v1, {vr(d, 4)} offset:{CCH*c + CST*g}')
    def bar(s, i=None):
        p.wait_vm(slabh[s]); p('s_waitcnt lgkmcnt(0)\ns_barrier')
        if i is not None: ts(i)
    seg(w_idx, dma_items(1))
    seg(w_set + w_hi)
    bar(0, 2)
    nlo = len(w_lo) * 3 // 4
    seg(w_lo[:nlo], dma_items(2))
    bar(1)
    seg(w_lo[nlo:] + w_mm, dma_items(3))
    bar(2, 3)
    seg(w_exp, dma_items(4))
    bar(3)
    vCA, vUB, vUW, vXB, vYS, vYL, vYW, vMisc = 1 + 186, 188, 189, 190, 191, 224, 225, 226
    w_adr = final_addr()
    keep34 = ['v_mov_b32 v227, v3', 'v_mov_b32 v228, v4']
    w_adr = w_adr + keep34
    A = w_adr.append
    A('v_lshrrev_b32 v1, 4, v0'); A('v_and_b32 v2, 15, v0'); A('v_bfe_u32 v3, v0, 2, 2'); A('v_and_b32 v4, 3, v0')
    A(f'v_mul_u32_u24 v5, {CST}, v1'); A('v_sub_u32 v6, v4, v3'); A('v_lshl_add_u32 v5, v6, 3, v5')
    A(f's_mul_i32 s72, s75, {CCH}'); A(f's_add_u32 s72, s72, {KS}'); A('s_lshl_b32 s73, s77, 8'); A('s_add_u32 s73, s73, s72'); A('s_add_u32 s73, s73, 32')
    A(f'v_add_u32 v{vCA}, s73, v5')
    A(f'v_lshl_add_u32 v{vXB}, v0, 4, s72')
    A('v_mul_u32_u24 v5, 1152, v1'); A('v_lshl_add_u32 v5, v2, 3, v5')
    A('s_mul_i32 s72, s75, 4608'); A('s_lshl_b32 s73, s77, 6'); A('s_sub_u32 s72, s72, s73'); A(f's_add_u32 s72, s72, {UP + 120 - 48}')
    A(f'v_add_u32 v{vUB}, s72, v5')
    A(f'v_lshlrev_b32 v5, 2, v9'); A(f'v_add_u32 v{vUW}, {UP + 128}, v5')
    A('v_and_b32 v5, 1, v1'); A('v_lshlrev_b32 v5, 9, v5'); A('v_lshl_add_u32 v5, v2, 5, v5'); A('v_lshrrev_b32 v6, 1, v1')
    A(f'v_lshl_add_u32 v{vYS}, v6, 4, v5')
    A('v_lshrrev_b32 v5, 3, v0'); A('v_and_b32 v6, 7, v0'); A('v_lshlrev_b32 v6, 4, v6'); A(f'v_lshl_add_u32 v{vYL}, v5, 12, v6')
    A('v_mul_u32_u24 v5, 160, v5'); A('v_add_u32 v5, v5, v6')
    A(f's_mul_i32 s72, s75, {CCH}'); A('s_mul_i32 s73, s77, 2560'); A('s_add_u32 s72, s72, s73'); A(f's_add_u32 s72, s72, {KS + 8192}')
    A(f'v_add_u32 v{vYW}, s72, v5'); A(f'v_mov_b32 v{vMisc}, {MISC}')
    d5 = dma_items(5)
    seg([], d5)
    p(f'v_lshlrev_b32 v8, 4, v0\ns_movk_i32 s73, {WS_FA}')
    p(f'buffer_load_dwordx4 v[80:83], v8, {srd(WS)}, s73 offen sc1')
    seg(w_adr)
    p(f'''s_lshl_b32 s66, s74, 12
      s_mul_i32 s68, s74, 3072
      s_add_u32 s67, s68, {GR}
      s_add_u32 s68, s68, {UR}
      s_lshl_b32 s69, s{sRB}, 17''')
    bar(4)
    seg([], dma_items(6))
    bar(5, 4)
    def fa_check():
        for j in range(4): p(f'v_xor_b32 v{80 + j}, s{sTAG}, v{80 + j}')
        p('v_or3_b32 v80, v80, v81, v82\nv_or_b32 v80, v80, v83\nv_cmp_ne_u32 vcc, 0, v80\ns_cmp_eq_u64 vcc, 0')
    Lx = p.newlabel('FAX'); L = p.newlabel('FA')
    fa_check()
    p(f's_cbranch_scc1 {Lx}')
    p.cond_begin()
    p(f's_mov_b32 s79, {cfg.spin}\ns_movk_i32 s73, {WS_FA}')
    p.label(L)
    p(f'buffer_load_dwordx4 v[80:83], v8, {srd(WS)}, s73 offen sc1')
    fa_check()
    p(f's_cbranch_scc1 {Lx}')
    p(f's_sub_u32 s79, s79, 1\ns_cmp_lg_u32 s79, 0\ns_cbranch_scc1 {L}')
    p.cond_end()
    p.label(Lx)
    p(f'''s_lshl_b32 s72, s2, 13
      s_add_u32 s72, s72, {WS_XNT}
      v_lshlrev_b32 v1, 5, v9''')
    p(f'buffer_load_dwordx4 v[80:83], v1, {srd(WS)}, s72 offen sc1')
    p(f'buffer_load_dwordx4 v[84:87], v1, {srd(WS)}, s72 offen offset:16 sc1')
    p(f'''s_mul_i32 s72, s{sCB}, 12288
      s_mul_i32 s73, s74, 192
      s_add_u32 s72, s72, s73
      s_add_u32 s72, s72, {WS_CSP}
      v_lshlrev_b32 v2, 2, v0
      s_bfm_b64 exec, 48, 0''')
    for r in range(16):
        p(f'buffer_load_dword v{88 + r}, v2, {srd(WS)}, s72 offen offset:{768*(r % 5)} sc1')
        if r % 5 == 4: p('s_add_u32 s72, s72, 3840')
    p(f'''s_lshl_b32 s72, s{sRB}, 10
      s_lshl_b32 s73, s74, 8
      s_add_u32 s72, s72, s73
      s_add_u32 s72, s72, {WS_ST}
      v_lshlrev_b32 v3, 3, v0
      s_mov_b32 exec_hi, 0''')
    p(f'buffer_load_dword v104, v3, {srd(WS)}, s72 offen sc1')
    p('s_mov_b64 exec, -1')
    L = p.newlabel('EP')
    p(f's_or_b32 s72, s2, s74\ns_cmp_eq_u32 s72, 0\ns_cbranch_scc0 {L}')
    p.cond_begin()
    p(f'v_mov_b32 v4, s{sTAG}\nv_mov_b32 v5, {WS_E}')
    one_lane(lambda: p(f'buffer_store_dword v4, v5, {srd(WS)}, 0 offen sc1'))
    p.cond_end()
    p.label(L)
    seg([], dma_items(7))
    p(f's_mov_b32 s76, {WS_ST}\nv_mov_b32 v3, v227\nv_mov_b32 v4, v228')
    for x in final_loads(): p(x)
    bar(6)
    for c in range(2):
        for g in range(4): p(f'ds_write_b32 v{vUW}, v{80 + 4*c + g} offset:{4608*c + 1152*g}')
    p(f'''v_lshrrev_b32 v1, 3, v0
      v_mul_u32_u24 v1, 1152, v1
      v_and_b32 v5, 7, v0
      v_lshl_add_u32 v1, v5, 4, v1
      v_add_u32 v1, {UP}, v1
      v_mov_b64 v[4:5], 0
      v_mov_b64 v[6:7], 0
      ds_write_b128 v1, v[4:7]''')
    for st in (8, 4, 2, 1):
        for r in range(st): p(f'v_add_f32 v{88 + r}, v{88 + r}, v{88 + st + r}')
    p(f'''v_cvt_pk_bf16_f32 v1, v88, v88
      v_and_b32 v1, 0xffff0000, v1
      v_sub_f32 v4, v88, v1
      v_cvt_pk_bf16_f32 v1, v1, v4
      s_mul_i32 s72, s74, 192
      s_add_u32 s72, s72, {CSB}
      v_add_u32 v2, s72, v2
      v_cvt_pk_bf16_f32 v4, -v104, -v104
      v_and_b32 v5, 0xffff0000, v4
      v_sub_f32 v5, -v104, v5
      v_cvt_pk_bf16_f32 v5, v5, v5
      s_lshl_b32 s72, s74, 8
      s_add_u32 s72, s72, {MB}
      v_lshl_add_u32 v3, v0, 3, s72
      s_bfm_b64 exec, 48, 0
      ds_write_b32 v2, v1
      s_mov_b32 exec_hi, 0
      ds_write_b64 v3, v[4:5]
      s_mov_b64 exec, -1''')
    bar(7, 5)
    CAf, CBf, CD = [32, 64], [96, 128], 192
    def cfrags(rr):
        o = []; st_ = rr & 1
        for k in range(8):
            o.append(f'ds_read2_b64 {vr(CBf[st_] + 4*k, 4)}, v{vUB} offset0:{2*(8*k - rr + 3)} offset1:{2*(8*k - rr + 3) + 1}')
            for s in range(2):
                o.append(f'ds_read_b64_tr_b16 {vr(CAf[st_] + 4*k + 2*s, 2)}, v{vCA} offset:{64*(rr + 8*k) + 32*(1 - s)}')
        return o
    for x in cfrags(0): p(x)
    fb = final_base()
    for rr in range(4):
        nxt = cfrags(rr + 1) if rr < 3 else []
        st_ = rr & 1
        pairs = sorted(((a, b) for a in range(8) for b in range(8 - a)), key=lambda ab: (max(ab), ab[0]))
        seen = set()
        for k, (a, b) in enumerate(pairs):
            c = a + b; d = CD + 4*c
            cc = '0' if (rr == 0 and c not in seen) else vr(d, 4)
            seen.add(c)
            p(f'v_mfma_f32_16x16x32_bf16 {vr(d, 4)}, {vr(CAf[st_] + 4*a, 4)}, {vr(CBf[st_] + 4*b, 4)}, {cc}')
            if nxt and k >= 2: p(nxt.pop(0))
            if rr == 3:
                if k == 28:
                    p(f's_lshl_b32 s72, s74, 2\nv_add_u32 v8, s72, v{vMisc}\nv_mov_b32 v5, 1')
                    one_lane(lambda: p(f'ds_write_b32 v8, v5 offset:{F1 - MISC}'))
                elif fb: p(fb.pop(0))
        assert not nxt
    while fb: p(fb.pop(0))
    ts(6)
    p('v_xor_b32 v7, 4, v8')
    lds_spin(7, F1 - MISC, 1, 6)
    p(f'''s_lshl_b32 s72, s2, 1
      s_add_u32 s72, s72, s75
      s_lshl_b32 s72, s72, 12
      s_add_u32 s72, s72, {WS_YT}''')
    Lb = p.newlabel('XB'); Le = p.newlabel('XE')
    p(f's_cmp_eq_u32 s77, 0\ns_cbranch_scc0 {Lb}')
    for hf in range(2):
        if hf == 1: p.label(Lb)
        p.cond_begin()
        snd, kp = (4, 0) if hf == 0 else (0, 4)
        for k in range(4): p(f'ds_write_b128 v{vXB}, {vr(CD + 4*(snd + k), 4)} offset:{4096*hf + 1024*k}')
        one_lane(lambda: p(f'ds_write_b32 v8, v5 offset:{F2 - MISC}'))
        lds_spin(7, F2 - MISC, 1, 6)
        for k in range(4): p(f'ds_read_b128 {vr(32 + 4*k, 4)}, v{vXB} offset:{4096*(1 - hf) + 1024*k}')
        for k in range(4):
            for j in range(4): p(f'v_add_f32 v{32 + 4*k + j}, v{32 + 4*k + j}, v{CD + 4*(kp + k) + j}')
            for j in range(2): p(f'v_cvt_pk_bf16_f32 v{48 + 2*k + j}, v{32 + 4*k + 2*j}, v{32 + 4*k + 2*j + 1}')
            if k & 1:
                r = 48 + 2*(k - 1)
                p(f'v_permlane16_swap_b32 v{r}, v{r + 2}\nv_permlane16_swap_b32 v{r + 1}, v{r + 3}')
                p(f'buffer_store_dwordx4 {vr(r, 4)}, v{vYS}, {srd(WS)}, s72 offen offset:{512*(kp + k - 1)} sc1')
        if hf == 0: p(f's_branch {Le}')
        p.cond_end()
    p.label(Le)
    p('s_waitcnt vmcnt(0) lgkmcnt(0)')
    p('v_mov_b32 v1, 1')
    one_lane(lambda: p(f'ds_add_rtn_u32 v2, v{vMisc}, v1 offset:{C_Y - MISC}'))
    publish(2, f's_lshl_b32 s79, s2, 2\ns_add_u32 s79, s79, {WS_FY}')
    p(f'''s_lshl_b32 s72, s{sCB2}, 7
      s_lshl_b32 s73, s74, 5
      s_add_u32 s72, s72, s73
      s_add_u32 s72, s72, {WS_FY}
      v_and_b32 v1, 7, v0
      v_lshlrev_b32 v1, 2, v1
      s_mov_b32 s79, {cfg.spin}''')
    L = p.newlabel('PY'); Lx = p.newlabel('PYX')
    p.label(L)
    p(f'buffer_load_dword v2, v1, {srd(WS)}, s72 offen sc1')
    p(f'v_cmp_ne_u32 vcc, s{sTAG}, v2\ns_cmp_eq_u64 vcc, 0')
    p(f's_cbranch_scc1 {Lx}')
    p(f's_sub_u32 s79, s79, 1\ns_cmp_lg_u32 s79, 0\ns_cbranch_scc1 {L}')
    p.label(Lx)
    ts(7)
    p(f'''s_lshl_b32 s72, s{sCB2}, 18
      s_lshl_b32 s73, s74, 16
      s_add_u32 s72, s72, s73
      s_lshl_b32 s73, s{sRB2}, 7
      s_add_u32 s72, s72, s73
      s_add_u32 s72, s72, {WS_YT}
      s_add_u32 s73, s72, 32768''')
    for k in range(2): p(f'buffer_load_dwordx4 {vr(32 + 4*k, 4)}, v{vYL}, {srd(WS)}, s{72 + k} offen sc1')
    for k in range(2): p(f'ds_write_b128 v{vYW}, {vr(32 + 4*k, 4)} offset:{1280*k}')
    p('s_waitcnt lgkmcnt(0)')
    final_tail()
    p.label('L_END')
    p('s_endpgm')
    return p.text()

HEADER = open('cdna_kernels/' + KNAME + '.s.ref').read().split('; Override launch')[0] if True else ''

def build(cfg):
    k = dict(name=KNAME + '_kernel', grid=(256, 1, 1), block=(512, 1, 1), lds=LDS_SIZE, body=gen(cfg), vgpr=256, sgpr=102, accum=256)
    return build_file([k], header_comment=HEADER)

if __name__ == '__main__':
    cfg = Cfg()
    out = sys.argv[1]
    for a in sys.argv[2:]:
        k, v = a.split('='); setattr(cfg, k, type(getattr(Cfg, k))(int(v)))
    open(out, 'w').write(build(cfg))
```

```python
import sys, copy
from asmlib import build_file, KNAME
from asm2 import Prog

WS_E = 0; WS_FA = 1024; WS_FH = 2048; WS_FY = 3072; WS_ST = 4096; WS_CSP = 32768
WS_XNT = 0x40000; WS_YT = 0x240000; WS_H = 0x440000; WS_DBG = 0x1000000
WS_SIZE = 0x2000000
BIG = 0x40000000
XR = 0; GR = 49152; UR = 86048; KS = 122944; TT = 157760; TCH = 2704; MISC = 163168; LDS_SIZE = 163840
LNS = 32768; UP = 73728; CCH = 16640; CST = 4160
CSB = TT; MB = TT + 1024
C_L, C_A, C_H, C_8, C_F, C_Y, F1, F2 = [MISC + 4 * i for i in (0, 1, 2, 3, 4, 5, 8, 12)]
sW = 3
X, WG, WU, WD, OUT, WS = 36, 40, 44, 48, 52, 56
sTAG, sRB, sCB, sTB, sRB2, sCB2 = 60, 61, 62, 63, 64, 65
XD = 36
def srd(b): return f's[{b}:{b + 3}]'
def vr(a, n): return f'v[{a}:{a + n - 1}]'
LOG2E = 0x3FB8AA3B; LOG2E_LO = 0x32A57060; LN2 = 0x3F317218; INV2PI = 0x3E22F983

class Cfg:
    ts = False
    pk = True
    hwin = 10
    dma_gap = 8
    spin = 1 << 16
    tsa = False
    tset = 0
    probe = 0
    probebuf = 22

TSETS = [
  (['g_ln', 'g_b0', 'g_b4', 'g_b7', 'g_hst', 'g_fh'], ['s_b0', 's_b2', 's_b5', 's_b7', 's_conv', 's_fy']),
  (['g_karg', 'g_adr', 'g_binit', 'g_ln', 'g_cl', 'g_b0'], ['s_karg', 's_dma0', 's_binit', 's_par', 's_hi', 's_l0']),
  (['g_b0', 'g_b1', 'g_b2', 'g_b3', 'g_b5', 'g_b6'], ['s_w1', 's_l1', 's_w2', 's_l2', 's_w3', 's_l3']),
  (['g_karg', 'g_adr', 'g_binit', 'g_ln', 'g_cl', 'g_b0'], ['s_dma0', 's_binit', 's_idx', 's_parx', 's_l0x', 's_l1x']),
]
def gen(cfg):
    p = Prog()
    tsn = {'n': 0}
    def ts(i, real=False):
        if cfg.ts: p(f'{"s_memrealtime" if real else "s_memtime"} s[{80 + 2 * i}:{81 + 2 * i}]')
    def tn(name):
        for l in TSETS[cfg.tset]:
            if name in l: ts(2 + l.index(name))
    def one_lane(f):
        p('s_mov_b64 exec, 1'); r = f(); p('s_mov_b64 exec, -1'); return r
    def lds_spin(addr_v, off, target, tmpv, cmpop='ge'):
        L = p.newlabel('SPIN'); Lx = p.newlabel('SPINX')
        p(f's_mov_b32 s79, {cfg.spin * 8}')
        p.label(L)
        p(f'ds_read_b32 v{tmpv}, v{addr_v} offset:{off}')
        p(f'v_readfirstlane_b32 s78, v{tmpv}')
        p(f's_cmp_ge_u32 s78, {target}')
        p(f's_cbranch_scc1 {Lx}')
        p('s_sub_u32 s79, s79, 1')
        p('s_cmp_lg_u32 s79, 0')
        p(f's_cbranch_scc1 {L}')
        p.label(Lx)

    p('s_cmp_ge_u32 s2, 256\ns_cbranch_scc1 L_END')
    p('s_load_dwordx16 s[4:19], s[0:1], 0\ns_load_dwordx16 s[20:35], s[0:1], 64')
    ts(0, True); ts(1)
    p('v_lshrrev_b32 v1, 6, v0')
    p('v_lshlrev_b32 v2, 4, v0')
    p(f'v_readfirstlane_b32 s{sW}, v1')
    p(f'v_cmp_gt_u32 vcc, {(LDS_SIZE - TT) // 16}, v0')
    p(f'v_add_u32 v2, {TT}, v2')
    p('v_and_b32 v0, 63, v0')
    p('v_mov_b64 v[4:5], 0\nv_mov_b64 v[6:7], 0')
    p('s_mov_b64 exec, vcc')
    p('ds_write_b128 v2, v[4:7]')
    p('s_mov_b64 exec, -1')
    p(f'''s_and_b32 s66, s2, 7
      s_lshr_b32 s67, s2, 3
      s_and_b32 s68, s66, 3
      s_lshr_b32 s69, s66, 2
      s_and_b32 s70, s67, 3
      s_lshl_b32 s71, s68, 2
      s_add_u32 s{sRB}, s71, s70
      s_lshl_b32 s{sRB2}, s66, 2
      s_add_u32 s{sRB2}, s{sRB2}, s70
      s_lshr_b32 s{sCB2}, s67, 2
      s_mul_i32 s{sCB}, s69, 7
      s_add_u32 s{sCB}, s{sCB}, s{sCB2}
      s_and_b32 s70, s67, 1
      s_add_u32 s71, s71, s70
      s_lshl_b32 s69, s69, 1
      s_add_u32 s71, s71, s69
      s_bfe_u32 s70, s67, 0x10001
      s_add_u32 s70, s70, 14
      s_cmp_lt_u32 s67, 28
      s_cselect_b32 s{sRB}, s{sRB}, s71
      s_cselect_b32 s{sCB}, s{sCB}, s70
      s_lshl_b32 s{sTB}, s{sRB}, 4
      s_add_u32 s{sTB}, s{sTB}, s{sCB}''')
    p(f's_cmp_ge_u32 s{sW}, 4')
    p('s_cbranch_scc1 L_S')
    st0 = (copy.deepcopy(p.vmq), copy.deepcopy(p.dsq))

    def srds(role):
        p(f's_load_dword s{sTAG}, s[34:35], {WS_E}')
        p(f's_cmp_eq_u32 s{sCB}, 15')
        if role == 'S':
            p(f'''s_mov_b32 s{XD}, s4\ns_mov_b32 s{XD+1}, s5\ns_cselect_b32 s{XD+2}, 0, 0x200000\ns_mov_b32 s{XD+3}, 0x20000
              s_mov_b32 s{WG}, s24\ns_mov_b32 s{WG+1}, s25\ns_cselect_b32 s{WG+2}, 0, {512*2752}\ns_mov_b32 s{WG+3}, 0x20000
              s_mov_b32 s{WU}, s26\ns_mov_b32 s{WU+1}, s27\ns_mov_b32 s{WU+2}, s{WG+2}\ns_mov_b32 s{WU+3}, 0x20000''')
        else:
            p(f's_mov_b32 s{WD}, s28\ns_mov_b32 s{WD+1}, s29\ns_mov_b32 s{WD+2}, {1376*1024}\ns_mov_b32 s{WD+3}, 0x20000')
        p(f'''s_mov_b32 s{WS}, s34\ns_mov_b32 s{WS+1}, s35\ns_mov_b32 s{WS+2}, {WS_SIZE}\ns_mov_b32 s{WS+3}, 0x20000
          s_mov_b32 s{OUT}, s30\ns_mov_b32 s{OUT+1}, s31\ns_mov_b32 s{OUT+2}, 0x200000\ns_mov_b32 s{OUT+3}, 0x20000''')
    def mktag():
        p('s_waitcnt lgkmcnt(0)')
        p(f's_mul_i32 s{sTAG}, s{sTAG}, 0x9E3779B1\ns_add_u32 s{sTAG}, s{sTAG}, 0x7F4A7C15')

    fX, fD, fST, fY, fB, fP = 160, 164, 168, 170, 176, 80
    fOFF, fPA, fYA = 184, 185, 186
    def final_addr():
        return f'''v_and_b32 v1, 15, v0
          v_lshrrev_b32 v2, 4, v0
          s_and_b32 s66, s{sW}, 3
          s_lshr_b32 s67, s{sW}, 2
          s_lshl_b32 s68, s{sRB2}, 6
          s_lshl_b32 s69, s66, 4
          s_add_u32 s68, s68, s69
          v_add_u32 v3, s68, v1
          s_lshl_b32 s68, s{sCB2}, 7
          s_lshl_b32 s69, s67, 6
          s_add_u32 s68, s68, s69
          v_lshl_add_u32 v4, v2, 4, s68
          v_lshl_add_u32 v{fOFF}, v3, 10, v4
          v_lshlrev_b32 v3, 3, v3
          s_lshl_b32 s68, s67, 13
          s_lshr_b32 s69, s66, 1
          s_lshl_b32 s69, s69, 12
          s_add_u32 s68, s68, s69
          s_and_b32 s69, s66, 1
          s_lshl_b32 s69, s69, 8
          s_add_u32 s68, s68, s69
          v_lshlrev_b32 v5, 10, v2
          v_lshl_add_u32 v5, v1, 4, v5
          v_add_u32 v{fPA}, s68, v5
          s_mul_i32 s68, s67, {CCH}
          s_lshl_b32 s69, s66, 5
          s_add_u32 s68, s68, s69
          s_add_u32 s68, s68, {KS + 8192}
          v_lshrrev_b32 v5, 2, v1
          v_lshl_add_u32 v5, v2, 3, v5
          v_mul_u32_u24 v5, 160, v5
          v_and_b32 v6, 3, v0
          v_lshl_add_u32 v5, v6, 3, v5
          v_add_u32 v{fYA}, s68, v5'''.split('\n')
    def final_loads():
        return [f'global_load_dwordx4 {vr(fX, 4)}, v{fOFF}, s[4:5]',
                f'global_load_dwordx4 {vr(fD, 4)}, v4, s[20:21]',
                f'buffer_load_dwordx2 {vr(fST, 2)}, v3, {srd(WS)}, 0 offen offset:0 sc1'.replace(', 0 offen', f', s76 offen')]
    def final_base():
        o = []
        for j in range(4):
            o += [f'v_lshlrev_b32 v{fB + 2*j}, 16, v{fX + j}', f'v_and_b32 v{fB + 2*j + 1}, 0xffff0000, v{fX + j}',
                  f'v_lshlrev_b32 v1, 16, v{fD + j}', f'v_and_b32 v2, 0xffff0000, v{fD + j}',
                  f'v_mul_f32 v1, v1, v{fST + 1}', f'v_mul_f32 v2, v2, v{fST + 1}',
                  f'v_sub_f32 v3, v{fB + 2*j}, v{fST}', f'v_sub_f32 v4, v{fB + 2*j + 1}, v{fST}',
                  f'v_fmac_f32 v{fB + 2*j}, v3, v1', f'v_fmac_f32 v{fB + 2*j + 1}, v4, v2']
        o += [f'v_mul_f32 v{fST + 1}, v{fST + 1}, v{fST + 1}']
        return o
    def final_tail():
        p('s_barrier')
        ts(8)
        p(f'ds_read_b64_tr_b16 {vr(fY, 2)}, v{fYA}\nds_read_b64_tr_b16 {vr(fY + 2, 2)}, v{fYA} offset:640')
        for w in range(4):
            for hh in range(2):
                p(f'ds_read_b128 {vr(fP + 8*w + 4*hh, 4)}, v{fPA} offset:{16384*w + 512*hh}')
        for j in range(4):
            p(f'v_lshlrev_b32 v1, 16, v{fY + j}\nv_and_b32 v2, 0xffff0000, v{fY + j}')
            p(f'v_add_f32 v{fB + 2*j}, v{fB + 2*j}, v1\nv_add_f32 v{fB + 2*j + 1}, v{fB + 2*j + 1}, v2')
        for e in range(8): p(f'v_add_f32 v{fP + e}, v{fP + e}, v{fP + 8 + e}')
        for e in range(8): p(f'v_add_f32 v{fP + 16 + e}, v{fP + 16 + e}, v{fP + 24 + e}')
        for e in range(8): p(f'v_add_f32 v{fP + e}, v{fP + e}, v{fP + 16 + e}')
        for e in range(8): p(f'v_fmac_f32 v{fB + e}, v{fP + e}, v{fST + 1}')
        for j in range(4): p(f'v_cvt_pk_bf16_f32 v{fX + j}, v{fB + 2*j}, v{fB + 2*j + 1}')
        p(f'buffer_store_dwordx4 {vr(fX, 4)}, v{fOFF}, {srd(OUT)}, 0 offen')
        if cfg.ts:
            p('s_waitcnt vmcnt(0)')
            ts(9)
            p('s_waitcnt lgkmcnt(0)')
            for i in range(10): p(f'v_writelane_b32 v1, s{80 + 2*i}, {i}')
            p(f's_lshl_b32 s66, s2, 3\ns_add_u32 s66, s66, s{sW}\ns_lshl_b32 s66, s66, 6\ns_add_u32 s66, s66, {WS_DBG}')
            p('v_lshlrev_b32 v2, 2, v0')
            p('s_mov_b64 exec, 0x3ff')
            p(f'buffer_store_dword v1, v2, {srd(WS)}, s66 offen')
        p('s_endpgm')

    vXa, vWg, vWu, vW1, vCS1, vCS2, vH01, vH2, vWd, vA, vHl, vHz, vCnt = 16, 20, 21, 22, 23, 24, 25, 26, 27, 31, 37, 38, 39
    FR = [120, 140]
    ACC = 160
    cA, cB, cs = 40, 56, 64
    p('s_waitcnt lgkmcnt(0)')
    tn('g_karg')
    if cfg.probe:
        Lp = p.newlabel('PROBE')
        p(f's_cmp_eq_u32 s{sW}, 0\ns_cbranch_scc0 {Lp}')
        p('s_lshl_b32 s66, s2, 13\nv_mov_b32 v1, s66')
        for i in range(cfg.probe):
            p(f'global_load_dword v2, v1, s[{cfg.probebuf}:{cfg.probebuf+1}]')
            p('s_waitcnt vmcnt(0)\nv_add_u32 v1, 128, v1')
        p.label(Lp)
    p(f'''v_lshlrev_b32 v{vHl}, 4, v0
      s_lshl_b32 s66, s{sTB}, 13
      s_lshl_b32 s67, s{sW}, 11
      s_add_u32 s66, s66, s67
      v_add_u32 v3, s66, v{vHl}
      global_load_dwordx4 v[8:11], v3, s[4:5]
      global_load_dwordx4 v[12:15], v3, s[4:5] offset:1024''')
    srds('G')
    p(f's_and_b32 s74, s{sW}, 1\ns_lshr_b32 s75, s{sW}, 1\ns_mov_b32 s76, {WS_ST}')
    p(f'''v_and_b32 v1, 31, v0
      v_lshrrev_b32 v2, 5, v0
      v_bfe_u32 v3, v0, 1, 3
      v_xor_b32 v3, v3, v2
      s_lshl_b32 s66, s74, 13
      v_lshl_add_u32 v4, v1, 7, s66''')
    for ks in range(4):
        p(f'v_xor_b32 v5, {2*ks}, v3\nv_lshl_add_u32 v{vXa + ks}, v5, 4, v4')
    p(f'''v_bfe_u32 v3, v0, 2, 2
      v_lshl_add_u32 v3, v2, 3, v3
      v_mul_u32_u24 v3, 192, v3
      v_and_b32 v4, 3, v0
      v_lshl_add_u32 v3, v4, 3, v3
      s_mul_i32 s66, s75, 96
      v_add_u32 v3, s66, v3
      v_bfe_u32 v4, v0, 4, 1
      v_lshl_add_u32 v5, v4, 5, v3
      v_add_u32 v{vWg}, {GR}, v5
      v_add_u32 v{vWu}, {UR}, v5
      v_mul_u32_u24 v4, {UR - GR}, v4
      v_add_u32 v3, {GR + 64}, v3
      v_add_u32 v{vW1}, v3, v4''')
    p(f'''s_cmp_eq_u32 s74, 0
      s_cselect_b32 s66, 0, {BIG}
      v_lshl_add_u32 v{vCS1}, v0, 2, s66
      v_lshlrev_b32 v3, 30, v2
      v_add_u32 v{vCS2}, v3, v{vCS1}
      s_mul_i32 s66, s{sCB}, 6
      s_mul_i32 s67, s75, 3
      s_add_u32 s66, s66, s67
      s_cmp_le_u32 s66, 84
      s_cselect_b32 s67, 0, {BIG}
      v_add_u32 v{vH01}, s67, v{vHl}
      s_cmp_le_u32 s66, 83
      s_cselect_b32 s67, 0, {BIG}
      v_add_u32 v{vH2}, s67, v{vHl}
      s_lshl_b32 s67, s{sRB}, 2
      s_lshl_b32 s68, s74, 1
      s_add_u32 s67, s67, s68
      s_mul_i32 s67, s67, 86
      s_add_u32 s66, s66, s67
      s_lshl_b32 s66, s66, 10
      s_add_u32 s70, s66, {WS_H}
      s_add_u32 s71, s70, {86*1024}''')
    p(f'''v_lshrrev_b32 v3, 3, v0
      v_bfe_u32 v4, v0, 4, 1
      v_lshlrev_b32 v4, 2, v4
      v_and_b32 v5, 7, v0
      v_xor_b32 v4, v4, v5
      v_lshlrev_b32 v4, 4, v4
      v_lshl_add_u32 v{vWd}, v3, 10, v4''')
    for i in range(1, 4): p(f'v_add_u32 v{vWd + i}, {7168*i}, v{vWd}')
    p(f'''v_bfe_u32 v3, v0, 2, 2
      v_lshl_add_u32 v3, v2, 2, v3
      v_bfe_u32 v4, v3, 1, 1
      v_lshlrev_b32 v4, 6, v4
      v_lshl_add_u32 v3, v3, 7, v4
      v_bfe_u32 v4, v0, 4, 1
      v_lshl_add_u32 v3, v4, 5, v3
      v_and_b32 v4, 3, v0
      v_lshl_add_u32 v3, v4, 3, v3
      v_xor_b32 v4, 64, v3
      s_lshl_b32 s66, s{sW}, 12
      s_mul_i32 s67, s{sW}, 3072
      s_add_u32 s68, s67, {GR}
      s_add_u32 s69, s67, {UR}
      v_add_u32 v{vA}, s66, v3
      v_add_u32 v{vA + 1}, s66, v4
      v_add_u32 v{vA + 2}, s68, v3
      v_add_u32 v{vA + 3}, s68, v4
      v_add_u32 v{vA + 4}, s69, v3
      v_add_u32 v{vA + 5}, s69, v4
      s_cmp_ge_u32 s{sW}, 2
      s_cselect_b32 s66, {BIG}, 0
      v_add_u32 v{vHz}, s66, v{vHl}
      v_mov_b32 v{vCnt}, {MISC}''')
    for r in range(cA, cA + 12, 2): p(f'v_mov_b64 v[{r}:{r+1}], 0')
    for r in range(cB, cB + 8, 2): p(f'v_mov_b64 v[{r}:{r+1}], 0')
    p(f'''s_lshl_b32 s66, s74, 2
      s_add_u32 s66, s66, s75
      s_mul_i32 s66, s66, 1088
      s_add_u32 s66, s66, {LNS}
      v_add_u32 v6, s66, v{vHl}
      v_bfe_u32 v3, v0, 2, 2
      v_mul_u32_u24 v3, 1088, v3
      v_lshrrev_b32 v4, 4, v0
      v_lshl_add_u32 v3, v4, 5, v3
      v_and_b32 v4, 3, v0
      v_lshl_add_u32 v3, v4, 3, v3
      s_lshl_b32 s66, s{sW}, 8
      s_add_u32 s66, s66, {LNS}
      v_add_u32 v7, s66, v3
      v_lshrrev_b32 v3, 1, v0
      v_and_b32 v4, 1, v0
      v_lshlrev_b32 v4, 4, v4
      v_lshl_add_u32 v60, v3, 13, v4
      s_mov_b32 s77, 0x3f803f80''')
    tn('g_adr')
    mktag()
    p('s_barrier')
    tn('g_binit')
    xa = 64
    def reduce2(a, b, t):
        p(f'v_permlane32_swap_b32 v{a}, v{b}')
        p(f'v_add_f32 v{a}, v{a}, v{b}')
        p(f'v_mov_b32 v{t}, v{a}')
        p(f'v_permlane16_swap_b32 v{a}, v{t}')
        p(f'v_add_f32 v{a}, v{a}, v{t}')
        for m in ('quad_perm:[1,0,3,2]', 'quad_perm:[2,3,0,1]', 'row_half_mirror', 'row_mirror'):
            p(f'v_add_f32_dpp v{a}, v{a}, v{a} {m} row_mask:0xf bank_mask:0xf')
        p(f'v_mov_b32 v{b}, v{a}')
        p(f'v_permlane32_swap_b32 v{a}, v{b}')
    for r in range(2):
        p(f'v_dot2_f32_bf16 v{1 + r}, v{8 + 4*r}, s77, 0')
    tn('g_ln')
    for j in range(1, 4):
        for r in range(2): p(f'v_dot2_f32_bf16 v{1 + r}, v{8 + 4*r + j}, s77, v{1 + r}')
    for r in range(2):
        for j in range(4):
            p(f'v_lshlrev_b32 v{xa + 8*r + 2*j}, 16, v{8 + 4*r + j}\nv_and_b32 v{xa + 8*r + 2*j + 1}, 0xffff0000, v{8 + 4*r + j}')
    reduce2(1, 2, 3)
    p(f'v_mul_f32 v8, {1.0/512}, v1\nv_mul_f32 v10, {1.0/512}, v2'.replace('0.001953125', '0x3b000000'))
    for r in range(2):
        for e in range(8): p(f'v_sub_f32 v{xa + 8*r + e}, v{xa + 8*r + e}, v{8 + 2*r}')
    for r in range(2): p(f'v_mul_f32 v{1 + r}, v{xa + 8*r}, v{xa + 8*r}')
    for e in range(1, 8):
        for r in range(2): p(f'v_fmac_f32 v{1 + r}, v{xa + 8*r + e}, v{xa + 8*r + e}')
    reduce2(1, 2, 3)
    p('v_mov_b32 v3, 0x3727c5ac')
    p('v_fmac_f32 v3, 0x3b000000, v1\nv_mov_b32 v4, 0x3727c5ac\nv_fmac_f32 v4, 0x3b000000, v2')
    p('v_rsq_f32 v9, v3\nv_rsq_f32 v11, v4')
    for r in range(2):
        for e in range(8): p(f'v_mul_f32 v{xa + 8*r + e}, v{xa + 8*r + e}, v{9 + 2*r}')
        for j in range(4): p(f'v_cvt_pk_bf16_f32 v{80 + 4*r + j}, v{xa + 8*r + 2*j}, v{xa + 8*r + 2*j + 1}')
        p(f'ds_write_b128 v6, {vr(80 + 4*r, 4)} offset:{2176*r}')
    p(f'''v_mov_b32 v1, 1
      s_lshl_b32 s66, s{sTB}, 6
      s_lshl_b32 s67, s{sW}, 4
      s_add_u32 s66, s66, s67
      s_add_u32 s66, s66, {WS_ST}
      v_mov_b32 v2, 0''')
    one_lane(lambda: p(f'ds_add_u32 v{vCnt}, v1 offset:{C_L - MISC}\nbuffer_store_dwordx4 v[8:11], v2, {srd(WS)}, s66 offen sc1'))
    p(f'''s_lshl_b32 s66, s{sW}, 19
      s_lshl_b32 s67, s{sTB}, 5
      s_add_u32 s66, s66, s67
      s_add_u32 s66, s66, {WS_XNT}
      s_add_u32 s67, s66, {32*8192}''')
    lds_spin(vCnt, C_L - MISC, 4, 1)
    tn('g_cl')
    for h2 in range(2):
        for s in range(2):
            p(f'ds_read_b64_tr_b16 {vr(88 + 4*h2 + 2*s, 2)}, v7 offset:{4352*s + 128*h2}')
    for h2 in range(2):
        p(f'buffer_store_dwordx4 {vr(88 + 4*h2, 4)}, v60, {srd(WS)}, s{66 + h2} offen sc1')
    p('s_barrier')
    tn('g_b0')
    def reads(g):
        s, ks = g >> 2, g & 3; sl = s % 3; b = FR[g & 1]
        wo = sl * 12288 + ks * 16 * 192
        xr = lambda tt: f'ds_read_b128 {vr(b + 12 + 4*tt, 4)}, v{vXa + ks} offset:{sl*16384 + tt*4096}'
        wr = lambda T, j: f'ds_read_b64_tr_b16 {vr(b + 4*T + 2*j, 2)}, v{(vWg, vW1, vWu)[T]} offset:{wo + j*768}'
        return [xr(0), wr(0, 0), wr(0, 1), xr(1), wr(1, 0), wr(1, 1), wr(2, 0), wr(2, 1)]
    extra = {}
    def add(g, m, item): extra.setdefault((g, m), []).append(item)
    def piece_loc(P):
        P %= 27
        groups = [(0, 4, 0, 32768), (4, 3, 2, 24576), (7, 4, 0, 0), (11, 3, 1, 0), (14, 3, 2, 0),
                  (17, 4, 0, 16384), (21, 3, 1, 12288), (24, 3, 2, 12288)]
        for (p0, n, reg, imm) in groups:
            if p0 <= P < p0 + n: return reg, imm, P - p0
    wdh = {}
    wd_state = {'grp': None}
    def wd_dma(P):
        reg, imm, i = piece_loc(P)
        grp = P - i
        if wd_state['grp'] != grp:
            wd_state['grp'] = grp
            p(f's_add_u32 m0, s{(66, 67, 68)[reg]}, {imm}')
            p(f's_add_u32 s69, s73, {8192 * grp}')
        wdh[P] = p(f'buffer_load_dwordx4 v{vWd + i}, {srd(WD)}, s69 offen offset:{1024*i} lds')
    def wd_setup():
        p(f'''s_lshl_b32 s66, s{sW}, 12
          s_mul_i32 s68, s{sW}, 3072
          s_add_u32 s67, s68, {GR}
          s_add_u32 s68, s68, {UR}
          s_mul_i32 s72, s{sW}, 22
          s_cmp_eq_u32 s{sW}, 3
          s_cselect_b32 s72, 65, s72
          s_lshl_b32 s73, s72, 14
          s_lshl_b32 s69, s{sCB2}, 7
          s_add_u32 s73, s73, s69''')
    for g in range(32):
        nxt = reads(g + 1) if g < 31 else []
        if (g & 3) == 3:
            dist = {2: nxt[0:2], 3: nxt[2:4], 4: nxt[4:6], 5: nxt[6:8]}
            if g < 31: add(g, 2, 'BARRIER')
        else:
            dist = {0: nxt[0:2], 1: nxt[2:3], 2: nxt[3:5], 3: nxt[5:6], 4: nxt[6:7], 5: nxt[7:8]}
        for m, l in dist.items():
            for x in l: add(g, m, x)
    for g in range(2):
        for T in range(3):
            for r in range(4):
                c = '0' if (g == 0 and r == 0) else f'v{cs + T}'
                add(g, 2*T + (r >> 1), f'v_dot2_f32_bf16 v{cs + T}, v{FR[g] + 4*T + r}, s77, {c}')
    def cs_pub():
        p(f'''s_lshl_b32 s66, s{sCB}, 4
          s_add_u32 s66, s66, s{sRB}
          s_mul_i32 s66, s66, 768
          s_mul_i32 s67, s75, 384
          s_add_u32 s66, s66, s67
          s_add_u32 s66, s66, {WS_CSP}''')
        p(f'buffer_store_dword v{cs}, v{vCS1}, {srd(WS)}, s66 offen sc1')
        p(f'buffer_store_dword v{cs + 2}, v{vCS2}, {srd(WS)}, s66 offen offset:256 sc1')
    add(2, 0, f'v_mov_b32 v{cs + 3}, v{cs + 2}'); add(2, 0, f'v_permlane32_swap_b32 v{cs}, v{cs + 1}')
    add(2, 1, f'v_permlane32_swap_b32 v{cs + 2}, v{cs + 3}'); add(2, 1, f'v_add_f32 v{cs}, v{cs}, v{cs + 1}')
    add(2, 2, f'v_add_f32 v{cs + 2}, v{cs + 2}, v{cs + 3}')
    add(2, 3, cs_pub)
    def fa_arrive():
        p('s_waitcnt vmcnt(0)')
        p('v_mov_b32 v1, 1')
        one_lane(lambda: p(f'ds_add_rtn_u32 v2, v{vCnt}, v1 offset:{C_A - MISC}'))
    def publish(tmpv, soff_lines):
        L = p.newlabel('PUB')
        p(f'v_readfirstlane_b32 s78, v{tmpv}')
        p('s_cmp_eq_u32 s78, 3')
        p(f's_cbranch_scc0 {L}')
        p.cond_begin()
        p(soff_lines)
        p(f'v_mov_b32 v1, s{sTAG}\nv_mov_b32 v2, 0')
        one_lane(lambda: p(f'buffer_store_dword v1, v2, {srd(WS)}, s79 offen sc1'))
        p.cond_end()
        p.label(L)
    add(6, 0, fa_arrive)
    add(7, 0, lambda: publish(2, f's_lshl_b32 s79, s{sTB}, 2\ns_add_u32 s79, s79, {WS_FA}'))
    add(22, 0, wd_setup)
    for k, P in enumerate(range(0, 7)): add(24 + k // 3, 2 * (k % 3), (lambda P=P: wd_dma(P)))
    for k, P in enumerate(range(7, 17)): add(28 + k // 3, 2 * (k % 3) + 1, (lambda P=P: wd_dma(P)))
    def corr_reads():
        p(f'''v_and_b32 v1, 31, v0
          s_mul_i32 s78, s75, 384
          s_add_u32 s78, s78, {CSB}
          v_lshl_add_u32 v2, v1, 2, s78
          s_lshl_b32 s78, s74, 9
          s_add_u32 s78, s78, {MB}
          v_lshl_add_u32 v1, v1, 3, s78
          s_mov_b32 exec_hi, 0''')
        for T in range(3): p(f'ds_read2_b32 {vr(cA + 4*T, 2)}, v2 offset0:{32*T} offset1:{32*T}')
        for tt in range(2): p(f'ds_read_b64 {vr(cB + 4*tt, 2)}, v1 offset:{256*tt}')
        p('s_mov_b64 exec, -1')
    add(28, 0, corr_reads)
    def b8_arrive():
        p('s_waitcnt lgkmcnt(0)')
        p('v_mov_b32 v1, 1')
        one_lane(lambda: p(f'ds_add_u32 v{vCnt}, v1 offset:{C_8 - MISC}'))
    add(31, 3, b8_arrive)
    for x in reads(0): p(x)
    nb = 0
    for g in range(32):
        b = FR[g & 1]
        for m in range(6):
            T, tt = m >> 1, m & 1
            a = ACC + 16 * (2*T + tt)
            c = '0' if g == 0 else vr(a, 16)
            p(f'v_mfma_f32_32x32x16_bf16 {vr(a, 16)}, {vr(b + 4*T, 4)}, {vr(b + 12 + 4*tt, 4)}, {c}')
            for x in extra.get((g, m), []):
                if x == 'BARRIER':
                    p('s_waitcnt lgkmcnt(0)\ns_barrier'); nb += 1
                    tn(f'g_b{nb}')
                elif callable(x): x()
                else: p(x)
    for tt in range(2):
        for T in (0, 2, 1):
            a = ACC + 16 * (2*T + tt)
            p(f'v_mfma_f32_32x32x16_bf16 {vr(a, 16)}, {vr(cA + 4*T, 4)}, {vr(cB + 4*tt, 4)}, {vr(a, 16)}')
    HS = 56
    for tt in range(2):
        for q in range(3):
            if q < 2: ga, ua = ACC + 16*tt + 8*q, ACC + 16*(4 + tt) + 8*q
            else: ga, ua = ACC + 16*(2 + tt), ACC + 16*(2 + tt) + 8
            d = HS + 4 * (3*tt + q)
            for e in range(8): p(f'v_mul_f32 v{ga + e}, v{ga + e}, v{ua + e}')
            for j in range(4): p(f'v_cvt_pk_bf16_f32 v{d + j}, v{ga + 2*j}, v{ga + 2*j + 1}')
            hst = p(f'buffer_store_dwordx4 {vr(d, 4)}, v{vH2 if q == 2 else vH01}, {srd(WS)}, s{70 + tt} offen offset:{1024*q} sc1')
    tn('g_hst')
    lds_spin(vCnt, C_8 - MISC, 4, 1)
    for P in range(17, 27): wd_dma(P)
    p.wait_vm(hst)
    p('v_mov_b32 v1, 1')
    one_lane(lambda: p(f'ds_add_rtn_u32 v2, v{vCnt}, v1 offset:{C_H - MISC}'))
    publish(2, f's_lshl_b32 s79, s{sRB}, 4\ns_add_u32 s79, s79, s{sCB}\ns_lshl_b32 s79, s79, 2\ns_add_u32 s79, s79, {WS_FH}')
    wd_state['grp'] = None
    for x in final_addr(): p(x)
    for x in final_loads(): p(x)
    wd_setup()
    p(f'''s_lshr_b32 s70, s{sRB2}, 1
      s_lshl_b32 s70, s70, 6
      s_add_u32 s70, s70, {WS_FH}
      v_and_b32 v1, 15, v0
      v_lshlrev_b32 v1, 2, v1
      s_mov_b32 s71, 0x000f
      s_cmp_eq_u32 s{sW}, 1
      s_cselect_b32 s71, 0x00f8, s71
      s_cmp_eq_u32 s{sW}, 2
      s_cselect_b32 s71, 0x0780, s71
      s_cmp_eq_u32 s{sW}, 3
      s_cselect_b32 s71, 0x7c00, s71
      s_mov_b32 s79, {cfg.spin}''')
    L = p.newlabel('PH'); Lx = p.newlabel('PHX')
    p.label(L)
    p(f'buffer_load_dword v2, v1, {srd(WS)}, s70 offen sc1')
    p(f'v_cmp_eq_u32 vcc, s{sTAG}, v2')
    p('s_and_b32 s78, vcc_lo, s71\ns_cmp_eq_u32 s78, s71')
    p(f's_cbranch_scc1 {Lx}')
    p(f's_sub_u32 s79, s79, 1\ns_cmp_lg_u32 s79, 0\ns_cbranch_scc1 {L}')
    p.label(Lx)
    tn('g_fh')
    HW = cfg.hwin; HB = 160 - 8 * HW; AF = [40, 48]; AC2 = 192
    p(f'''s_lshl_b32 s70, s{sRB2}, 1
      s_mul_i32 s70, s70, 86
      s_add_u32 s70, s70, s72
      s_lshl_b32 s70, s70, 10
      s_add_u32 s70, s70, {WS_H}
      s_add_u32 s71, s70, {86*1024}''')
    def hload(n, tt):
        r = HB + 8 * (n % HW) + 4 * tt
        p(f'buffer_load_dwordx4 {vr(r, 4)}, v{vHz if n == 21 else vHl}, {srd(WS)}, s{70 + tt} offen offset:{1024*(n & 3)} sc1')
        if (n & 3) == 3: p(f's_add_u32 s{70 + tt}, s{70 + tt}, 4096')
    def aread(n, dt, s):
        P = 2*n + s
        reg, imm, i = piece_loc(P)
        p.wait_vm(wdh[P])
        p(f'ds_read_b64_tr_b16 {vr(AF[n & 1] + 4*dt + 2*s, 2)}, v{vA + 2*reg + dt} offset:{imm + 1024*i}')
    for n in range(HW):
        for tt in range(2): hload(n, tt)
    for dt in range(2):
        for s in range(2): aread(0, dt, s)
    fb = final_base()
    for n in range(22):
        for m in range(4):
            dt, tt = m >> 1, m & 1
            a = AC2 + 16 * m
            c = '0' if n == 0 else vr(a, 16)
            p(f'v_mfma_f32_32x32x16_bf16 {vr(a, 16)}, {vr(AF[n & 1] + 4*dt, 4)}, {vr(HB + 8*(n % HW) + 4*tt, 4)}, {c}')
            if n < 21: aread(n + 1, m >> 1, m & 1)
            if m == 2 and 2*n + 27 < 44: wd_dma(2*n + 27)
            if m == 3 and 2*n + 28 < 44: wd_dma(2*n + 28)
            if m == 3 and n + HW < 22:
                hload(n + HW, 0); hload(n + HW, 1)
            if n >= 10 and fb: p(fb.pop(0))
            if n == 21 and m == 2:
                p('v_mov_b32 v5, 1')
                one_lane(lambda: p(f'ds_add_u32 v{vCnt}, v5 offset:{C_F - MISC}'))
    while fb: p(fb.pop(0))
    p(f's_lshl_b32 s66, s{sW}, 14\nv_add_u32 v6, s66, v{vHl}')
    lds_spin(vCnt, C_F - MISC, 4, 5)
    for m in range(4):
        for Q in range(4):
            p(f'ds_write_b128 v6, {vr(AC2 + 16*m + 4*Q, 4)} offset:{(4*m + Q) * 1024}')
    p('s_waitcnt lgkmcnt(0)')
    final_tail()

    p.label('L_S')
    p.vmq, p.dsq = st0
    vXo, vWo, vIdx, vPar = 10, 14, 20, 32
    LAM, Wv, P1, P2, P4, Q, Q2, E256, cA_, cB_, cC_, T0, T1 = 40, 42, 44, 46, 48, 50, 52, 54, 56, 58, 60, 62, 64
    vSW, vSR, vTA = 70, 71, 72
    AFr, BFr, DK = 80, 112, 144
    p('s_waitcnt lgkmcnt(0)')
    tn('s_karg')
    p(f'''s_sub_u32 s74, s{sW}, 4
      s_lshr_b32 s75, s74, 1
      s_and_b32 s77, s74, 1
      s_lshl_b32 s66, s2, 1
      s_add_u32 s66, s66, s75
      s_lshl_b32 s67, s66, 8
      s_lshl_b32 s68, s77, 7
      s_add_u32 s67, s67, s68
      v_lshl_add_u32 v1, v0, 1, s67
      s_lshl_b32 s66, s66, 1
      v_mov_b32 v2, s66''')
    p(f'global_load_ushort v{vPar + 6}, v2, s[18:19]')
    for i in range(6): p(f'global_load_ushort v{vPar + i}, v1, s[{6 + 2*i}:{7 + 2*i}]')
    srds('S')
    p(f'''s_and_b32 s66, s{sRB}, 1
      s_lshl_b32 s67, s66, 2
      v_and_b32 v1, 7, v0
      v_lshrrev_b32 v2, 4, v0
      v_xor_b32 v1, v1, v2
      v_xor_b32 v1, s67, v1
      v_lshrrev_b32 v2, 3, v0
      s_lshl_b32 s68, s74, 15
      v_lshl_add_u32 v2, v2, 10, s68
      v_lshl_add_u32 v{vXo}, v1, 4, v2
      v_xor_b32 v1, 4, v1
      v_lshl_add_u32 v2, v1, 4, v2
      v_add_u32 v{vXo + 1}, {7168}, v2
      v_add_u32 v{vXo + 2}, {2*7168}, v{vXo}
      v_add_u32 v{vXo + 3}, {3*7168}, v2
      s_lshl_b32 s66, s66, 5
      s_lshl_b32 s67, s74, 4
      s_movk_i32 s68, 2752''')
    for i in range(3):
        p(f'''v_add_u32 v1, {64*i}, v0
          v_mul_u32_u24 v2, 0x5556, v1
          v_lshrrev_b32 v2, 18, v2
          v_mul_u32_u24 v3, 12, v2
          v_sub_u32 v3, v1, v3
          v_add_u32 v2, s67, v2
          v_xor_b32 v2, s66, v2
          v_lshlrev_b32 v3, 4, v3
          v_mad_u32_u24 v2, v2, s68, v3
          v_subrev_u32 v{vWo + i}, {1024*i}, v2''')
    p(f'''s_lshl_b32 s66, s74, 12
      s_mul_i32 s68, s74, 3072
      s_add_u32 s67, s68, {GR}
      s_add_u32 s68, s68, {UR}
      s_lshl_b32 s69, s{sRB}, 17
      s_mul_i32 s70, s{sCB}, 192
      s_lshr_b32 s71, s{sRB}, 1''')
    slabh = {}
    def dma_items(s):
        sl = s % 3
        it = []
        def x(i):
            if i == 0:
                p(f's_add_u32 s78, s71, {s}\ns_and_b32 s78, s78, 7\ns_lshl_b32 s76, s78, 7\ns_add_u32 s76, s76, s69')
                p(f's_mul_i32 s79, s78, {64*2752}\ns_add_u32 m0, s66, {sl*16384}\ns_add_u32 s79, s79, s70')
            p(f'buffer_load_dwordx4 v{vXo + i}, {srd(XD)}, s76 offen offset:{1024*i} lds')
        def w(k, i):
            if i == 0: p(f's_add_u32 m0, s{67 + k}, {sl*12288}')
            slabh[s] = p(f'buffer_load_dwordx4 v{vWo + i}, {srd((WG, WU)[k])}, s79 offen offset:{1024*i} lds')
        for i in range(4): it.append(lambda i=i: x(i))
        for k in range(2):
            for i in range(3): it.append(lambda k=k, i=i: w(k, i))
        return it
    def emit(x):
        if callable(x): x()
        else: p(x)
    def seg(work, dma=(), gap=None):
        gap = cfg.dma_gap if gap is None else gap
        work = list(work); dma = list(dma)
        while work or dma:
            if dma: emit(dma.pop(0))
            for _ in range(gap):
                if work: emit(work.pop(0))
    seg([], dma_items(0))
    tn('s_dma0')
    mktag()
    p('s_barrier')
    tn('s_binit')
    w_idx = []
    A = w_idx.append
    A(f's_lshl_b32 s72, s74, 6'); A(f'v_add_u32 v9, s72, v0')
    A(f'v_lshlrev_b32 v1, 3, v9'); A(f'v_lshlrev_b32 v2, 5, v9'); A(f'v_add_u32 v2, {TT + 16}, v2')
    A(f's_mov_b32 s72, {(TT + 16 - 4*17024) & 0xffffffff}')
    for e in range(0, 11, 2):
        es = [e] if e == 10 else [e, e + 1]
        for k, ee in enumerate(es):
            A(f'v_add_u32 v{3 + k}, {ee - 3}, v1'); A(f'v_max_i32 v{3 + k}, 0x80, v{3 + k}'); A(f'v_cvt_f32_i32 v{3 + k}, v{3 + k}')
        A(f'v_cvt_pk_bf16_f32 v5, v3, v{3 + len(es) - 1}')
        for k, ee in enumerate(es):
            A('v_and_b32 v6, 0xffff, v5' if k == 0 else 'v_lshrrev_b32 v6, 16, v5')
            A('v_lshl_add_u32 v6, v6, 2, s72'); A(f'v_add_u32 v7, {4*(ee - 3)}, v2'); A(f'v_min_i32 v{vIdx + ee}, v6, v7')
    A(f's_mul_i32 s72, s74, 8704'); A(f's_add_u32 s72, s72, {KS}')
    A(f'v_lshl_add_u32 v{vSW}, v0, 2, s72')
    A('v_and_b32 v1, 31, v0'); A('v_lshrrev_b32 v2, 5, v0'); A('v_mul_u32_u24 v3, 272, v1'); A('v_lshl_add_u32 v3, v2, 4, v3')
    A(f'v_add_u32 v{vSR}, s72, v3')
    A(f's_mul_i32 s72, s75, {TCH}'); A(f's_add_u32 s72, s72, {TT + 16}')
    A('v_lshlrev_b32 v3, 3, v1'); A('v_lshl_add_u32 v3, v2, 2, v3'); A(f'v_lshl_add_u32 v{vTA}, v3, 2, s72')
    A('v_sub_u32 v4, 2, v2'); A('v_lshlrev_b32 v3, v4, v1'); A('v_lshl_add_u32 v4, v2, 7, v3'); A('v_add_u32 v4, 0x100, v4')
    A(f'v_lshl_add_u32 v{vTA + 1}, v4, 2, s72')
    A('v_mul_u32_u24 v4, 190, v2'); A('v_add_u32 v4, v4, v3'); A('v_add_u32 v4, 0x102, v4'); A(f'v_lshl_add_u32 v{vTA + 2}, v4, 2, s72')
    A('v_lshl_add_u32 v4, v2, 7, v1'); A('v_add_u32 v4, 0x200, v4'); A(f'v_lshl_add_u32 v{vTA + 3}, v4, 2, s72')

    def cmul(o, d, x, y, t):
        if cfg.pk:
            o.append(f'v_pk_mul_f32 {vr(t, 2)}, {vr(x, 2)}, {vr(y, 2)} op_sel:[0,0] op_sel_hi:[1,0]')
            o.append(f'v_pk_fma_f32 {vr(d, 2)}, {vr(x, 2)}, {vr(y, 2)}, {vr(t, 2)} op_sel:[1,1,0] op_sel_hi:[0,1,1] neg_lo:[1,0,0]')
        else:
            o.append(f'v_mul_f32 v{t}, v{x}, v{y}'); o.append(f'v_mul_f32 v{t + 1}, v{x + 1}, v{y}')
            o.append(f'v_fma_f32 v{t}, -v{x + 1}, v{y + 1}, v{t}'); o.append(f'v_fma_f32 v{d + 1}, v{x}, v{y + 1}, v{t + 1}')
            o.append(f'v_mov_b32 v{d}, v{t}') if d == x else o.__setitem__(-2, f'v_fma_f32 v{d}, -v{x + 1}, v{y + 1}, v{t}')
    cv = [0]
    def put(o, row, x, neg):
        r = 66 + cv[0] % 4; cv[0] += 1
        o.append(f'v_cvt_pk_bf16_f32 v{r}, v{x}, {"-" if neg else ""}v{x + 1}')
        o.append(f'ds_write_b32 v{vSW}, v{r} offset:{272*row}')
    w_set = []
    A = w_set.append
    for i in range(7): A(f'v_lshlrev_b32 v{vPar + i}, 16, v{vPar + i}')
    A(lambda: tn('s_par'))
    ld = vPar + 6
    A(f's_mov_b32 s72, {LOG2E}'); A(f'v_mul_f32 v1, s72, v{ld}'); A(f'v_fma_f32 v2, v{ld}, s72, -v1')
    A(f'v_fmac_f32 v2, {LOG2E_LO}, v{ld}'); A('v_exp_f32 v1, v1'); A(f'v_mul_f32 v2, {LN2}, v2'); A('v_fmac_f32 v1, v1, v2')
    A('v_cvt_pk_bf16_f32 v1, v1, v1'); A('v_and_b32 v1, 0xffff0000, v1')
    for i in range(4): A(f'v_mul_f32 v{vPar + i}, v{vPar + i}, v1')
    A(f'v_mul_f32 v{LAM}, s72, v{vPar}'); A(f'v_mul_f32 v{LAM + 1}, {INV2PI}, v{vPar + 1}')
    for (dst, n) in ((P1, 1), (Q, 8), (E256, 256)):
        if n == 1: A(f'v_exp_f32 v1, v{LAM}'); A(f'v_fract_f32 v2, v{LAM + 1}')
        else:
            lit = {8: 0x41000000, 256: 0x43800000}[n]
            A(f'v_mul_f32 v1, {lit}, v{LAM}'); A(f'v_mul_f32 v2, {lit}, v{LAM + 1}'); A('v_exp_f32 v1, v1'); A('v_fract_f32 v2, v2')
        A('v_cos_f32 v3, v2'); A('v_sin_f32 v4, v2'); A(f'v_mul_f32 v{dst}, v1, v3'); A(f'v_mul_f32 v{dst + 1}, v1, v4')
    cmul(w_set, Wv, vPar + 4, vPar + 2, T0)
    cmul(w_set, P2, P1, P1, T1); cmul(w_set, cB_, Wv, E256, T0); cmul(w_set, P4, P2, P2, T1)
    w_hi = []
    put(w_hi, 0, Wv, True); put(w_hi, 8, cB_, True)
    cmul(w_hi, cA_, Wv, P1, T0); cmul(w_hi, cC_, cB_, P2, T1); put(w_hi, 1, cA_, True); put(w_hi, 9, cC_, True)
    for i in (2, 3):
        cmul(w_hi, cA_, cA_, P1, T0); cmul(w_hi, cC_, cC_, P2, T1); put(w_hi, i, cA_, True); put(w_hi, 8 + i, cC_, True)
    cmul(w_hi, cA_, cA_, P1, T0); cmul(w_hi, cB_, cB_, E256, T1); put(w_hi, 4, cA_, True); put(w_hi, 12, cB_, True)
    cmul(w_hi, cA_, cA_, P1, T0); cmul(w_hi, cC_, cB_, P4, T1); put(w_hi, 5, cA_, True); put(w_hi, 13, cC_, True)
    cmul(w_hi, cA_, cA_, P1, T0); cmul(w_hi, cB_, cB_, E256, T1); put(w_hi, 6, cA_, True); put(w_hi, 14, cB_, True)
    cmul(w_hi, cA_, cA_, P1, T0); cmul(w_hi, cC_, cB_, P4, T1); put(w_hi, 7, cA_, True); put(w_hi, 15, cC_, True)
    cmul(w_hi, Q2, Q, Q, T0)
    for i in range(5):
        cmul(w_hi, cB_, cB_, E256, T1); put(w_hi, 16 + i, cB_, True)
    w_lo = []
    for ks in range(8): w_lo.append(f'ds_read_b128 {vr(AFr + 4*ks, 4)}, v{vSR} offset:{32*ks}')
    w_lo.append('v_mov_b32 v1, 0x3f80'); w_lo.append(f'ds_write_b32 v{vSW}, v1')
    put(w_lo, 1, Q, False); put(w_lo, 2, Q2, False)
    cmul(w_lo, cA_, Q, Q2, T0); cmul(w_lo, cB_, Q2, Q2, T1); put(w_lo, 3, cA_, False); put(w_lo, 4, cB_, False)
    for j in range(5, 32, 2):
        cmul(w_lo, cA_, cA_, Q2, T0)
        if j < 31: cmul(w_lo, cB_, cB_, Q2, T1)
        put(w_lo, j, cA_, False)
        if j < 31: put(w_lo, j + 1, cB_, False)
    w_mm = []
    for ks in range(8): w_mm.append(f'ds_read_b128 {vr(BFr + 4*ks, 4)}, v{vSR} offset:{32*ks}')
    for ks in range(8):
        w_mm.append(f'v_mfma_f32_32x32x16_bf16 {vr(DK, 16)}, {vr(AFr + 4*ks, 4)}, {vr(BFr + 4*ks, 4)}, {"0" if ks == 0 else vr(DK, 16)}')
    for v in range(12):
        areg, off = ((vTA, 4*v) if v < 4 else (vTA + 1 + ((v - 4) >> 1), 4*(v & 1)) if v < 8 else (vTA + 3, 128*(v - 8)))
        if v == 9: w_mm.append('s_mov_b32 exec_hi, 0')
        x = f'ds_add_f32 v{areg}, v{DK + v} offset:{off}'
        if v >= 9: w_mm[-1] += '\n' + x
        else: w_mm.append(x)
    w_mm[-1] += '\ns_mov_b64 exec, -1'
    w_exp = []
    A = w_exp.append
    for c in range(2):
        for e in range(11): A(f'ds_read_b32 v{80 + 12*c + e}, v{vIdx + e} offset:{TCH*c}')
    A(f'v_lshlrev_b32 v1, 4, v9'); A(f'v_add_u32 v1, {KS + 32}, v1')
    A('v_lshrrev_b32 v2, 1, v0'); A(f'v_mul_u32_u24 v2, {CST}, v2'); A('v_and_b32 v3, 1, v0'); A('v_lshl_add_u32 v2, v3, 4, v2')
    A(f'v_add_u32 v2, {KS}, v2'); A('v_mov_b64 v[4:5], 0'); A('v_mov_b64 v[6:7], 0')
    A('s_mov_b64 exec, 0xffff\nds_write_b128 v2, v[4:7]\ns_mov_b64 exec, -1')
    for c in range(2):
        for g in range(4):
            d = 104 + 16*c + 4*g
            for j in range(4): A(f'v_cvt_pk_bf16_f32 v{d + j}, v{80 + 12*c + 3 - g + 2*j}, v{80 + 12*c + 4 - g + 2*j}')
            A(f'ds_write_b128 v1, {vr(d, 4)} offset:{CCH*c + CST*g}')
    def bar(s, i=None):
        tn(f's_w{s}')
        p.wait_vm(slabh[s]); tn(f's_l{s}'); p('s_waitcnt lgkmcnt(0)\ns_barrier')
        tn(f's_b{s}')
    seg(w_idx, dma_items(1))
    if cfg.tset == 3:
        tn('s_idx'); p('s_waitcnt vmcnt(20)'); tn('s_parx'); p('s_waitcnt vmcnt(10)'); tn('s_l0x'); p('s_waitcnt vmcnt(0)'); tn('s_l1x')
    seg(w_set + w_hi)
    tn('s_hi')
    bar(0, 2)
    nlo = len(w_lo) * 3 // 4
    seg(w_lo[:nlo], dma_items(2))
    bar(1)
    seg(w_lo[nlo:] + w_mm, dma_items(3))
    bar(2, 3)
    seg(w_exp, dma_items(4))
    bar(3)
    vCA, vUB, vUW, vXB, vYS, vYL, vYW, vMisc = 1 + 186, 188, 189, 190, 191, 224, 225, 226
    w_adr = final_addr()
    keep34 = ['v_mov_b32 v227, v3', 'v_mov_b32 v228, v4']
    w_adr = w_adr + keep34
    A = w_adr.append
    A('v_lshrrev_b32 v1, 4, v0'); A('v_and_b32 v2, 15, v0'); A('v_bfe_u32 v3, v0, 2, 2'); A('v_and_b32 v4, 3, v0')
    A(f'v_mul_u32_u24 v5, {CST}, v1'); A('v_sub_u32 v6, v4, v3'); A('v_lshl_add_u32 v5, v6, 3, v5')
    A(f's_mul_i32 s72, s75, {CCH}'); A(f's_add_u32 s72, s72, {KS}'); A('s_lshl_b32 s73, s77, 8'); A('s_add_u32 s73, s73, s72'); A('s_add_u32 s73, s73, 32')
    A(f'v_add_u32 v{vCA}, s73, v5')
    A(f'v_lshl_add_u32 v{vXB}, v0, 4, s72')
    A('v_mul_u32_u24 v5, 1152, v1'); A('v_lshl_add_u32 v5, v2, 3, v5')
    A('s_mul_i32 s72, s75, 4608'); A('s_lshl_b32 s73, s77, 6'); A('s_sub_u32 s72, s72, s73'); A(f's_add_u32 s72, s72, {UP + 120 - 48}')
    A(f'v_add_u32 v{vUB}, s72, v5')
    A(f'v_lshlrev_b32 v5, 2, v9'); A(f'v_add_u32 v{vUW}, {UP + 128}, v5')
    A('v_and_b32 v5, 1, v1'); A('v_lshlrev_b32 v5, 9, v5'); A('v_lshl_add_u32 v5, v2, 5, v5'); A('v_lshrrev_b32 v6, 1, v1')
    A(f'v_lshl_add_u32 v{vYS}, v6, 4, v5')
    A('v_lshrrev_b32 v5, 3, v0'); A('v_and_b32 v6, 7, v0'); A('v_lshlrev_b32 v6, 4, v6'); A(f'v_lshl_add_u32 v{vYL}, v5, 12, v6')
    A('v_mul_u32_u24 v5, 160, v5'); A('v_add_u32 v5, v5, v6')
    A(f's_mul_i32 s72, s75, {CCH}'); A('s_mul_i32 s73, s77, 2560'); A('s_add_u32 s72, s72, s73'); A(f's_add_u32 s72, s72, {KS + 8192}')
    A(f'v_add_u32 v{vYW}, s72, v5'); A(f'v_mov_b32 v{vMisc}, {MISC}')
    d5 = dma_items(5)
    seg([], d5)
    p(f'v_lshlrev_b32 v8, 4, v0\ns_movk_i32 s73, {WS_FA}')
    p(f'buffer_load_dwordx4 v[80:83], v8, {srd(WS)}, s73 offen sc1')
    seg(w_adr)
    p(f'''s_lshl_b32 s66, s74, 12
      s_mul_i32 s68, s74, 3072
      s_add_u32 s67, s68, {GR}
      s_add_u32 s68, s68, {UR}
      s_lshl_b32 s69, s{sRB}, 17''')
    bar(4)
    seg([], dma_items(6))
    bar(5, 4)
    def fa_check():
        for j in range(4): p(f'v_xor_b32 v{80 + j}, s{sTAG}, v{80 + j}')
        p('v_or3_b32 v80, v80, v81, v82\nv_or_b32 v80, v80, v83\nv_cmp_ne_u32 vcc, 0, v80\ns_cmp_eq_u64 vcc, 0')
    Lx = p.newlabel('FAX'); L = p.newlabel('FA')
    fa_check()
    p(f's_cbranch_scc1 {Lx}')
    p.cond_begin()
    p(f's_mov_b32 s79, {cfg.spin}\ns_movk_i32 s73, {WS_FA}')
    p.label(L)
    p(f'buffer_load_dwordx4 v[80:83], v8, {srd(WS)}, s73 offen sc1')
    fa_check()
    p(f's_cbranch_scc1 {Lx}')
    p(f's_sub_u32 s79, s79, 1\ns_cmp_lg_u32 s79, 0\ns_cbranch_scc1 {L}')
    p.cond_end()
    p.label(Lx)
    p(f'''s_lshl_b32 s72, s2, 13
      s_add_u32 s72, s72, {WS_XNT}
      v_lshlrev_b32 v1, 5, v9''')
    p(f'buffer_load_dwordx4 v[80:83], v1, {srd(WS)}, s72 offen sc1')
    p(f'buffer_load_dwordx4 v[84:87], v1, {srd(WS)}, s72 offen offset:16 sc1')
    p(f'''s_mul_i32 s72, s{sCB}, 12288
      s_mul_i32 s73, s74, 192
      s_add_u32 s72, s72, s73
      s_add_u32 s72, s72, {WS_CSP}
      v_lshlrev_b32 v2, 2, v0
      s_bfm_b64 exec, 48, 0''')
    for r in range(16):
        p(f'buffer_load_dword v{88 + r}, v2, {srd(WS)}, s72 offen offset:{768*(r % 5)} sc1')
        if r % 5 == 4: p('s_add_u32 s72, s72, 3840')
    p(f'''s_lshl_b32 s72, s{sRB}, 10
      s_lshl_b32 s73, s74, 8
      s_add_u32 s72, s72, s73
      s_add_u32 s72, s72, {WS_ST}
      v_lshlrev_b32 v3, 3, v0
      s_mov_b32 exec_hi, 0''')
    p(f'buffer_load_dword v104, v3, {srd(WS)}, s72 offen sc1')
    p('s_mov_b64 exec, -1')
    L = p.newlabel('EP')
    p(f's_or_b32 s72, s2, s74\ns_cmp_eq_u32 s72, 0\ns_cbranch_scc0 {L}')
    p.cond_begin()
    p(f'v_mov_b32 v4, s{sTAG}\nv_mov_b32 v5, {WS_E}')
    one_lane(lambda: p(f'buffer_store_dword v4, v5, {srd(WS)}, 0 offen sc1'))
    p.cond_end()
    p.label(L)
    seg([], dma_items(7))
    p(f's_mov_b32 s76, {WS_ST}\nv_mov_b32 v3, v227\nv_mov_b32 v4, v228')
    for x in final_loads(): p(x)
    bar(6)
    for c in range(2):
        for g in range(4): p(f'ds_write_b32 v{vUW}, v{80 + 4*c + g} offset:{4608*c + 1152*g}')
    p(f'''v_lshrrev_b32 v1, 3, v0
      v_mul_u32_u24 v1, 1152, v1
      v_and_b32 v5, 7, v0
      v_lshl_add_u32 v1, v5, 4, v1
      v_add_u32 v1, {UP}, v1
      v_mov_b64 v[4:5], 0
      v_mov_b64 v[6:7], 0
      ds_write_b128 v1, v[4:7]''')
    for st in (8, 4, 2, 1):
        for r in range(st): p(f'v_add_f32 v{88 + r}, v{88 + r}, v{88 + st + r}')
    p(f'''v_cvt_pk_bf16_f32 v1, v88, v88
      v_and_b32 v1, 0xffff0000, v1
      v_sub_f32 v4, v88, v1
      v_cvt_pk_bf16_f32 v1, v1, v4
      s_mul_i32 s72, s74, 192
      s_add_u32 s72, s72, {CSB}
      v_add_u32 v2, s72, v2
      v_cvt_pk_bf16_f32 v4, -v104, -v104
      v_and_b32 v5, 0xffff0000, v4
      v_sub_f32 v5, -v104, v5
      v_cvt_pk_bf16_f32 v5, v5, v5
      s_lshl_b32 s72, s74, 8
      s_add_u32 s72, s72, {MB}
      v_lshl_add_u32 v3, v0, 3, s72
      s_bfm_b64 exec, 48, 0
      ds_write_b32 v2, v1
      s_mov_b32 exec_hi, 0
      ds_write_b64 v3, v[4:5]
      s_mov_b64 exec, -1''')
    bar(7, 5)
    CAf, CBf, CD = [32, 64], [96, 128], 192
    def cfrags(rr):
        o = []; st_ = rr & 1
        for k in range(8):
            o.append(f'ds_read2_b64 {vr(CBf[st_] + 4*k, 4)}, v{vUB} offset0:{2*(8*k - rr + 3)} offset1:{2*(8*k - rr + 3) + 1}')
            for s in range(2):
                o.append(f'ds_read_b64_tr_b16 {vr(CAf[st_] + 4*k + 2*s, 2)}, v{vCA} offset:{64*(rr + 8*k) + 32*(1 - s)}')
        return o
    for x in cfrags(0): p(x)
    fb = final_base()
    for rr in range(4):
        nxt = cfrags(rr + 1) if rr < 3 else []
        st_ = rr & 1
        pairs = sorted(((a, b) for a in range(8) for b in range(8 - a)), key=lambda ab: (max(ab), ab[0]))
        seen = set()
        for k, (a, b) in enumerate(pairs):
            c = a + b; d = CD + 4*c
            cc = '0' if (rr == 0 and c not in seen) else vr(d, 4)
            seen.add(c)
            p(f'v_mfma_f32_16x16x32_bf16 {vr(d, 4)}, {vr(CAf[st_] + 4*a, 4)}, {vr(CBf[st_] + 4*b, 4)}, {cc}')
            if nxt and k >= 2: p(nxt.pop(0))
            if rr == 3:
                if k == 28:
                    p(f's_lshl_b32 s72, s74, 2\nv_add_u32 v8, s72, v{vMisc}\nv_mov_b32 v5, 1')
                    one_lane(lambda: p(f'ds_write_b32 v8, v5 offset:{F1 - MISC}'))
                elif fb: p(fb.pop(0))
        assert not nxt
    while fb: p(fb.pop(0))
    tn('s_conv')
    p('v_xor_b32 v7, 4, v8')
    lds_spin(7, F1 - MISC, 1, 6)
    p(f'''s_lshl_b32 s72, s2, 1
      s_add_u32 s72, s72, s75
      s_lshl_b32 s72, s72, 12
      s_add_u32 s72, s72, {WS_YT}''')
    Lb = p.newlabel('XB'); Le = p.newlabel('XE')
    p(f's_cmp_eq_u32 s77, 0\ns_cbranch_scc0 {Lb}')
    for hf in range(2):
        if hf == 1: p.label(Lb)
        p.cond_begin()
        snd, kp = (4, 0) if hf == 0 else (0, 4)
        for k in range(4): p(f'ds_write_b128 v{vXB}, {vr(CD + 4*(snd + k), 4)} offset:{4096*hf + 1024*k}')
        one_lane(lambda: p(f'ds_write_b32 v8, v5 offset:{F2 - MISC}'))
        lds_spin(7, F2 - MISC, 1, 6)
        for k in range(4): p(f'ds_read_b128 {vr(32 + 4*k, 4)}, v{vXB} offset:{4096*(1 - hf) + 1024*k}')
        for k in range(4):
            for j in range(4): p(f'v_add_f32 v{32 + 4*k + j}, v{32 + 4*k + j}, v{CD + 4*(kp + k) + j}')
            for j in range(2): p(f'v_cvt_pk_bf16_f32 v{48 + 2*k + j}, v{32 + 4*k + 2*j}, v{32 + 4*k + 2*j + 1}')
            if k & 1:
                r = 48 + 2*(k - 1)
                p(f'v_permlane16_swap_b32 v{r}, v{r + 2}\nv_permlane16_swap_b32 v{r + 1}, v{r + 3}')
                p(f'buffer_store_dwordx4 {vr(r, 4)}, v{vYS}, {srd(WS)}, s72 offen offset:{512*(kp + k - 1)} sc1')
        if hf == 0: p(f's_branch {Le}')
        p.cond_end()
    p.label(Le)
    p('s_waitcnt vmcnt(0) lgkmcnt(0)')
    p('v_mov_b32 v1, 1')
    one_lane(lambda: p(f'ds_add_rtn_u32 v2, v{vMisc}, v1 offset:{C_Y - MISC}'))
    publish(2, f's_lshl_b32 s79, s2, 2\ns_add_u32 s79, s79, {WS_FY}')
    p(f'''s_lshl_b32 s72, s{sCB2}, 7
      s_lshl_b32 s73, s74, 5
      s_add_u32 s72, s72, s73
      s_add_u32 s72, s72, {WS_FY}
      v_and_b32 v1, 7, v0
      v_lshlrev_b32 v1, 2, v1
      s_mov_b32 s79, {cfg.spin}''')
    L = p.newlabel('PY'); Lx = p.newlabel('PYX')
    p.label(L)
    p(f'buffer_load_dword v2, v1, {srd(WS)}, s72 offen sc1')
    p(f'v_cmp_ne_u32 vcc, s{sTAG}, v2\ns_cmp_eq_u64 vcc, 0')
    p(f's_cbranch_scc1 {Lx}')
    p(f's_sub_u32 s79, s79, 1\ns_cmp_lg_u32 s79, 0\ns_cbranch_scc1 {L}')
    p.label(Lx)
    tn('s_fy')
    p(f'''s_lshl_b32 s72, s{sCB2}, 18
      s_lshl_b32 s73, s74, 16
      s_add_u32 s72, s72, s73
      s_lshl_b32 s73, s{sRB2}, 7
      s_add_u32 s72, s72, s73
      s_add_u32 s72, s72, {WS_YT}
      s_add_u32 s73, s72, 32768''')
    for k in range(2): p(f'buffer_load_dwordx4 {vr(32 + 4*k, 4)}, v{vYL}, {srd(WS)}, s{72 + k} offen sc1')
    for k in range(2): p(f'ds_write_b128 v{vYW}, {vr(32 + 4*k, 4)} offset:{1280*k}')
    p('s_waitcnt lgkmcnt(0)')
    final_tail()
    p.label('L_END')
    p('s_endpgm')
    return p.text()

HEADER = open('cdna_kernels/' + KNAME + '.s.ref').read().split('; Override launch')[0] if True else ''

def build(cfg):
    k = dict(name=KNAME + '_kernel', grid=(256, 1, 1), block=(512, 1, 1), lds=LDS_SIZE, body=gen(cfg), vgpr=256, sgpr=102, accum=256)
    return build_file([k], header_comment=HEADER)

if __name__ == '__main__':
    cfg = Cfg()
    out = sys.argv[1]
    for a in sys.argv[2:]:
        k, v = a.split('='); setattr(cfg, k, type(getattr(Cfg, k))(int(v)))
    open(out, 'w').write(build(cfg))
```

```python
import sys, copy
from asmlib import build_file, KNAME
from asm2 import Prog

WS_E = 0; WS_FA = 1024; WS_ST = 4096; WS_FH = 0xA00000; WS_FY = 0xA20000; WS_CSP = 32768
WS_XNT = 0x40000; WS_YT = 0x240000; WS_H = 0x440000; WS_DBG = 0x1000000
WS_SIZE = 0x2000000
BIG = 0x40000000
XR = 0; GR = 49152; UR = 86048; KS = 122944; TT = 157760; TCH = 2704; MISC = 163168; LDS_SIZE = 163840
LNS = 32768; UP = 73728; CCH = 16640; CST = 4160
CSB = TT; MB = TT + 1024
C_L, C_A, C_H, C_8, C_F, C_Y, F1, F2 = [MISC + 4 * i for i in (0, 1, 2, 3, 4, 5, 8, 12)]
sW = 3
X, WG, WU, WD, OUT, WS = 36, 40, 44, 48, 52, 56
sTAG, sRB, sCB, sTB, sRB2, sCB2, sROT = 60, 62, 63, 64, 65, 100, 101
XD = 36
def srd(b): return f's[{b}:{b + 3}]'
def vr(a, n): return f'v[{a}:{a + n - 1}]'
LOG2E = 0x3FB8AA3B; LOG2E_LO = 0x32A57060; LN2 = 0x3F317218; INV2PI = 0x3E22F983

class Cfg:
    ts = False
    pk = True
    hwin = 6
    npre = 6
    poll1 = 10
    poll2 = 4
    fa_g = 9
    parfirst = 1
    r2c = 44; r2j = 88; r2x = 11
    autogap = 1
    rotc = 0
    gap1 = 28
    nb0 = 2
    prio = 0
    spoll = 0
    fsh = 7
    dma_gap = 8
    spin = 1 << 16
    tsa = False
    noxnt = 0
    tset = 0
    probe = 0
    probebuf = 22

TSETS = [
  (['g_ln', 'g_b0', 'g_b4', 'g_b7', 'g_hst', 'g_fh'], ['s_b0', 's_b2', 's_b5', 's_b7', 's_conv', 's_fy']),
  (['g_karg', 'g_adr', 'g_binit', 'g_ln', 'g_cl', 'g_b0'], ['s_karg', 's_dma0', 's_binit', 's_par', 's_hi', 's_l0']),
  (['g_b0', 'g_b1', 'g_b2', 'g_b3', 'g_b5', 'g_b6'], ['s_w1', 's_l1', 's_w2', 's_l2', 's_w3', 's_l3']),
  (['g_b7', 'g_hst', 'g_ack', 'g_wd', 'g_fh', 'g_g2'], ['s_b7', 's_conv', 's_yst', 's_yack', 's_fy', 's_b6']),
  (['g_b3', 'g_b4', 'g_b5', 'g_b6', 'g_b7', 'g_h0'], ['s_w4', 's_b4', 's_w5', 's_b5', 's_fa', 's_w6']),
  (['g_cl', 'g_b0', 'g_b1', 'g_b2', 'g_b3', 'g_b4'], ['s_b0', 's_d2_0', 's_d2_2', 's_d2_5', 's_d2_9', 's_w1']),
  (['g_cl', 'g_b0', 'g_b1', 'g_b2', 'g_b3', 'g_b4'], ['s_binit', 's_d1_0', 's_d1_3', 's_d1_6', 's_d1_9', 's_hi']),
  (['g_b7', 'g_m31', 'g_corr', 'g_hst', 'g_c8', 'g_ack'], ['s_conv', 's_f1', 's_xw', 's_f2', 's_y0', 's_yst']),
]
def gen(cfg):
    p = Prog()
    tsn = {'n': 0}
    def ts(i, real=False):
        if cfg.ts: p(f'{"s_memrealtime" if real else "s_memtime"} s[{80 + 2 * i}:{81 + 2 * i}]')
    def tn(name):
        for l in TSETS[cfg.tset]:
            if name in l: ts(2 + l.index(name))
    def one_lane(f):
        p('s_mov_b64 exec, 1'); r = f(); p('s_mov_b64 exec, -1'); return r
    def lds_spin(addr_v, off, target, tmpv, cmpop='ge'):
        L = p.newlabel('SPIN'); Lx = p.newlabel('SPINX')
        p(f's_mov_b32 s79, {cfg.spin * 8}')
        p.label(L)
        p(f'ds_read_b32 v{tmpv}, v{addr_v} offset:{off}')
        p(f'v_readfirstlane_b32 s78, v{tmpv}')
        p(f's_cmp_ge_u32 s78, {target}')
        p(f's_cbranch_scc1 {Lx}')
        p('s_sub_u32 s79, s79, 1')
        p('s_cmp_lg_u32 s79, 0')
        p(f's_cbranch_scc1 {L}')
        p.label(Lx)

    p('s_cmp_ge_u32 s2, 256\ns_cbranch_scc1 L_END')
    p('s_load_dwordx16 s[4:19], s[0:1], 0\ns_load_dwordx16 s[20:35], s[0:1], 64')
    ts(0, True); ts(1)
    p('v_lshrrev_b32 v1, 6, v0')
    p('v_lshlrev_b32 v2, 4, v0')
    p(f'v_readfirstlane_b32 s{sW}, v1')
    p(f'v_cmp_gt_u32 vcc, {(LDS_SIZE - TT) // 16}, v0')
    p(f'v_add_u32 v2, {TT}, v2')
    p('v_and_b32 v0, 63, v0')
    p('v_mov_b64 v[4:5], 0\nv_mov_b64 v[6:7], 0')
    p('s_mov_b64 exec, vcc')
    p('ds_write_b128 v2, v[4:7]')
    p('s_mov_b64 exec, -1')
    p(f'''s_and_b32 s66, s2, 7
      s_lshr_b32 s67, s2, 3
      s_and_b32 s68, s66, 3
      s_lshr_b32 s69, s66, 2
      s_and_b32 s70, s67, 3
      s_lshl_b32 s71, s68, 2
      s_add_u32 s{sRB}, s71, s70
      s_lshl_b32 s{sRB2}, s68, 3
      s_lshl_b32 s72, s69, 2
      s_add_u32 s{sRB2}, s{sRB2}, s72
      s_add_u32 s{sRB2}, s{sRB2}, s70
      s_lshr_b32 s{sCB2}, s67, 2
      s_mul_i32 s{sCB}, s69, 7
      s_add_u32 s{sCB}, s{sCB}, s{sCB2}
      s_and_b32 s70, s67, 1
      s_add_u32 s71, s71, s70
      s_lshl_b32 s69, s69, 1
      s_add_u32 s71, s71, s69
      s_bfe_u32 s70, s67, 0x10001
      s_add_u32 s70, s70, 14
      s_cmp_lt_u32 s67, 28
      s_cselect_b32 s{sRB}, s{sRB}, s71
      s_cselect_b32 s{sCB}, s{sCB}, s70
      s_lshl_b32 s{sTB}, s{sRB}, 4
      s_add_u32 s{sTB}, s{sTB}, s{sCB}''')
    p(f's_cmp_ge_u32 s{sW}, 4')
    p('s_cbranch_scc1 L_S')
    st0 = (copy.deepcopy(p.vmq), copy.deepcopy(p.dsq))

    def srds(role):
        p(f's_load_dword s{sTAG}, s[34:35], {WS_E}')
        p(f's_cmp_eq_u32 s{sCB}, 15')
        if role == 'S':
            p(f'''s_mov_b32 s{XD}, s4\ns_mov_b32 s{XD+1}, s5\ns_cselect_b32 s{XD+2}, 0, 0x200000\ns_mov_b32 s{XD+3}, 0x20000
              s_mov_b32 s{WG}, s24\ns_mov_b32 s{WG+1}, s25\ns_cselect_b32 s{WG+2}, 0, {512*2752}\ns_mov_b32 s{WG+3}, 0x20000
              s_mov_b32 s{WU}, s26\ns_mov_b32 s{WU+1}, s27\ns_mov_b32 s{WU+2}, s{WG+2}\ns_mov_b32 s{WU+3}, 0x20000''')
        else:
            p(f's_mov_b32 s{WD}, s28\ns_mov_b32 s{WD+1}, s29\ns_mov_b32 s{WD+2}, {1376*1024}\ns_mov_b32 s{WD+3}, 0x20000')
        p(f'''s_mov_b32 s{WS}, s34\ns_mov_b32 s{WS+1}, s35\ns_mov_b32 s{WS+2}, {WS_SIZE}\ns_mov_b32 s{WS+3}, 0x20000
          s_mov_b32 s{OUT}, s30\ns_mov_b32 s{OUT+1}, s31\ns_mov_b32 s{OUT+2}, 0x200000\ns_mov_b32 s{OUT+3}, 0x20000''')
    def mktag():
        p('s_waitcnt lgkmcnt(0)')
        p(f's_mul_i32 s{sTAG}, s{sTAG}, 0x9E3779B1\ns_add_u32 s{sTAG}, s{sTAG}, 0x7F4A7C15\ns_mov_b32 s{sTAG + 1}, s{sTAG}')
    def spoll(base, n, soff):
        L = p.newlabel('SP'); Lr = p.newlabel('SPR'); Lx = p.newlabel('SPX')
        p(f's_mov_b32 s79, {cfg.spin}')
        p.label(L)
        p(f's_load_dwordx{n} s[{base}:{base + n - 1}], s[34:35], s{soff} glc')
        p('s_waitcnt lgkmcnt(0)')
        for i in range(0, n, 2):
            p(f's_cmp_eq_u64 s[{base + i}:{base + i + 1}], s[{sTAG}:{sTAG + 1}]')
            p(f's_cbranch_scc0 {Lr}' if i < n - 2 else f's_cbranch_scc1 {Lx}')
        p.label(Lr)
        p(f's_sub_u32 s79, s79, 1\ns_cmp_lg_u32 s79, 0\ns_cbranch_scc1 {L}')
        p.label(Lx)
    def vpoll(n, soff):
        L = p.newlabel('VP'); Lx = p.newlabel('VPX')
        p(f'v_and_b32 v1, {n - 1}, v0\nv_lshlrev_b32 v1, {cfg.fsh}, v1\ns_mov_b32 s79, {cfg.spin}')
        p.label(L)
        p(f'buffer_load_dword v2, v1, {srd(WS)}, s{soff} offen sc1')
        p(f'v_cmp_ne_u32 vcc, s{sTAG}, v2\ns_cmp_eq_u64 vcc, 0')
        p(f's_cbranch_scc1 {Lx}')
        p(f's_sub_u32 s79, s79, 1\ns_cmp_lg_u32 s79, 0\ns_cbranch_scc1 {L}')
        p.label(Lx)
    def flag_store(soff):
        p(f'v_mov_b32 v1, s{sTAG}\nv_mov_b32 v2, 0')
        one_lane(lambda: p(f'buffer_store_dword v1, v2, {srd(WS)}, s{soff} offen sc1'))

    class F: pass
    FG = F(); FG.r = (80, 84, 88, 90, 96, 112, 104, 105, 106)
    FS = F(); FS.r = (160, 164, 168, 170, 176, 80, 184, 185, 186)
    def final_addr(F_):
        fX, fD, fST, fY, fB, fP, fOFF, fPA, fYA = F_.r
        return f'''v_and_b32 v1, 15, v0
          v_lshrrev_b32 v2, 4, v0
          s_and_b32 s12, s{sW}, 3
          s_lshr_b32 s13, s{sW}, 2
          s_lshl_b32 s14, s{sRB2}, 6
          s_lshl_b32 s15, s12, 4
          s_add_u32 s14, s14, s15
          v_add_u32 v3, s14, v1
          s_lshl_b32 s14, s{sCB2}, 7
          s_lshl_b32 s15, s13, 6
          s_add_u32 s14, s14, s15
          v_lshl_add_u32 v4, v2, 4, s14
          v_lshl_add_u32 v{fOFF}, v3, 10, v4
          v_lshlrev_b32 v3, 3, v3
          s_lshl_b32 s14, s13, 13
          s_lshr_b32 s15, s12, 1
          s_lshl_b32 s15, s15, 12
          s_add_u32 s14, s14, s15
          s_and_b32 s15, s12, 1
          s_lshl_b32 s15, s15, 8
          s_add_u32 s14, s14, s15
          v_lshlrev_b32 v5, 10, v2
          v_lshl_add_u32 v5, v1, 4, v5
          v_add_u32 v{fPA}, s14, v5
          s_mul_i32 s14, s13, {CCH}
          s_lshl_b32 s15, s12, 5
          s_add_u32 s14, s14, s15
          s_add_u32 s14, s14, {KS + 8192}
          v_lshrrev_b32 v5, 2, v1
          v_lshl_add_u32 v5, v2, 3, v5
          v_mul_u32_u24 v5, 160, v5
          v_and_b32 v6, 3, v0
          v_lshl_add_u32 v5, v6, 3, v5
          v_add_u32 v{fYA}, s14, v5'''.split('\n')
    def final_loads(F_):
        fX, fD, fST, fY, fB, fP, fOFF, fPA, fYA = F_.r
        return [f'global_load_dwordx4 {vr(fX, 4)}, v{fOFF}, s[4:5]',
                f'global_load_dwordx4 {vr(fD, 4)}, v4, s[20:21]',
                f's_movk_i32 s12, {WS_ST}', f'buffer_load_dwordx2 {vr(fST, 2)}, v3, {srd(WS)}, s12 offen sc1']
    def final_base(F_):
        fX, fD, fST, fY, fB, fP, fOFF, fPA, fYA = F_.r
        o = []
        for j in range(4):
            o += [f'v_lshlrev_b32 v{fB + 2*j}, 16, v{fX + j}', f'v_and_b32 v{fB + 2*j + 1}, 0xffff0000, v{fX + j}',
                  f'v_lshlrev_b32 v1, 16, v{fD + j}', f'v_and_b32 v2, 0xffff0000, v{fD + j}',
                  f'v_mul_f32 v1, v1, v{fST + 1}', f'v_mul_f32 v2, v2, v{fST + 1}',
                  f'v_sub_f32 v3, v{fB + 2*j}, v{fST}', f'v_sub_f32 v4, v{fB + 2*j + 1}, v{fST}',
                  f'v_fmac_f32 v{fB + 2*j}, v3, v1', f'v_fmac_f32 v{fB + 2*j + 1}, v4, v2']
        o += [f'v_mul_f32 v{fST + 1}, v{fST + 1}, v{fST + 1}']
        return o
    def final_tail(F_):
        fX, fD, fST, fY, fB, fP, fOFF, fPA, fYA = F_.r
        p('s_barrier')
        ts(8)
        p(f'ds_read_b64_tr_b16 {vr(fY, 2)}, v{fYA}\nds_read_b64_tr_b16 {vr(fY + 2, 2)}, v{fYA} offset:640')
        for w in range(4):
            for hh in range(2):
                p(f'ds_read_b128 {vr(fP + 8*w + 4*hh, 4)}, v{fPA} offset:{16384*w + 512*hh}')
        for j in range(4):
            p(f'v_lshlrev_b32 v1, 16, v{fY + j}\nv_and_b32 v2, 0xffff0000, v{fY + j}')
            p(f'v_add_f32 v{fB + 2*j}, v{fB + 2*j}, v1\nv_add_f32 v{fB + 2*j + 1}, v{fB + 2*j + 1}, v2')
        for e in range(8): p(f'v_add_f32 v{fP + e}, v{fP + e}, v{fP + 8 + e}')
        for e in range(8): p(f'v_add_f32 v{fP + 16 + e}, v{fP + 16 + e}, v{fP + 24 + e}')
        for e in range(8): p(f'v_add_f32 v{fP + e}, v{fP + e}, v{fP + 16 + e}')
        for e in range(8): p(f'v_fmac_f32 v{fB + e}, v{fP + e}, v{fST + 1}')
        for j in range(4): p(f'v_cvt_pk_bf16_f32 v{fX + j}, v{fB + 2*j}, v{fB + 2*j + 1}')
        p(f'buffer_store_dwordx4 {vr(fX, 4)}, v{fOFF}, {srd(OUT)}, 0 offen')
        if cfg.ts:
            p('s_waitcnt vmcnt(0)')
            ts(9)
            p('s_waitcnt lgkmcnt(0)')
            for i in range(10): p(f'v_writelane_b32 v1, s{80 + 2*i}, {i}')
            p(f's_lshl_b32 s66, s2, 3\ns_add_u32 s66, s66, s{sW}\ns_lshl_b32 s66, s66, 6\ns_add_u32 s66, s66, {WS_DBG}')
            p('v_lshlrev_b32 v2, 2, v0')
            p('s_mov_b64 exec, 0x3ff')
            p(f'buffer_store_dword v1, v2, {srd(WS)}, s66 offen')
        p('s_endpgm')

    vXa, vWg, vWu, vW1, vCS1, vCS2, vH01, vH2, vWd, vA, vHl, vHz, vCnt = 16, 20, 21, 22, 23, 24, 25, 26, 27, 31, 37, 38, 39
    FR = [120, 140]
    ACC = 160
    cA, cB, cs = 40, 56, 64
    vA3 = 14; vHl1, vHz1 = 29, 30
    sWc, sWs, sWe, sHc, sHs, sHe = 36, 37, 38, 39, 40, 41
    p(f'''v_lshlrev_b32 v{vHl}, 4, v0
      s_lshl_b32 s66, s{sTB}, 13
      s_lshl_b32 s67, s{sW}, 11
      s_add_u32 s66, s66, s67
      v_add_u32 v61, s66, v{vHl}''')
    def g_first():
        p('s_waitcnt lgkmcnt(0)')
        tn('g_karg')
        p('''global_load_dwordx4 v[8:11], v61, s[4:5]
          global_load_dwordx4 v[12:15], v61, s[4:5] offset:1024''')
        srds('G')
    p(f's_and_b32 s74, s{sW}, 1\ns_lshr_b32 s75, s{sW}, 1')
    p(f'''v_and_b32 v1, 31, v0
      v_lshrrev_b32 v2, 5, v0
      v_bfe_u32 v3, v0, 1, 3
      v_xor_b32 v3, v3, v2
      s_lshl_b32 s66, s74, 13
      v_lshl_add_u32 v4, v1, 7, s66''')
    for ks in range(4):
        p(f'v_xor_b32 v5, {2*ks}, v3\nv_lshl_add_u32 v{vXa + ks}, v5, 4, v4')
    p(f'''v_bfe_u32 v3, v0, 2, 2
      v_lshl_add_u32 v3, v2, 3, v3
      v_mul_u32_u24 v3, 192, v3
      v_and_b32 v4, 3, v0
      v_lshl_add_u32 v3, v4, 3, v3
      s_mul_i32 s66, s75, 96
      v_add_u32 v3, s66, v3
      v_bfe_u32 v4, v0, 4, 1
      v_lshl_add_u32 v5, v4, 5, v3
      v_add_u32 v{vWg}, {GR}, v5
      v_add_u32 v{vWu}, {UR}, v5
      v_mul_u32_u24 v4, {UR - GR}, v4
      v_add_u32 v3, {GR + 64}, v3
      v_add_u32 v{vW1}, v3, v4''')
    p(f'''s_cmp_eq_u32 s74, 0
      s_cselect_b32 s66, 0, {BIG}
      v_lshl_add_u32 v{vCS1}, v0, 2, s66
      v_lshlrev_b32 v3, 30, v2
      v_add_u32 v{vCS2}, v3, v{vCS1}
      s_mul_i32 s66, s{sCB}, 6
      s_mul_i32 s67, s75, 3
      s_add_u32 s66, s66, s67
      s_cmp_le_u32 s66, 84
      s_cselect_b32 s67, 0, {BIG}
      v_add_u32 v{vH01}, s67, v{vHl}
      s_cmp_le_u32 s66, 83
      s_cselect_b32 s67, 0, {BIG}
      v_add_u32 v{vH2}, s67, v{vHl}
      s_lshl_b32 s67, s{sRB}, 2
      s_lshl_b32 s68, s74, 1
      s_add_u32 s67, s67, s68
      s_mul_i32 s67, s67, 86
      s_add_u32 s66, s66, s67
      s_lshl_b32 s66, s66, 10
      s_add_u32 s70, s66, {WS_H}
      s_add_u32 s71, s70, {86*1024}''')
    g_first()
    p(f'''v_lshrrev_b32 v3, 3, v0
      v_bfe_u32 v4, v0, 4, 1
      v_lshlrev_b32 v4, 2, v4
      v_and_b32 v5, 7, v0
      v_xor_b32 v4, v4, v5
      v_lshlrev_b32 v4, 4, v4
      v_lshl_add_u32 v{vWd}, v3, 10, v4''')
    p(f'v_add_u32 v{vWd + 1}, 8192, v{vWd}')
    p(f'''v_bfe_u32 v3, v0, 2, 2
      v_lshl_add_u32 v3, v2, 2, v3
      v_bfe_u32 v4, v3, 1, 1
      v_lshlrev_b32 v4, 6, v4
      v_lshl_add_u32 v3, v3, 7, v4
      v_bfe_u32 v4, v0, 4, 1
      v_lshl_add_u32 v3, v4, 5, v3
      v_and_b32 v4, 3, v0
      v_lshl_add_u32 v3, v4, 3, v3
      v_xor_b32 v4, 64, v3
      s_lshl_b32 s66, s{sW}, 12
      s_mul_i32 s67, s{sW}, 3072
      s_add_u32 s68, s67, {GR}
      s_add_u32 s69, s67, {UR}
      v_add_u32 v{vA}, s66, v3
      v_add_u32 v{vA + 1}, s66, v4
      v_add_u32 v{vA + 2}, s68, v3
      v_add_u32 v{vA + 3}, s68, v4
      v_add_u32 v{vA + 4}, s69, v3
      v_add_u32 v{vA + 5}, s69, v4
      s_cmp_ge_u32 s{sW}, 2
      s_cselect_b32 s66, {BIG}, 0
      v_add_u32 v{vHz}, s66, v{vHl}
      v_add_u32 v{vHl1}, {86*1024}, v{vHl}
      v_add_u32 v{vHz1}, {86*1024}, v{vHz}
      v_mov_b32 v{vCnt}, {MISC}''')
    for r in range(cA, cA + 12, 2): p(f'v_mov_b64 v[{r}:{r+1}], 0')
    for r in range(cB, cB + 8, 2): p(f'v_mov_b64 v[{r}:{r+1}], 0')
    p(f'''s_lshl_b32 s66, s74, 2
      s_add_u32 s66, s66, s75
      s_mul_i32 s66, s66, 1088
      s_add_u32 s66, s66, {LNS}
      v_add_u32 v6, s66, v{vHl}
      v_bfe_u32 v3, v0, 2, 2
      v_mul_u32_u24 v3, 1088, v3
      v_lshrrev_b32 v4, 4, v0
      v_lshl_add_u32 v3, v4, 5, v3
      v_and_b32 v4, 3, v0
      v_lshl_add_u32 v3, v4, 3, v3
      s_lshl_b32 s66, s{sW}, 8
      s_add_u32 s66, s66, {LNS}
      v_add_u32 v7, s66, v3
      v_lshrrev_b32 v3, 1, v0
      v_and_b32 v4, 1, v0
      v_lshlrev_b32 v4, 4, v4
      v_lshl_add_u32 v60, v3, 13, v4
      s_mov_b32 s77, 0x3f803f80''')
    tn('g_adr')
    p('s_barrier')
    tn('g_binit')
    xa = 64
    def reduce2(a, b, t):
        p(f'v_permlane32_swap_b32 v{a}, v{b}')
        p(f'v_add_f32 v{a}, v{a}, v{b}')
        p(f'v_mov_b32 v{t}, v{a}')
        p(f'v_permlane16_swap_b32 v{a}, v{t}')
        p(f'v_add_f32 v{a}, v{a}, v{t}')
        for m in ('quad_perm:[1,0,3,2]', 'quad_perm:[2,3,0,1]', 'row_half_mirror', 'row_mirror'):
            p(f'v_add_f32_dpp v{a}, v{a}, v{a} {m} row_mask:0xf bank_mask:0xf')
        p(f'v_mov_b32 v{b}, v{a}')
        p(f'v_permlane32_swap_b32 v{a}, v{b}')
    for r in range(2):
        p(f'v_dot2_f32_bf16 v{1 + r}, v{8 + 4*r}, s77, 0')
    tn('g_ln')
    for j in range(1, 4):
        for r in range(2): p(f'v_dot2_f32_bf16 v{1 + r}, v{8 + 4*r + j}, s77, v{1 + r}')
    for r in range(2):
        for j in range(4):
            p(f'v_lshlrev_b32 v{xa + 8*r + 2*j}, 16, v{8 + 4*r + j}\nv_and_b32 v{xa + 8*r + 2*j + 1}, 0xffff0000, v{8 + 4*r + j}')
    reduce2(1, 2, 3)
    p(f'v_mul_f32 v8, {1.0/512}, v1\nv_mul_f32 v10, {1.0/512}, v2'.replace('0.001953125', '0x3b000000'))
    for r in range(2):
        for e in range(8): p(f'v_sub_f32 v{xa + 8*r + e}, v{xa + 8*r + e}, v{8 + 2*r}')
    for r in range(2): p(f'v_mul_f32 v{1 + r}, v{xa + 8*r}, v{xa + 8*r}')
    for e in range(1, 8):
        for r in range(2): p(f'v_fmac_f32 v{1 + r}, v{xa + 8*r + e}, v{xa + 8*r + e}')
    reduce2(1, 2, 3)
    p('v_mov_b32 v3, 0x3727c5ac')
    p('v_fmac_f32 v3, 0x3b000000, v1\nv_mov_b32 v4, 0x3727c5ac\nv_fmac_f32 v4, 0x3b000000, v2')
    p('v_rsq_f32 v9, v3\nv_rsq_f32 v11, v4')
    for r in range(2):
        for e in range(8): p(f'v_mul_f32 v{xa + 8*r + e}, v{xa + 8*r + e}, v{9 + 2*r}')
        for j in range(4): p(f'v_cvt_pk_bf16_f32 v{80 + 4*r + j}, v{xa + 8*r + 2*j}, v{xa + 8*r + 2*j + 1}')
        p(f'ds_write_b128 v6, {vr(80 + 4*r, 4)} offset:{2176*r}')
    p(f'''v_mov_b32 v1, 1
      s_lshl_b32 s66, s{sTB}, 6
      s_lshl_b32 s67, s{sW}, 4
      s_add_u32 s66, s66, s67
      s_add_u32 s66, s66, {WS_ST}
      v_mov_b32 v2, 0''')
    one_lane(lambda: p(f'ds_add_u32 v{vCnt}, v1 offset:{C_L - MISC}\nbuffer_store_dwordx4 v[8:11], v2, {srd(WS)}, s66 offen sc1'))
    p(f'''s_lshl_b32 s66, s{sW}, 19
      s_lshl_b32 s67, s{sTB}, 5
      s_add_u32 s66, s66, s67
      s_add_u32 s66, s66, {WS_XNT}
      s_add_u32 s67, s66, {32*8192}''')
    lds_spin(vCnt, C_L - MISC, 4, 1)
    tn('g_cl')
    for h2 in range(2):
        for s in range(2):
            p(f'ds_read_b64_tr_b16 {vr(88 + 4*h2 + 2*s, 2)}, v7 offset:{4352*s + 128*h2}')
    for h2 in range(2):
        if not cfg.noxnt: p(f'buffer_store_dwordx4 {vr(88 + 4*h2, 4)}, v60, {srd(WS)}, s{66 + h2} offen sc1')
    mktag()
    p('s_barrier')
    tn('g_b0')
    def reads(g):
        s, ks = g >> 2, g & 3; sl = s % 3; b = FR[g & 1]
        wo = sl * 12288 + ks * 16 * 192
        xr = lambda tt: f'ds_read_b128 {vr(b + 12 + 4*tt, 4)}, v{vXa + ks} offset:{sl*16384 + tt*4096}'
        wr = lambda T, j: f'ds_read_b64_tr_b16 {vr(b + 4*T + 2*j, 2)}, v{(vWg, vW1, vWu)[T]} offset:{wo + j*768}'
        return [xr(0), wr(0, 0), wr(0, 1), xr(1), wr(1, 0), wr(1, 1), wr(2, 0), wr(2, 1)]
    extra = {}
    def add(g, m, item): extra.setdefault((g, m), []).append(item)
    def piece_loc(P):
        P %= 28
        groups = [(0, 4, 0, 32768), (4, 3, 2, 24576), (7, 4, 0, 0), (11, 3, 1, 0), (14, 3, 2, 0),
                  (17, 4, 0, 16384), (21, 3, 1, 12288), (24, 3, 2, 12288), (27, 1, 3, 0)]
        for (p0, n, reg, imm) in groups:
            if p0 <= P < p0 + n: return reg, imm, P - p0
    wdh = {}
    wd_state = {'grp': None}
    def wd_dma(P):
        reg, imm, i = piece_loc(P)
        p(f's_add_u32 m0, s{(66, 67, 68, 76)[reg]}, {imm + 1024*i}')
        wdh[P] = p(f'buffer_load_dwordx4 v{vWd + (P & 1)}, {srd(WD)}, s{sWc} offen lds')
        if P & 1: p(f's_add_u32 s{sWc}, s{sWc}, 16384\ns_cmp_eq_u32 s{sWc}, s{sWe}\ns_cselect_b32 s{sWc}, s{sWs}, s{sWc}')
    def wd_setup():
        p(f'''s_lshl_b32 s66, s{sW}, 12
          s_mul_i32 s68, s{sW}, 3072
          s_add_u32 s67, s68, {GR}
          s_add_u32 s68, s68, {UR}
          s_mul_i32 s72, s{sW}, 22
          s_cmp_eq_u32 s{sW}, 3
          s_cselect_b32 s72, 65, s72
          s_cmp_ge_u32 s{sW}, 2
          s_cselect_b32 s73, 21, 22
          s_lshl_b32 s76, s{sW}, 10
          s_add_u32 s76, s76, {TT}
          s_sub_u32 s69, s76, s66
          v_add_u32 v{vA3}, s69, v{vA}
          v_add_u32 v{vA3 + 1}, s69, v{vA + 1}''')
    def wd_setup2():
        p(f'''s_mul_i32 s69, s{sCB2}, {cfg.r2c}
          s_bfe_u32 s6, s2, 0x20003
          s_mul_i32 s6, s6, {cfg.r2j}
          s_add_u32 s69, s69, s6
          s_and_b32 s6, s2, 7
          s_mul_i32 s6, s6, {cfg.r2x}
          s_add_u32 s69, s69, s6
          s_lshr_b32 s69, s69, 4
          s_cmp_ge_u32 s69, s73
          s_cselect_b32 s6, s73, 0
          s_sub_u32 s69, s69, s6
          s_lshl_b32 s6, s{sCB2}, 7
          s_lshl_b32 s{sWs}, s72, 14
          s_add_u32 s{sWs}, s{sWs}, s6
          s_lshl_b32 s6, s73, 14
          s_add_u32 s{sWe}, s{sWs}, s6
          s_lshl_b32 s6, s69, 14
          s_add_u32 s{sWc}, s{sWs}, s6''')
        assert (7*cfg.r2c + 3*cfg.r2j + 7*cfg.r2x) // 16 < 42
    def h_setup():
        p(f'''s_mul_i32 s{sHs}, s{sRB2}, 172
          s_add_u32 s{sHs}, s{sHs}, s72
          s_lshl_b32 s{sHs}, s{sHs}, 10
          s_add_u32 s{sHs}, s{sHs}, {WS_H}
          s_lshl_b32 s6, s73, 10
          s_add_u32 s{sHe}, s{sHs}, s6
          s_lshl_b32 s6, s69, 10
          s_add_u32 s{sHc}, s{sHs}, s6
          s_lshl_b32 s8, s{sRB}, 1
          s_add_u32 s8, s8, s74
          s_lshl_b32 s8, s8, 5
          s_lshl_b32 s9, s{sCB}, 1
          s_add_u32 s8, s8, s9
          s_add_u32 s8, s8, s75
          s_lshl_b32 s8, s8, {cfg.fsh}
          s_add_u32 s8, s8, {WS_FH}
          s_lshl_b32 s9, s{sRB2}, 5
          s_mul_i32 s10, s{sW}, 7
          s_add_u32 s9, s9, s10
          s_lshl_b32 s9, s9, {cfg.fsh}
          s_add_u32 s9, s9, {WS_FH}''')
    for g in range(32):
        nxt = reads(g + 1) if g < 31 else []
        if (g & 3) == 3:
            dist = {2: nxt[0:2], 3: nxt[2:4], 4: nxt[4:6], 5: nxt[6:8]}
            if g < 31: add(g, 2, 'BARRIER')
        else:
            dist = {0: nxt[0:2], 1: nxt[2:3], 2: nxt[3:5], 3: nxt[5:6], 4: nxt[6:7], 5: nxt[7:8]}
        for m, l in dist.items():
            for x in l: add(g, m, x)
    for g in range(2):
        for T in range(3):
            for r in range(4):
                c = '0' if (g == 0 and r == 0) else f'v{cs + T}'
                add(g, 2*T + (r >> 1), f'v_dot2_f32_bf16 v{cs + T}, v{FR[g] + 4*T + r}, s77, {c}')
    def cs_pub():
        p(f'''s_lshl_b32 s66, s{sCB}, 4
          s_add_u32 s66, s66, s{sRB}
          s_mul_i32 s66, s66, 768
          s_mul_i32 s67, s75, 384
          s_add_u32 s66, s66, s67
          s_add_u32 s66, s66, {WS_CSP}''')
        p(f'buffer_store_dword v{cs}, v{vCS1}, {srd(WS)}, s66 offen sc1')
        p(f'buffer_store_dword v{cs + 2}, v{vCS2}, {srd(WS)}, s66 offen offset:256 sc1')
    add(2, 0, f'v_mov_b32 v{cs + 3}, v{cs + 2}'); add(2, 0, f'v_permlane32_swap_b32 v{cs}, v{cs + 1}')
    add(2, 1, f'v_permlane32_swap_b32 v{cs + 2}, v{cs + 3}'); add(2, 1, f'v_add_f32 v{cs}, v{cs}, v{cs + 1}')
    add(2, 2, f'v_add_f32 v{cs + 2}, v{cs + 2}, v{cs + 3}')
    add(2, 3, cs_pub)
    def fa_arrive():
        p('s_waitcnt vmcnt(0)')
        p('v_mov_b32 v1, 1')
        one_lane(lambda: p(f'ds_add_rtn_u32 v2, v{vCnt}, v1 offset:{C_A - MISC}'))
    def publish(tmpv, soff_lines):
        L = p.newlabel('PUB')
        p(f'v_readfirstlane_b32 s78, v{tmpv}')
        p('s_cmp_eq_u32 s78, 3')
        p(f's_cbranch_scc0 {L}')
        p.cond_begin()
        p(soff_lines)
        p(f'v_mov_b32 v1, s{sTAG}\nv_mov_b32 v2, 0')
        one_lane(lambda: p(f'buffer_store_dword v1, v2, {srd(WS)}, s79 offen sc1'))
        p.cond_end()
        p.label(L)
    add(cfg.fa_g, 0, fa_arrive)
    add(cfg.fa_g + 1, 0, lambda: publish(2, f's_lshl_b32 s79, s{sTB}, 2\ns_add_u32 s79, s79, {WS_FA}'))
    add(17, 0, wd_setup); add(18, 0, wd_setup2); add(21, 0, h_setup)
    for k, P in enumerate(range(0, 7)): add(24 + k // 3, 2 * (k % 3), (lambda P=P: wd_dma(P)))
    for k, P in enumerate(range(7, 17)): add(28 + k // 3, 2 * (k % 3) + 1, (lambda P=P: wd_dma(P)))
    def corr_reads():
        p(f'''v_and_b32 v1, 31, v0
          s_mul_i32 s78, s75, 384
          s_add_u32 s78, s78, {CSB}
          v_lshl_add_u32 v2, v1, 2, s78
          s_lshl_b32 s78, s74, 9
          s_add_u32 s78, s78, {MB}
          v_lshl_add_u32 v1, v1, 3, s78
          s_mov_b32 exec_hi, 0''')
        for T in range(3): p(f'ds_read2_b32 {vr(cA + 4*T, 2)}, v2 offset0:{32*T} offset1:{32*T}')
        for tt in range(2): p(f'ds_read_b64 {vr(cB + 4*tt, 2)}, v1 offset:{256*tt}')
        p('s_mov_b64 exec, -1')
    add(28, 0, corr_reads)
    def b8_arrive():
        p('s_waitcnt lgkmcnt(0)')
        p('v_mov_b32 v1, 1')
        one_lane(lambda: p(f'ds_add_u32 v{vCnt}, v1 offset:{C_8 - MISC}'))
    add(31, 3, b8_arrive)
    for x in reads(0): p(x)
    nb = 0
    for g in range(32):
        b = FR[g & 1]
        for m in range(6):
            T, tt = m >> 1, m & 1
            a = ACC + 16 * (2*T + tt)
            c = '0' if g == 0 else vr(a, 16)
            p(f'v_mfma_f32_32x32x16_bf16 {vr(a, 16)}, {vr(b + 4*T, 4)}, {vr(b + 12 + 4*tt, 4)}, {c}')
            for x in extra.get((g, m), []):
                if x == 'BARRIER':
                    p('s_waitcnt lgkmcnt(0)\ns_barrier'); nb += 1
                    tn(f'g_b{nb}')
                elif callable(x): x()
                else: p(x)
    tn('g_m31')
    for tt in range(2):
        for T in (0, 2, 1):
            a = ACC + 16 * (2*T + tt)
            p(f'v_mfma_f32_32x32x16_bf16 {vr(a, 16)}, {vr(cA + 4*T, 4)}, {vr(cB + 4*tt, 4)}, {vr(a, 16)}')
    tn('g_corr')
    HS = 56
    for tt in range(2):
        for q in range(3):
            if q < 2: ga, ua = ACC + 16*tt + 8*q, ACC + 16*(4 + tt) + 8*q
            else: ga, ua = ACC + 16*(2 + tt), ACC + 16*(2 + tt) + 8
            d = HS + 4 * (3*tt + q)
            for e in range(8): p(f'v_mul_f32 v{ga + e}, v{ga + e}, v{ua + e}')
            for j in range(4): p(f'v_cvt_pk_bf16_f32 v{d + j}, v{ga + 2*j}, v{ga + 2*j + 1}')
            hst = p(f'buffer_store_dwordx4 {vr(d, 4)}, v{vH2 if q == 2 else vH01}, {srd(WS)}, s{70 + tt} offen offset:{1024*q} sc1')
    tn('g_hst')
    HW = cfg.hwin; HB = 144; AF = [40, 48]; AC2 = 192; RF = 80; NRF = 8
    assert HW <= 6
    def afr(n): return RF + 8 * n if n < NRF else AF[n & 1]
    def aread(n, dt, s):
        P = 2*n + s
        reg, imm, i = piece_loc(P)
        p.wait_vm(wdh[P])
        p(f'ds_read_b64_tr_b16 {vr(afr(n) + 4*dt + 2*s, 2)}, v{(vA + 2*reg if reg < 3 else vA3) + dt} offset:{imm + 1024*i}')
    lds_spin(vCnt, C_8 - MISC, 4, 1)
    tn('g_c8')
    for P in range(17, 17 + cfg.npre): wd_dma(P)
    for n in range(NRF):
        for dt in range(2):
            for s_ in range(2): aread(n, dt, s_)
    p.wait_vm(hst)
    tn('g_ack')
    flag_store(8)
    p(f'v_and_b32 v3, 7, v0\nv_lshlrev_b32 v3, {cfg.fsh}, v3')
    polls = []
    for P in range(17 + cfg.npre, 44):
        if P == 28: p('s_waitcnt lgkmcnt(0)')
        if not (cfg.spoll & 1) and 44 - P in (cfg.poll1, cfg.poll2):
            p(f'buffer_load_dword v{4 + len(polls)}, v3, {srd(WS)}, s9 offen sc1'); polls.append(4 + len(polls))
        wd_dma(P)
    tn('g_wd')
    Lx = p.newlabel('PHX')
    for r in polls:
        p(f'v_cmp_ne_u32 vcc, s{sTAG}, v{r}\ns_cmp_eq_u64 vcc, 0\ns_cbranch_scc1 {Lx}')
        p.cond_begin()
    if cfg.spoll & 1: spoll(12, 8, 9)
    else: vpoll(8, 9)
    for r in polls: p.cond_end()
    p.label(Lx)
    tn('g_fh')
    def hload(n, tt):
        r = HB + 8 * (n % HW) + 4 * tt
        p(f'buffer_load_dwordx4 {vr(r, 4)}, v{((vHl, vHl1), (vHz, vHz1))[n == 21][tt]}, {srd(WS)}, s{sHc} offen sc1')
        if tt == 1 and n < 21: p(f's_add_u32 s{sHc}, s{sHc}, 1024\ns_cmp_eq_u32 s{sHc}, s{sHe}\ns_cselect_b32 s{sHc}, s{sHs}, s{sHc}')
    for n in range(HW):
        for tt in range(2): hload(n, tt)
    fa = final_addr(FG) + final_loads(FG)
    fb = final_base(FG)
    for n in range(22):
        for m in range(4):
            dt, tt = m >> 1, m & 1
            a = AC2 + 16 * m
            c = '0' if n == 0 else vr(a, 16)
            p(f'v_mfma_f32_32x32x16_bf16 {vr(a, 16)}, {vr(afr(n) + 4*dt, 4)}, {vr(HB + 8*(n % HW) + 4*tt, 4)}, {c}')
            if n == 0 and m == 0: tn('g_h0')
            if NRF <= n + 1 <= 21: aread(n + 1, m >> 1, m & 1)
            if m == 3 and n + HW < 22:
                hload(n + HW, 0); hload(n + HW, 1)
            if n >= 4:
                for _ in range(3):
                    if fa: p(fa.pop(0))
            if n >= 14 and fb:
                assert not fa
                p(fb.pop(0))
                if fb: p(fb.pop(0))
            if n == 21 and m == 2:
                p('v_mov_b32 v5, 1')
                one_lane(lambda: p(f'ds_add_u32 v{vCnt}, v5 offset:{C_F - MISC}'))
    tn('g_g2')
    while fb: p(fb.pop(0))
    p(f's_lshl_b32 s66, s{sW}, 14\nv_add_u32 v6, s66, v{vHl}')
    lds_spin(vCnt, C_F - MISC, 4, 5)
    for m in range(4):
        for Q in range(4):
            p(f'ds_write_b128 v6, {vr(AC2 + 16*m + 4*Q, 4)} offset:{(4*m + Q) * 1024}')
    p('s_waitcnt lgkmcnt(0)')
    final_tail(FG)

    p.label('L_S')
    p.vmq, p.dsq = st0
    if cfg.prio & 1: p('s_setprio 1')
    vXo, vWo, vIdx, vPar = 10, 14, 20, 32
    LAM, Wv, P1, P2, P4, Q, Q2, E256, cA_, cB_, cC_, T0, T1 = 40, 42, 44, 46, 48, 50, 52, 54, 56, 58, 60, 62, 64
    vSW, vSR, vTA = 70, 71, 72
    AFr, BFr, DK = 80, 112, 144
    p(f'''s_sub_u32 s74, s{sW}, 4
      s_lshr_b32 s75, s74, 1
      s_and_b32 s77, s74, 1
      s_lshl_b32 s66, s2, 1
      s_add_u32 s66, s66, s75
      s_lshl_b32 s67, s66, 8
      s_lshl_b32 s68, s77, 7
      s_add_u32 s67, s67, s68
      v_lshl_add_u32 v18, v0, 1, s67
      s_lshl_b32 s66, s66, 1
      v_mov_b32 v19, s66''')
    def par_loads():
        p(f'global_load_ushort v{vPar + 6}, v19, s[18:19]')
        for i in range(6): p(f'global_load_ushort v{vPar + i}, v18, s[{6 + 2*i}:{7 + 2*i}]')
    p(f'''s_and_b32 s66, s{sRB}, 1
      s_lshl_b32 s67, s66, 2
      v_and_b32 v1, 7, v0
      v_lshrrev_b32 v2, 4, v0
      v_xor_b32 v1, v1, v2
      v_xor_b32 v1, s67, v1
      v_lshrrev_b32 v2, 3, v0
      s_lshl_b32 s68, s74, 15
      v_lshl_add_u32 v2, v2, 10, s68
      v_lshl_add_u32 v{vXo}, v1, 4, v2
      v_xor_b32 v1, 4, v1
      v_lshl_add_u32 v2, v1, 4, v2
      v_add_u32 v{vXo + 1}, {7168}, v2
      v_add_u32 v{vXo + 2}, {2*7168}, v{vXo}
      v_add_u32 v{vXo + 3}, {3*7168}, v2
      s_lshl_b32 s66, s66, 5
      s_lshl_b32 s67, s74, 4
      s_movk_i32 s68, 2752''')
    for i in range(3):
        p(f'''v_add_u32 v1, {64*i}, v0
          v_mul_u32_u24 v2, 0x5556, v1
          v_lshrrev_b32 v2, 18, v2
          v_mul_u32_u24 v3, 12, v2
          v_sub_u32 v3, v1, v3
          v_add_u32 v2, s67, v2
          v_xor_b32 v2, s66, v2
          v_lshlrev_b32 v3, 4, v3
          v_mad_u32_u24 v2, v2, s68, v3
          v_subrev_u32 v{vWo + i}, {1024*i}, v2''')
    p(f'''s_lshl_b32 s66, s74, 12
      s_mul_i32 s68, s74, 3072
      s_add_u32 s67, s68, {GR}
      s_add_u32 s68, s68, {UR}
      s_lshl_b32 s69, s{sRB}, 17
      s_mul_i32 s70, s{sCB}, 192
      s_lshr_b32 s71, s{sRB}, 1''')
    if cfg.rotc: p(f's_add_u32 s71, s71, s{sCB2}')
    p('s_waitcnt lgkmcnt(0)')
    tn('s_karg')
    if cfg.parfirst: par_loads()
    srds('S')
    slabh = {}
    def dma_items(s):
        sl = s % 3
        it = []
        def x(i):
            if i == 0:
                p(f's_add_u32 s78, s71, {s}\ns_and_b32 s78, s78, 7\ns_lshl_b32 s76, s78, 7\ns_add_u32 s76, s76, s69')
                p(f's_mul_i32 s79, s78, {64*2752}\ns_add_u32 m0, s66, {sl*16384}\ns_add_u32 s79, s79, s70')
            p(f'buffer_load_dwordx4 v{vXo + i}, {srd(XD)}, s76 offen offset:{1024*i} lds')
            tn(f's_d{s}_{i}')
        def w(k, i):
            if i == 0: p(f's_add_u32 m0, s{67 + k}, {sl*12288}')
            slabh[s] = p(f'buffer_load_dwordx4 v{vWo + i}, {srd((WG, WU)[k])}, s79 offen offset:{1024*i} lds')
            tn(f's_d{s}_{4 + 3*k + i}')
        for i in range(4): it.append(lambda i=i: x(i))
        for k in range(2):
            for i in range(3): it.append(lambda k=k, i=i: w(k, i))
        return it
    def emit(x):
        if callable(x): x()
        else: p(x)
    def seg(work, dma=(), gap=None):
        work = list(work); dma = list(dma)
        gap = cfg.dma_gap if gap is None else gap
        if cfg.autogap and dma: gap = max(1, -(-len(work) // len(dma)))
        while work or dma:
            if dma: emit(dma.pop(0))
            for _ in range(gap):
                if work: emit(work.pop(0))
    seg([], dma_items(0))
    if not cfg.parfirst: par_loads()
    tn('s_dma0')
    p('s_barrier')
    tn('s_binit')
    w_idx = []
    A = w_idx.append
    A(f's_lshl_b32 s72, s74, 6'); A(f'v_add_u32 v9, s72, v0')
    A(f'v_lshlrev_b32 v1, 3, v9'); A(f'v_lshlrev_b32 v2, 5, v9'); A(f'v_add_u32 v2, {TT + 16}, v2')
    A(f's_mov_b32 s72, {(TT + 16 - 4*17024) & 0xffffffff}')
    for e in range(0, 11, 2):
        es = [e] if e == 10 else [e, e + 1]
        for k, ee in enumerate(es):
            A(f'v_add_u32 v{3 + k}, {ee - 3}, v1'); A(f'v_max_i32 v{3 + k}, 0x80, v{3 + k}'); A(f'v_cvt_f32_i32 v{3 + k}, v{3 + k}')
        A(f'v_cvt_pk_bf16_f32 v5, v3, v{3 + len(es) - 1}')
        for k, ee in enumerate(es):
            A('v_and_b32 v6, 0xffff, v5' if k == 0 else 'v_lshrrev_b32 v6, 16, v5')
            A('v_lshl_add_u32 v6, v6, 2, s72'); A(f'v_add_u32 v7, {4*(ee - 3)}, v2'); A(f'v_min_i32 v{vIdx + ee}, v6, v7')
    A(f's_mul_i32 s72, s74, 8704'); A(f's_add_u32 s72, s72, {KS}')
    A(f'v_lshl_add_u32 v{vSW}, v0, 2, s72')
    A('v_and_b32 v1, 31, v0'); A('v_lshrrev_b32 v2, 5, v0'); A('v_mul_u32_u24 v3, 272, v1'); A('v_lshl_add_u32 v3, v2, 4, v3')
    A(f'v_add_u32 v{vSR}, s72, v3')
    A(f's_mul_i32 s72, s75, {TCH}'); A(f's_add_u32 s72, s72, {TT + 16}')
    A('v_lshlrev_b32 v3, 3, v1'); A('v_lshl_add_u32 v3, v2, 2, v3'); A(f'v_lshl_add_u32 v{vTA}, v3, 2, s72')
    A('v_sub_u32 v4, 2, v2'); A('v_lshlrev_b32 v3, v4, v1'); A('v_lshl_add_u32 v4, v2, 7, v3'); A('v_add_u32 v4, 0x100, v4')
    A(f'v_lshl_add_u32 v{vTA + 1}, v4, 2, s72')
    A('v_mul_u32_u24 v4, 190, v2'); A('v_add_u32 v4, v4, v3'); A('v_add_u32 v4, 0x102, v4'); A(f'v_lshl_add_u32 v{vTA + 2}, v4, 2, s72')
    A('v_lshl_add_u32 v4, v2, 7, v1'); A('v_add_u32 v4, 0x200, v4'); A(f'v_lshl_add_u32 v{vTA + 3}, v4, 2, s72')

    def cmul(o, d, x, y, t):
        if cfg.pk:
            o.append(f'v_pk_mul_f32 {vr(t, 2)}, {vr(x, 2)}, {vr(y, 2)} op_sel:[0,0] op_sel_hi:[1,0]')
            o.append(f'v_pk_fma_f32 {vr(d, 2)}, {vr(x, 2)}, {vr(y, 2)}, {vr(t, 2)} op_sel:[1,1,0] op_sel_hi:[0,1,1] neg_lo:[1,0,0]')
        else:
            o.append(f'v_mul_f32 v{t}, v{x}, v{y}'); o.append(f'v_mul_f32 v{t + 1}, v{x + 1}, v{y}')
            o.append(f'v_fma_f32 v{t}, -v{x + 1}, v{y + 1}, v{t}'); o.append(f'v_fma_f32 v{d + 1}, v{x}, v{y + 1}, v{t + 1}')
            o.append(f'v_mov_b32 v{d}, v{t}') if d == x else o.__setitem__(-2, f'v_fma_f32 v{d}, -v{x + 1}, v{y + 1}, v{t}')
    cv = [0]
    def put(o, row, x, neg):
        r = 66 + cv[0] % 4; cv[0] += 1
        o.append(f'v_cvt_pk_bf16_f32 v{r}, v{x}, {"-" if neg else ""}v{x + 1}')
        o.append(f'ds_write_b32 v{vSW}, v{r} offset:{272*row}')
    w_set = []
    A = w_set.append
    for i in range(7): A(f'v_lshlrev_b32 v{vPar + i}, 16, v{vPar + i}')
    A(lambda: tn('s_par'))
    ld = vPar + 6
    A(f's_mov_b32 s72, {LOG2E}'); A(f'v_mul_f32 v1, s72, v{ld}'); A(f'v_fma_f32 v2, v{ld}, s72, -v1')
    A(f'v_fmac_f32 v2, {LOG2E_LO}, v{ld}'); A('v_exp_f32 v1, v1'); A(f'v_mul_f32 v2, {LN2}, v2'); A('v_fmac_f32 v1, v1, v2')
    A('v_cvt_pk_bf16_f32 v1, v1, v1'); A('v_and_b32 v1, 0xffff0000, v1')
    for i in range(4): A(f'v_mul_f32 v{vPar + i}, v{vPar + i}, v1')
    A(f'v_mul_f32 v{LAM}, s72, v{vPar}'); A(f'v_mul_f32 v{LAM + 1}, {INV2PI}, v{vPar + 1}')
    for (dst, n) in ((P1, 1), (Q, 8), (E256, 256)):
        if n == 1: A(f'v_exp_f32 v1, v{LAM}'); A(f'v_fract_f32 v2, v{LAM + 1}')
        else:
            lit = {8: 0x41000000, 256: 0x43800000}[n]
            A(f'v_mul_f32 v1, {lit}, v{LAM}'); A(f'v_mul_f32 v2, {lit}, v{LAM + 1}'); A('v_exp_f32 v1, v1'); A('v_fract_f32 v2, v2')
        A('v_cos_f32 v3, v2'); A('v_sin_f32 v4, v2'); A(f'v_mul_f32 v{dst}, v1, v3'); A(f'v_mul_f32 v{dst + 1}, v1, v4')
    cmul(w_set, Wv, vPar + 4, vPar + 2, T0)
    cmul(w_set, P2, P1, P1, T1); cmul(w_set, cB_, Wv, E256, T0); cmul(w_set, P4, P2, P2, T1)
    w_hi = []
    put(w_hi, 0, Wv, True); put(w_hi, 8, cB_, True)
    cmul(w_hi, cA_, Wv, P1, T0); cmul(w_hi, cC_, cB_, P2, T1); put(w_hi, 1, cA_, True); put(w_hi, 9, cC_, True)
    for i in (2, 3):
        cmul(w_hi, cA_, cA_, P1, T0); cmul(w_hi, cC_, cC_, P2, T1); put(w_hi, i, cA_, True); put(w_hi, 8 + i, cC_, True)
    cmul(w_hi, cA_, cA_, P1, T0); cmul(w_hi, cB_, cB_, E256, T1); put(w_hi, 4, cA_, True); put(w_hi, 12, cB_, True)
    cmul(w_hi, cA_, cA_, P1, T0); cmul(w_hi, cC_, cB_, P4, T1); put(w_hi, 5, cA_, True); put(w_hi, 13, cC_, True)
    cmul(w_hi, cA_, cA_, P1, T0); cmul(w_hi, cB_, cB_, E256, T1); put(w_hi, 6, cA_, True); put(w_hi, 14, cB_, True)
    cmul(w_hi, cA_, cA_, P1, T0); cmul(w_hi, cC_, cB_, P4, T1); put(w_hi, 7, cA_, True); put(w_hi, 15, cC_, True)
    cmul(w_hi, Q2, Q, Q, T0)
    for i in range(5):
        cmul(w_hi, cB_, cB_, E256, T1); put(w_hi, 16 + i, cB_, True)
    w_lo = []
    for ks in range(8): w_lo.append(f'ds_read_b128 {vr(AFr + 4*ks, 4)}, v{vSR} offset:{32*ks}')
    w_lo.append('v_mov_b32 v1, 0x3f80'); w_lo.append(f'ds_write_b32 v{vSW}, v1')
    put(w_lo, 1, Q, False); put(w_lo, 2, Q2, False)
    cmul(w_lo, cA_, Q, Q2, T0); cmul(w_lo, cB_, Q2, Q2, T1); put(w_lo, 3, cA_, False); put(w_lo, 4, cB_, False)
    for j in range(5, 32, 2):
        cmul(w_lo, cA_, cA_, Q2, T0)
        if j < 31: cmul(w_lo, cB_, cB_, Q2, T1)
        put(w_lo, j, cA_, False)
        if j < 31: put(w_lo, j + 1, cB_, False)
    w_mm = []
    for ks in range(8): w_mm.append(f'ds_read_b128 {vr(BFr + 4*ks, 4)}, v{vSR} offset:{32*ks}')
    for ks in range(8):
        w_mm.append(f'v_mfma_f32_32x32x16_bf16 {vr(DK, 16)}, {vr(AFr + 4*ks, 4)}, {vr(BFr + 4*ks, 4)}, {"0" if ks == 0 else vr(DK, 16)}')
    def two_way(f0, f1):
        L1 = p.newlabel('HF'); L2 = p.newlabel('HFX')
        p(f's_cmp_eq_u32 s77, 0\ns_cbranch_scc0 {L1}')
        p.cond_begin(); f0(); p(f's_branch {L2}'); p.cond_end()
        p.label(L1)
        p.cond_begin(); f1(); p.cond_end()
        p.label(L2)
    vDW, vDR = 76, 77
    w_mm.insert(8, f's_mul_i32 s72, s74, 8704\ns_add_u32 s72, s72, {KS}\nv_lshl_add_u32 v{vDW}, v0, 4, s72')
    w_mm.insert(9, f's_xor_b32 s72, s74, 1\ns_mul_i32 s72, s72, 8704\ns_add_u32 s72, s72, {KS}\nv_lshl_add_u32 v{vDR}, v0, 4, s72')
    def dump(r): p(f'ds_write_b128 v{vDW}, {vr(r, 4)}\nds_write_b64 v{vDW}, {vr(r + 4, 2)} offset:1024')
    w_mm.append(lambda: two_way(lambda: dump(DK + 6), lambda: dump(DK)))
    w_T = [f'ds_read_b128 v[80:83], v{vDR}', f'ds_read_b64 v[84:85], v{vDR} offset:1024']
    def t0():
        for i in range(6): p(f'v_add_f32 v{80 + i}, v{80 + i}, v{DK + i}')
        p(f'ds_write_b128 v{vTA}, v[80:83]\nds_write_b64 v{vTA + 1}, v[84:85]')
    def t1():
        for i in range(6): p(f'v_add_f32 v{80 + i}, v{80 + i}, v{DK + 6 + i}')
        p(f'ds_write_b64 v{vTA + 2}, v[80:81]\nds_write_b32 v{vTA + 3}, v82')
        p(f's_mov_b32 exec_hi, 0\nds_write2_b32 v{vTA + 3}, v83, v84 offset0:32 offset1:64\nds_write_b32 v{vTA + 3}, v85 offset:384\ns_mov_b64 exec, -1')
    w_T.append(lambda: two_way(t0, t1))
    w_exp = []
    A = w_exp.append
    for c in range(2):
        for e in range(11): A(f'ds_read_b32 v{80 + 12*c + e}, v{vIdx + e} offset:{TCH*c}')
    A(f'v_lshlrev_b32 v1, 4, v9'); A(f'v_add_u32 v1, {KS + 32}, v1')
    A('v_lshrrev_b32 v2, 1, v0'); A(f'v_mul_u32_u24 v2, {CST}, v2'); A('v_and_b32 v3, 1, v0'); A('v_lshl_add_u32 v2, v3, 4, v2')
    A(f'v_add_u32 v2, {KS}, v2'); A('v_mov_b64 v[4:5], 0'); A('v_mov_b64 v[6:7], 0')
    A('s_mov_b64 exec, 0xffff\nds_write_b128 v2, v[4:7]\ns_mov_b64 exec, -1')
    for c in range(2):
        for g in range(4):
            d = 104 + 16*c + 4*g
            for j in range(4): A(f'v_cvt_pk_bf16_f32 v{d + j}, v{80 + 12*c + 3 - g + 2*j}, v{80 + 12*c + 4 - g + 2*j}')
            A(f'ds_write_b128 v1, {vr(d, 4)} offset:{CCH*c + CST*g}')
    def bar(s, i=None):
        tn(f's_w{s}')
        p.wait_vm(slabh[s]); tn(f's_l{s}'); p('s_waitcnt lgkmcnt(0)\ns_barrier')
        tn(f's_b{s}')
    vCA, vUB, vUW, vXB, vYS, vYL, vYW, vMisc = 1 + 186, 188, 189, 190, 191, 224, 225, 226
    w_adr = final_addr(FS)
    keep34 = ['v_mov_b32 v227, v3', 'v_mov_b32 v228, v4']
    w_adr = w_adr + keep34
    A = w_adr.append
    A('v_lshrrev_b32 v1, 4, v0'); A('v_and_b32 v2, 15, v0'); A('v_bfe_u32 v3, v0, 2, 2'); A('v_and_b32 v4, 3, v0')
    A(f'v_mul_u32_u24 v5, {CST}, v1'); A('v_sub_u32 v6, v4, v3'); A('v_lshl_add_u32 v5, v6, 3, v5')
    A(f's_mul_i32 s72, s75, {CCH}'); A(f's_add_u32 s72, s72, {KS}'); A('s_lshl_b32 s73, s77, 8'); A('s_add_u32 s73, s73, s72'); A('s_add_u32 s73, s73, 32')
    A(f'v_add_u32 v{vCA}, s73, v5')
    A(f'v_lshl_add_u32 v{vXB}, v0, 4, s72')
    A('v_mul_u32_u24 v5, 1152, v1'); A('v_lshl_add_u32 v5, v2, 3, v5')
    A('s_mul_i32 s72, s75, 4608'); A('s_lshl_b32 s73, s77, 6'); A('s_sub_u32 s72, s72, s73'); A(f's_add_u32 s72, s72, {UP + 120 - 48}')
    A(f'v_add_u32 v{vUB}, s72, v5')
    A(f'v_lshlrev_b32 v5, 2, v9'); A(f'v_add_u32 v{vUW}, {UP + 128}, v5')
    A('v_and_b32 v5, 1, v1'); A('v_lshlrev_b32 v5, 9, v5'); A('v_lshl_add_u32 v5, v2, 5, v5'); A('v_lshrrev_b32 v6, 1, v1')
    A(f'v_lshl_add_u32 v{vYS}, v6, 4, v5')
    A('v_lshrrev_b32 v5, 3, v0'); A('v_and_b32 v6, 7, v0'); A('v_lshlrev_b32 v6, 4, v6'); A(f'v_lshl_add_u32 v{vYL}, v5, 12, v6')
    A('v_mul_u32_u24 v5, 160, v5'); A('v_add_u32 v5, v5, v6')
    A(f's_mul_i32 s72, s75, {CCH}'); A('s_mul_i32 s73, s77, 2560'); A('s_add_u32 s72, s72, s73'); A(f's_add_u32 s72, s72, {KS + 8192}')
    A(f'v_add_u32 v{vYW}, s72, v5'); A(f'v_mov_b32 v{vMisc}, {MISC}')
    stages = [w_idx, w_set + w_hi, w_lo, w_mm, w_T, w_exp]
    pre = sum(stages[:cfg.nb0], []); rest = stages[cfg.nb0:]
    seg(pre, dma_items(1))
    tn('s_hi')
    done_tag = False
    for sb in range(5):
        if sb == 1: mktag()
        bar(sb)
        work = list(rest.pop(0)) if rest else []
        if work is not None and len(work) < 12 and w_adr: work += w_adr; w_adr = []
        if sb == 4:
            p(f'v_lshlrev_b32 v8, 4, v0\ns_movk_i32 s73, {WS_FA}')
            p(f'buffer_load_dwordx4 v[232:235], v8, {srd(WS)}, s73 offen sc1')
            work += w_adr; w_adr = []
        seg(work, dma_items(sb + 2))
    assert not rest
    bar(5)
    def fa_check():
        for j in range(4): p(f'v_xor_b32 v{232 + j}, s{sTAG}, v{232 + j}')
        p('v_or3_b32 v232, v232, v233, v234\nv_or_b32 v232, v232, v235\nv_cmp_ne_u32 vcc, 0, v232\ns_cmp_eq_u64 vcc, 0')
    Lx = p.newlabel('FAX'); L = p.newlabel('FA')
    fa_check()
    p(f's_cbranch_scc1 {Lx}')
    p.cond_begin()
    p(f's_mov_b32 s79, {cfg.spin}\ns_movk_i32 s73, {WS_FA}')
    p.label(L)
    p(f'buffer_load_dwordx4 v[232:235], v8, {srd(WS)}, s73 offen sc1')
    fa_check()
    p(f's_cbranch_scc1 {Lx}')
    p(f's_sub_u32 s79, s79, 1\ns_cmp_lg_u32 s79, 0\ns_cbranch_scc1 {L}')
    p.cond_end()
    p.label(Lx)
    tn('s_fa')
    p(f'''s_lshl_b32 s72, s2, 13
      s_add_u32 s72, s72, {WS_XNT}
      v_lshlrev_b32 v1, 5, v9''')
    p(f'buffer_load_dwordx4 v[80:83], v1, {srd(WS)}, s72 offen sc1')
    p(f'buffer_load_dwordx4 v[84:87], v1, {srd(WS)}, s72 offen offset:16 sc1')
    p(f'''s_mul_i32 s72, s{sCB}, 12288
      s_mul_i32 s73, s74, 192
      s_add_u32 s72, s72, s73
      s_add_u32 s72, s72, {WS_CSP}
      v_lshlrev_b32 v2, 2, v0
      s_bfm_b64 exec, 48, 0''')
    for r in range(16):
        p(f'buffer_load_dword v{88 + r}, v2, {srd(WS)}, s72 offen offset:{768*(r % 5)} sc1')
        if r % 5 == 4: p('s_add_u32 s72, s72, 3840')
    p(f'''s_lshl_b32 s72, s{sRB}, 10
      s_lshl_b32 s73, s74, 8
      s_add_u32 s72, s72, s73
      s_add_u32 s72, s72, {WS_ST}
      v_lshlrev_b32 v3, 3, v0
      s_mov_b32 exec_hi, 0''')
    p(f'buffer_load_dword v104, v3, {srd(WS)}, s72 offen sc1')
    p('s_mov_b64 exec, -1')
    L = p.newlabel('EP')
    p(f's_or_b32 s72, s2, s74\ns_cmp_eq_u32 s72, 0\ns_cbranch_scc0 {L}')
    p.cond_begin()
    p(f'v_mov_b32 v4, s{sTAG}\nv_mov_b32 v5, {WS_E}')
    one_lane(lambda: p(f'buffer_store_dword v4, v5, {srd(WS)}, 0 offen sc1'))
    p.cond_end()
    p.label(L)
    seg([], dma_items(7))
    p(f'v_mov_b32 v3, v227\nv_mov_b32 v4, v228')
    for x in final_loads(FS): p(x)
    bar(6)
    for c in range(2):
        for g in range(4): p(f'ds_write_b32 v{vUW}, v{80 + 4*c + g} offset:{4608*c + 1152*g}')
    p(f'''v_lshrrev_b32 v1, 3, v0
      v_mul_u32_u24 v1, 1152, v1
      v_and_b32 v5, 7, v0
      v_lshl_add_u32 v1, v5, 4, v1
      v_add_u32 v1, {UP}, v1
      v_mov_b64 v[4:5], 0
      v_mov_b64 v[6:7], 0
      ds_write_b128 v1, v[4:7]''')
    for st in (8, 4, 2, 1):
        for r in range(st): p(f'v_add_f32 v{88 + r}, v{88 + r}, v{88 + st + r}')
    p(f'''v_cvt_pk_bf16_f32 v1, v88, v88
      v_and_b32 v1, 0xffff0000, v1
      v_sub_f32 v4, v88, v1
      v_cvt_pk_bf16_f32 v1, v1, v4
      s_mul_i32 s72, s74, 192
      s_add_u32 s72, s72, {CSB}
      v_add_u32 v2, s72, v2
      v_cvt_pk_bf16_f32 v4, -v104, -v104
      v_and_b32 v5, 0xffff0000, v4
      v_sub_f32 v5, -v104, v5
      v_cvt_pk_bf16_f32 v5, v5, v5
      s_lshl_b32 s72, s74, 8
      s_add_u32 s72, s72, {MB}
      v_lshl_add_u32 v3, v0, 3, s72
      s_bfm_b64 exec, 48, 0
      ds_write_b32 v2, v1
      s_mov_b32 exec_hi, 0
      ds_write_b64 v3, v[4:5]
      s_mov_b64 exec, -1''')
    bar(7, 5)
    CAf, CBf, CD = [32, 64], [96, 128], 192
    def cfrags(rr):
        o = []; st_ = rr & 1
        for k in range(8):
            o.append(f'ds_read2_b64 {vr(CBf[st_] + 4*k, 4)}, v{vUB} offset0:{2*(8*k - rr + 3)} offset1:{2*(8*k - rr + 3) + 1}')
            for s in range(2):
                o.append(f'ds_read_b64_tr_b16 {vr(CAf[st_] + 4*k + 2*s, 2)}, v{vCA} offset:{64*(rr + 8*k) + 32*(1 - s)}')
        return o
    for x in cfrags(0): p(x)
    fb = final_base(FS)
    for rr in range(4):
        nxt = cfrags(rr + 1) if rr < 3 else []
        st_ = rr & 1
        pairs = sorted(((a, b) for a in range(8) for b in range(8 - a)), key=lambda ab: (max(ab), ab[0]))
        seen = set()
        for k, (a, b) in enumerate(pairs):
            c = a + b; d = CD + 4*c
            cc = '0' if (rr == 0 and c not in seen) else vr(d, 4)
            seen.add(c)
            p(f'v_mfma_f32_16x16x32_bf16 {vr(d, 4)}, {vr(CAf[st_] + 4*a, 4)}, {vr(CBf[st_] + 4*b, 4)}, {cc}')
            if nxt and k >= 2: p(nxt.pop(0))
            if rr == 3:
                if k == 28:
                    p(f's_lshl_b32 s72, s74, 2\nv_add_u32 v8, s72, v{vMisc}\nv_mov_b32 v5, 1')
                    one_lane(lambda: p(f'ds_write_b32 v8, v5 offset:{F1 - MISC}'))
                elif fb: p(fb.pop(0))
        assert not nxt
    while fb: p(fb.pop(0))
    tn('s_conv')
    p('v_xor_b32 v7, 4, v8')
    lds_spin(7, F1 - MISC, 1, 6)
    tn('s_f1')
    p(f'''s_lshl_b32 s72, s2, 1
      s_add_u32 s72, s72, s75
      s_lshl_b32 s72, s72, 12
      s_add_u32 s72, s72, {WS_YT}''')
    Lb = p.newlabel('XB'); Le = p.newlabel('XE')
    p(f's_cmp_eq_u32 s77, 0\ns_cbranch_scc0 {Lb}')
    for hf in range(2):
        if hf == 1: p.label(Lb)
        p.cond_begin()
        snd, kp = (4, 0) if hf == 0 else (0, 4)
        for k in range(4): p(f'ds_write_b128 v{vXB}, {vr(CD + 4*(snd + k), 4)} offset:{4096*hf + 1024*k}')
        one_lane(lambda: p(f'ds_write_b32 v8, v5 offset:{F2 - MISC}'))
        tn('s_xw')
        lds_spin(7, F2 - MISC, 1, 6)
        tn('s_f2')
        for k in range(4): p(f'ds_read_b128 {vr(32 + 4*k, 4)}, v{vXB} offset:{4096*(1 - hf) + 1024*k}')
        for k in range(4):
            for j in range(4): p(f'v_add_f32 v{32 + 4*k + j}, v{32 + 4*k + j}, v{CD + 4*(kp + k) + j}')
            for j in range(2): p(f'v_cvt_pk_bf16_f32 v{48 + 2*k + j}, v{32 + 4*k + 2*j}, v{32 + 4*k + 2*j + 1}')
            if k & 1:
                r = 48 + 2*(k - 1)
                p(f'v_permlane16_swap_b32 v{r}, v{r + 2}\nv_permlane16_swap_b32 v{r + 1}, v{r + 3}')
                if k == 1: tn('s_y0')
                p(f'buffer_store_dwordx4 {vr(r, 4)}, v{vYS}, {srd(WS)}, s72 offen offset:{512*(kp + k - 1)} sc1')
        if hf == 0: p(f's_branch {Le}')
        p.cond_end()
    p.label(Le)
    tn('s_yst')
    p(f'''s_lshl_b32 s72, s77, 9
      s_lshl_b32 s73, s2, 1
      s_add_u32 s72, s72, s73
      s_add_u32 s72, s72, s75
      s_lshl_b32 s72, s72, {cfg.fsh}
      s_add_u32 s72, s72, {WS_FY}
      s_lshr_b32 s73, s{sRB2}, 4
      s_lshl_b32 s73, s73, 9
      s_lshl_b32 s76, s{sCB2}, 6
      s_add_u32 s73, s73, s76
      s_lshl_b32 s76, s74, 4
      s_add_u32 s73, s73, s76
      s_lshl_b32 s73, s73, {cfg.fsh}
      s_add_u32 s73, s73, {WS_FY}''')
    p('s_waitcnt vmcnt(0) lgkmcnt(0)')
    tn('s_yack')
    flag_store(72)
    if cfg.spoll & 2: spoll(8, 16, 73)
    else: vpoll(16, 73)
    tn('s_fy')
    p(f'''s_lshl_b32 s72, s{sCB2}, 18
      s_lshl_b32 s73, s74, 16
      s_add_u32 s72, s72, s73
      s_lshl_b32 s73, s{sRB2}, 7
      s_add_u32 s72, s72, s73
      s_add_u32 s72, s72, {WS_YT}
      s_add_u32 s73, s72, 32768''')
    for k in range(2): p(f'buffer_load_dwordx4 {vr(32 + 4*k, 4)}, v{vYL}, {srd(WS)}, s{72 + k} offen sc1')
    for k in range(2): p(f'ds_write_b128 v{vYW}, {vr(32 + 4*k, 4)} offset:{1280*k}')
    p('s_waitcnt lgkmcnt(0)')
    final_tail(FS)
    p.label('L_END')
    p('s_endpgm')
    return p.text()

HEADER = open('cdna_kernels/' + KNAME + '.s.ref').read().split('; Override launch')[0] if True else ''

def build(cfg):
    k = dict(name=KNAME + '_kernel', grid=(256, 1, 1), block=(512, 1, 1), lds=LDS_SIZE, body=gen(cfg), vgpr=256, sgpr=102, accum=256)
    return build_file([k], header_comment=HEADER)

if __name__ == '__main__':
    cfg = Cfg()
    out = sys.argv[1]
    for a in sys.argv[2:]:
        k, v = a.split('='); setattr(cfg, k, type(getattr(Cfg, k))(int(v)))
    open(out, 'w').write(build(cfg))
```

```python
import sys, copy
from asmlib import build_file, KNAME
from asm2 import Prog

WS_E = 0; WS_FA = 1024; WS_ST = 4096; WS_FH = 0xA00000; WS_FY = 0xA10000; WS_CSP = 32768
WS_XNT = 0x40000; WS_YT = 0x240000; WS_H = 0x440000; WS_DBG = 0x1000000
WS_SIZE = 0x2000000
BIG = 0x40000000
KS = 0; XR = 34816; GR = 83968; UR = 120864; TT = 157760; TCH = 2704; MISC = 163168; LDS_SIZE = 163840
CCH = 17408; CST = 4160
GR2 = GR + 24576; UR2 = UR + 24576; UP = GR2 + 3072; MB = UR2 + 3072; LNX = MISC + 128
C_W, C_R, C_W3, C_Y, C_F, C_D, C_L, C_S, C_G, C_T, C_E, F1, F2, C_X = 0, 8, 16, 24, 32, 40, 48, 52, 56, 72, 64, 80, 96, 112
CSL = LNX
sW = 3
XD, WG, WU, WD, OUT, WS = 36, 40, 44, 48, 52, 56
sTAG, sRB, sCB, sTB, sRB2, sCB2, sROT = 60, 62, 63, 64, 65, 100, 101
def srd(b): return f's[{b}:{b + 3}]'
def vr(a, n): return f'v[{a}:{a + n - 1}]'
LOG2E = 0x3FB8AA3B; LOG2E_LO = 0x32A57060; LN2 = 0x3F317218; INV2PI = 0x3E22F983

class Cfg:
    ts = False
    hwin = 10
    adist = 2
    parfirst = 1
    r2c = 88; r2j = 176; r2x = 22
    xa = 8
    gfa = 0; gfb = 99; gf = 1; gf0 = 2
    d1 = 200
    c0 = 30; c1 = 60; c2 = 90; c3 = 120; c4 = 150; c5 = 180; c6 = 210; c7 = 240
    ipre = 0; ipos = 150; npf = 0; pf0 = 1; pfi = 5
    apos = 150
    sprio = 0xff
    gprio = 7
    gp2 = 0; gp3 = 2
    cprio = 0
    cs_at = 0
    bspan = 40
    cw_k = 0
    pearly = 0; hl = 0; hs = 0; na6 = 2; upos = 0
    i0 = 50
    cfirst = 2
    spoll = 3
    fsh = 2
    ystep = 37
    xstep = 10
    ypois = 0
    wbl2 = 0
    spin = 1 << 16
    tset = 0
    padph = 0; padw = 0; padcyc = 0; rt8 = 0; rt = 0
    nb7 = 99; bc0 = 0; bcs = 2; mix = 99; gap0 = 26; cpf = 0; g2x = 0; g2o = 0; hat = 0; verbose = 0; nok = 0; dmaf = 0; nost = 0; wsoff = 0

TSETS = [
  (['g_lns', 'g_b0', 'g_b4', 'g_b8', 'g_hst', 'g_fh'], ['s_b0', 's_b4', 's_b7', 's_ce', 's_conv', 's_fy']),
  (['g_karg', 'g_ln', 'g_lnw', 'g_lnx', 'g_lns', 'g_b0'], ['s_karg', 's_dma0', 's_idx', 's_par', 's_w0', 's_l0']),
  (['g_b0', 'g_b1', 'g_b2', 'g_b3', 'g_b4', 'g_b5'], ['s_w1', 's_l1', 's_w2', 's_l2', 's_w3', 's_l3']),
  (['g_b8', 'g_hst', 'g_ack', 'g_cw', 'g_d', 'g_fh'], ['s_b7', 's_cs', 's_bi', 's_ce', 's_cw', 's_conv']),
  (['g_b4', 'g_b5', 'g_b6', 'g_b7', 'g_b8', 'g_h0'], ['s_w4', 's_w5', 's_w6', 's_fa', 's_w7', 's_l7']),
  (['g_fh', 'g_h0', 'g_n16', 'g_n27', 'g_y', 'g_g2'], ['s_conv', 's_yst', 's_yack', 's_fy', 's_yl', 's_yw']),
  (['g_b8', 'g_corr', 'g_hst', 'g_cw', 'g_pre', 'g_ack'], ['s_w4', 's_l4', 's_w5', 's_l5', 's_w6', 's_l6']),
  (['g_b8', 'g_hst', 'g_c', 'g_ack', 'g_cw', 'g_d'], ['s_dump', 's_cd', 's_t', 's_ct', 's_exp', 's_ce']),
]
def gen(cfg):
    p = Prog()
    def ts(i, real=False):
        if cfg.ts: p(f'{"s_memrealtime" if (real or (cfg.padph and not cfg.padcyc) or (cfg.rt and i not in (1,))) else "s_memtime"} s[{80 + 2 * i}:{81 + 2 * i}]')
    def tn(name):
        for l in TSETS[cfg.tset]:
            if name in l: ts(2 + l.index(name))
            if cfg.ts and name + '#' in l: i = 2 + l.index(name + '#'); p(f's_memtime s[{80 + 2 * i}:{81 + 2 * i}]')
    def one_lane(f):
        p('s_mov_b64 exec, 1'); r = f(); p('s_mov_b64 exec, -1'); return r
    def lds_spin(addr_v, off, target, tmpv):
        L = p.newlabel('SPIN'); Lx = p.newlabel('SPINX')
        p(f's_mov_b32 s79, {cfg.spin * 8}')
        p.label(L)
        p(f'ds_read_b32 v{tmpv}, v{addr_v} offset:{off}')
        p(f'v_readfirstlane_b32 s78, v{tmpv}')
        p(f's_cmp_ge_u32 s78, {target}')
        p(f's_cbranch_scc1 {Lx}')
        p('s_sub_u32 s79, s79, 1')
        p('s_cmp_lg_u32 s79, 0')
        p(f's_cbranch_scc1 {L}')
        p.label(Lx)
    def lds_pre(addr_v, off, tmpv): p(f'ds_read_b32 v{tmpv}, v{addr_v} offset:{off}')
    def lds_post(addr_v, off, target, tmpv):
        Lx = p.newlabel('POK')
        p(f'v_readfirstlane_b32 s78, v{tmpv}\ns_cmp_ge_u32 s78, {target}\ns_cbranch_scc1 {Lx}')
        p.cond_begin(); lds_spin(addr_v, off, target, tmpv); p.cond_end()
        p.label(Lx)
    def lds_add(addr_v, off, onev): one_lane(lambda: p(f'ds_add_u32 v{addr_v}, v{onev} offset:{off}'))
    def emit(x):
        if callable(x): x()
        else: p(x)

    p('s_cmp_ge_u32 s2, 256\ns_cbranch_scc1 L_END')
    p('s_load_dwordx16 s[4:19], s[0:1], 0\ns_load_dwordx16 s[20:35], s[0:1], 64')
    ts(0, True); ts(1)
    p('v_lshrrev_b32 v1, 6, v0')
    p('v_lshlrev_b32 v2, 4, v0')
    p(f'v_readfirstlane_b32 s{sW}, v1')
    p(f'v_cmp_gt_u32 vcc, {(LNX - TT) // 16}, v0')
    p(f'v_add_u32 v2, {TT}, v2')
    p('v_and_b32 v0, 63, v0')
    p('v_mov_b64 v[4:5], 0\nv_mov_b64 v[6:7], 0')
    p('s_mov_b64 exec, vcc')
    p('ds_write_b128 v2, v[4:7]')
    p('s_mov_b64 exec, -1')
    p(f'''s_and_b32 s66, s2, 7
      s_lshr_b32 s67, s2, 3
      s_and_b32 s68, s66, 3
      s_lshr_b32 s69, s66, 2
      s_and_b32 s70, s67, 3
      s_lshl_b32 s71, s68, 2
      s_add_u32 s{sRB}, s71, s70
      s_lshl_b32 s{sRB2}, s68, 3
      s_lshl_b32 s72, s69, 2
      s_add_u32 s{sRB2}, s{sRB2}, s72
      s_add_u32 s{sRB2}, s{sRB2}, s70
      s_lshr_b32 s{sCB2}, s67, 2
      s_mul_i32 s{sCB}, s69, 7
      s_add_u32 s{sCB}, s{sCB}, s{sCB2}
      s_and_b32 s70, s67, 1
      s_add_u32 s71, s71, s70
      s_lshl_b32 s69, s69, 1
      s_add_u32 s71, s71, s69
      s_bfe_u32 s70, s67, 0x10001
      s_add_u32 s70, s70, 14
      s_cmp_lt_u32 s67, 28
      s_cselect_b32 s{sRB}, s{sRB}, s71
      s_cselect_b32 s{sCB}, s{sCB}, s70
      s_lshl_b32 s{sTB}, s{sRB}, 4
      s_add_u32 s{sTB}, s{sTB}, s{sCB}''')
    p(f's_cmp_ge_u32 s{sW}, 4')
    p('s_cbranch_scc1 L_S')
    st0 = (copy.deepcopy(p.vmq), copy.deepcopy(p.dsq))

    def srds(role):
        if cfg.wsoff: p(f's_add_u32 s34, s34, {cfg.wsoff}\ns_addc_u32 s35, s35, 0')
        p(f's_load_dword s{sTAG}, s[34:35], {WS_E}')
        if role == 'S':
            p(f's_cmp_eq_u32 s{sCB}, 15')
            p(f'''s_mov_b32 s{XD}, s4\ns_mov_b32 s{XD+1}, s5\ns_cselect_b32 s{XD+2}, 0, 0x200000\ns_mov_b32 s{XD+3}, 0x20000
              s_mov_b32 s{WG}, s24\ns_mov_b32 s{WG+1}, s25\ns_cselect_b32 s{WG+2}, 0, {512*2752}\ns_mov_b32 s{WG+3}, 0x20000
              s_mov_b32 s{WU}, s26\ns_mov_b32 s{WU+1}, s27\ns_mov_b32 s{WU+2}, s{WG+2}\ns_mov_b32 s{WU+3}, 0x20000''')
    def srds2(role):
        p(f's_mov_b32 s{WS}, s34\ns_mov_b32 s{WS+1}, s35\ns_mov_b32 s{WS+2}, {WS_SIZE}\ns_mov_b32 s{WS+3}, 0x20000')
        p(f's_mov_b32 s{WD}, s28\ns_mov_b32 s{WD+1}, s29\ns_mov_b32 s{WD+2}, {1376*1024}\ns_mov_b32 s{WD+3}, 0x20000')
    def mktag():
        p('s_waitcnt lgkmcnt(0)')
        p(f's_mul_i32 s{sTAG}, s{sTAG}, 0x9E3779B1\ns_add_u32 s{sTAG}, s{sTAG}, 0x7F4A7C15\ns_mov_b32 s{sTAG + 1}, s{sTAG}')
    def rot_setup():
        return f'''s_mul_i32 s{sROT}, s{sCB2}, {cfg.r2c}
          s_bfe_u32 s72, s2, 0x20003
          s_mul_i32 s72, s72, {cfg.r2j}
          s_add_u32 s{sROT}, s{sROT}, s72
          s_and_b32 s72, s2, 7
          s_mul_i32 s72, s72, {cfg.r2x}
          s_add_u32 s{sROT}, s{sROT}, s72
          s_lshr_b32 s{sROT}, s{sROT}, 4
          s_cmp_ge_u32 s{sROT}, 43
          s_cselect_b32 s72, 43, 0
          s_sub_u32 s{sROT}, s{sROT}, s72'''
    assert (7*cfg.r2c + 3*cfg.r2j + 7*cfg.r2x) // 16 < 86
    def spoll(base, n, soff, issued=False):
        L = p.newlabel('SP'); Lr = p.newlabel('SPR'); Lx = p.newlabel('SPX'); Li = p.newlabel('SPI')
        p(f's_mov_b32 s79, {cfg.spin}')
        if issued: p(f's_branch {Li}')
        p.label(L)
        p(f's_load_dwordx{n} s[{base}:{base + n - 1}], s[34:35], s{soff} glc')
        p.label(Li)
        p('s_waitcnt lgkmcnt(0)')
        for i in range(0, n, 2):
            p(f's_cmp_eq_u64 s[{base + i}:{base + i + 1}], s[{sTAG}:{sTAG + 1}]')
            p(f's_cbranch_scc0 {Lr}' if i < n - 2 else f's_cbranch_scc1 {Lx}')
        p.label(Lr)
        p(f's_sub_u32 s79, s79, 1\ns_cmp_lg_u32 s79, 0\ns_cbranch_scc1 {L}')
        p.label(Lx)
    def vpoll(n, soff):
        L = p.newlabel('VP'); Lx = p.newlabel('VPX')
        p(f'v_and_b32 v1, {n - 1}, v0\nv_lshlrev_b32 v1, {cfg.fsh}, v1\ns_mov_b32 s79, {cfg.spin}')
        p.label(L)
        p(f'buffer_load_dword v2, v1, {srd(WS)}, s{soff} offen sc1')
        p(f'v_cmp_ne_u32 vcc, s{sTAG}, v2\ns_cmp_eq_u64 vcc, 0')
        p(f's_cbranch_scc1 {Lx}')
        p(f's_sub_u32 s79, s79, 1\ns_cmp_lg_u32 s79, 0\ns_cbranch_scc1 {L}')
        p.label(Lx)
    def flag_store(soff):
        p(f'v_mov_b32 v1, s{sTAG}\nv_mov_b32 v2, 0')
        one_lane(lambda: p(f'buffer_store_dword v1, v2, {srd(WS)}, s{soff} offen sc1'))
    def finish():
        if cfg.ts:
            p('s_waitcnt vmcnt(0)')
            ts(9)
            if cfg.rt8: ts(8, True)
            if cfg.rt: p('s_memtime s[66:67]\ns_waitcnt lgkmcnt(0)\ns_sub_u32 s67, s66, s82')
            if cfg.rt and cfg.tset == 8: p('s_sub_u32 s86, s86, s82\ns_sub_u32 s90, s90, s82\ns_sub_u32 s94, s94, s82')
            if cfg.rt: p('s_mov_b32 s82, s67')
            p('s_waitcnt lgkmcnt(0)')
            if cfg.padph:
                L = p.newlabel('PAD'); Lx = p.newlabel('PADX')
                p(f's_cmp_eq_u32 s{sW}, {cfg.padw}\ns_cbranch_scc0 {Lx}')
                if cfg.padcyc: p(f's_sub_u32 s66, s{80 + 2*cfg.padph}, s82\ns_lshr_b32 s66, s66, 2')
                else: p(f's_sub_u32 s66, s{80 + 2*cfg.padph}, s80\ns_lshl_b32 s66, s66, 2')
                p(f's_min_u32 s66, s66, 20000\ns_add_u32 s66, s66, 3000')
                p.label(L)
                p(f's_memrealtime s[68:69]\ns_waitcnt lgkmcnt(0)\ns_sub_u32 s68, s68, s80\ns_cmp_lt_u32 s68, s66\ns_cbranch_scc1 {L}')
                p.label(Lx)
                p('s_endpgm')
                return
            for i in range(10): p(f'v_writelane_b32 v1, s{80 + 2*i}, {i}')
            p(f's_lshl_b32 s66, s2, 3\ns_add_u32 s66, s66, s{sW}\ns_lshl_b32 s66, s66, 6\ns_add_u32 s66, s66, {WS_DBG}')
            p('v_lshlrev_b32 v2, 2, v0')
            p('s_mov_b64 exec, 0x3ff')
            p(f'buffer_store_dword v1, v2, {srd(WS)}, s66 offen')
        p('s_endpgm')
    def piece_loc(n):
        if n >= 27: n -= 27
        groups = [(0, 4, XR + 32768, 4096), (4, 1, UR2 + 4096, 1024), (5, 1, UR2 + 8192, 1024), (6, 4, XR, 4096), (10, 3, GR, 3072),
                  (13, 3, UR, 3072), (16, 4, XR + 16384, 4096), (20, 3, GR + 12288, 3072), (23, 3, UR + 12288, 3072), (26, 1, UR2, 1024)]
        for (n0, cnt, base, stride) in groups:
            if n0 <= n < n0 + cnt: return base + 1024*(n - n0), stride

    vA4, vA3, vA1, vYA, vOut = 8, 10, 12, 14, 15
    vXa, vWg, vWu, vW1, vCS1, vCS2, vH01, vH2, vHl, vCk, vM, vWd, vMB = 16, 20, 21, 22, 23, 24, 25, 26, 27, 28, 29, 30, 31
    FR = [120, 140]
    ACC = 160
    XL, XC, MU, CSA, ONE = 32, 40, 56, 68, 116
    vSt, vXn, vLw, vSo = 60, 61, 62, 63
    LR, LD, PK = 68, 72, 76
    sHc, sHs, sHe, sFo, sFi, sXn, sSt = 6, 7, 8, 9, 10, 12, 14
    sX4, sX3, sX1, sWc, sWs, sWe, sW26 = 36, 37, 38, 39, 40, 41, 42
    xs = {2: 1, 4: 2, 8: 3}[cfg.xa]
    p(f'''v_lshrrev_b32 v6, 4, v0
      v_and_b32 v7, 15, v0
      v_lshlrev_b32 v1, 4, v7
      v_lshl_add_u32 v1, v6, 11, v1
      s_lshl_b32 s66, s{sTB}, 13
      s_lshl_b32 s67, s{sW}, 8
      s_add_u32 s66, s66, s67
      v_add_u32 v64, s66, v1
      v_lshlrev_b32 v{vHl}, 4, v0''')
    p(f's_and_b32 s74, s{sW}, 1\ns_lshr_b32 s75, s{sW}, 1')
    p(f'''v_and_b32 v1, 31, v0
      v_lshrrev_b32 v2, 5, v0
      v_bfe_u32 v3, v0, 1, 3
      v_xor_b32 v3, v3, v2
      s_lshl_b32 s66, s74, 13
      s_add_u32 s66, s66, {XR}
      v_lshl_add_u32 v4, v1, 7, s66''')
    for ks in range(4):
        p(f'v_xor_b32 v5, {2*ks}, v3\nv_lshl_add_u32 v{vXa + ks}, v5, 4, v4')
    p(f'''v_bfe_u32 v3, v0, 2, 2
      v_lshl_add_u32 v3, v2, 3, v3
      v_mul_u32_u24 v3, 192, v3
      v_and_b32 v4, 3, v0
      v_lshl_add_u32 v3, v4, 3, v3
      s_mul_i32 s66, s75, 96
      v_add_u32 v3, s66, v3
      v_bfe_u32 v4, v0, 4, 1
      v_lshl_add_u32 v5, v4, 5, v3
      v_add_u32 v{vWg}, {GR}, v5
      v_add_u32 v{vWu}, {UR}, v5
      v_mul_u32_u24 v4, {UR - GR}, v4
      v_add_u32 v3, {GR + 64}, v3
      v_add_u32 v{vW1}, v3, v4''')
    p('s_waitcnt lgkmcnt(0)')
    tn('g_karg')
    p(f'''global_load_dwordx4 {vr(XL, 4)}, v64, s[4:5]
      global_load_dwordx4 {vr(XL + 4, 4)}, v64, s[4:5] offset:1024''')
    if cfg.cpf:
        p('s_getpc_b64 s[68:69]')
        p.label('L_PC')
        p(f'''s_lshr_b32 s66, s2, 3
          s_lshl_b32 s66, s66, 2
          s_add_u32 s66, s66, s{sW}
          s_lshl_b32 s66, s66, 8
          v_lshl_add_u32 v65, v0, 7, s66
          v_min_u32 v65, L_END-L_PC, v65
          s_mov_b64 exec, 3
          global_load_dword v66, v65, s[68:69]
          s_mov_b64 exec, -1''')
    srds('G')
    p(f's_mov_b32 s{WS}, s34\ns_mov_b32 s{WS+1}, s35\ns_mov_b32 s{WS+2}, {WS_SIZE}\ns_mov_b32 s{WS+3}, 0x20000')
    p('s_barrier')
    p(f'''v_and_b32 v3, 3, v0
      v_lshlrev_b32 v3, 4, v3
      v_lshl_add_u32 v3, v6, 6, v3
      v_add_u32 v{vSt}, {LNX}, v3
      s_lshl_b32 s66, s{sW}, 4
      s_add_u32 s66, s66, {LNX}
      v_lshl_add_u32 v{vLw}, v6, 6, s66
      v_lshrrev_b32 v3, {xs}, v7
      v_lshlrev_b32 v3, {15 + xs}, v3
      v_lshl_add_u32 v3, v6, {13 + xs}, v3
      v_and_b32 v4, {cfg.xa - 1}, v7
      v_lshl_add_u32 v{vXn}, v4, 4, v3
      s_lshl_b32 s{sXn}, s{sW}, 19
      s_lshl_b32 s66, s{sTB}, {4 + xs}
      s_add_u32 s{sXn}, s{sXn}, s66
      s_add_u32 s{sXn}, s{sXn}, {WS_XNT}
      s_add_u32 s{sXn + 1}, s{sXn}, {4096*cfg.xa}
      s_lshl_b32 s{sSt}, s{sTB}, 6
      s_add_u32 s{sSt}, s{sSt}, {WS_ST}
      s_cmp_eq_u32 s{sW}, 0
      s_cselect_b32 s66, 0, {BIG}
      v_lshl_add_u32 v{vSo}, v6, 4, s66
      s_mul_i32 s66, s75, 96
      s_add_u32 s66, s66, {CSL}
      v_mul_u32_u24 v3, 192, v2
      v_lshl_add_u32 v3, v1, 1, v3
      v_add_u32 v{vCS1}, s66, v3
      v_bfe_u32 v3, v0, 4, 1
      v_mul_u32_u24 v3, 192, v3
      v_lshl_add_u32 v3, v7, 1, v3
      s_add_u32 s66, s66, 64
      v_add_u32 v{vCS2}, s66, v3
      v_mov_b32 v{vM}, {MISC}
      v_mov_b32 v7, 1
      s_mov_b32 s77, 0x3f803f80''')
    for r in range(4): p(f'v_mov_b32 v{ONE + r}, s77')
    fill = f'''s_lshl_b32 s66, s74, 9
      s_add_u32 s66, s66, {MB}
      v_lshl_add_u32 v{vMB}, v1, 3, s66
      s_mul_i32 s66, s{sCB}, 6
      s_mul_i32 s67, s75, 3
      s_add_u32 s66, s66, s67
      s_cmp_le_u32 s66, 84 @ s_cselect_b32 s67, 0, {BIG}
      v_add_u32 v{vH01}, s67, v{vHl}
      s_cmp_le_u32 s66, 83 @ s_cselect_b32 s67, 0, {BIG}
      v_add_u32 v{vH2}, s67, v{vHl}
      s_lshl_b32 s67, s{sRB}, 2
      s_lshl_b32 s68, s74, 1
      s_add_u32 s67, s67, s68
      s_mul_i32 s67, s67, 86
      s_add_u32 s66, s66, s67
      s_lshl_b32 s66, s66, 10
      s_add_u32 s70, s66, {WS_H}
      s_add_u32 s71, s70, {86*1024}
      v_bfe_u32 v3, v0, 2, 2
      v_lshl_add_u32 v3, v2, 2, v3
      v_bfe_u32 v4, v3, 1, 1
      v_lshlrev_b32 v4, 6, v4
      v_lshl_add_u32 v3, v3, 7, v4
      v_bfe_u32 v4, v0, 4, 1
      v_lshl_add_u32 v3, v4, 5, v3
      v_and_b32 v4, 3, v0
      v_lshl_add_u32 v3, v4, 3, v3
      s_lshl_b32 s66, s74, 6
      v_xor_b32 v4, s66, v3
      s_mul_i32 s66, s75, {CCH}
      s_add_u32 s66, s66, {KS + 8192}
      v_add_u32 v{vYA}, s66, v4
      s_lshl_b32 s66, s75, 6
      v_xor_b32 v3, s66, v3
      v_xor_b32 v4, 64, v3
      s_lshl_b32 s66, s75, 13
      s_add_u32 s66, s66, {XR}
      s_mul_i32 s67, s75, 6144
      s_add_u32 s67, s67, {GR}
      s_lshl_b32 s68, s75, 11
      s_add_u32 s68, s68, {UR2}
      v_add_u32 v{vA4}, s66, v3
      v_add_u32 v{vA4 + 1}, s66, v4
      v_add_u32 v{vA3}, s67, v3
      v_add_u32 v{vA3 + 1}, s67, v4
      v_add_u32 v{vA1}, s68, v3
      v_add_u32 v{vA1 + 1}, s68, v4
      s_lshl_b32 s66, s{sRB2}, 16
      s_lshl_b32 s67, s74, 15
      s_add_u32 s66, s66, s67
      s_lshl_b32 s67, s{sCB2}, 7
      s_add_u32 s66, s66, s67
      s_lshl_b32 s67, s75, 6
      s_add_u32 s66, s66, s67
      v_lshlrev_b32 v3, 10, v1
      v_lshl_add_u32 v3, v2, 4, v3
      v_add_u32 v{vOut}, s66, v3
      s_lshl_b32 s66, s75, 2
      s_add_u32 s66, s66, {MISC}
      v_mov_b32 v{vCk}, s66
      v_lshrrev_b32 v3, 3, v0
      v_and_b32 v4, 7, v0
      v_bfe_u32 v5, v0, 4, 1
      v_lshlrev_b32 v5, 2, v5
      v_xor_b32 v4, v4, v5
      v_lshlrev_b32 v4, 4, v4
      v_lshl_add_u32 v{vWd}, v3, 10, v4
      {rot_setup()}
      s_lshl_b32 s{sHs}, s{sRB2}, 1
      s_add_u32 s{sHs}, s{sHs}, s74
      s_mul_i32 s{sHs}, s{sHs}, 86
      s_mul_i32 s66, s75, 43
      s_add_u32 s{sHs}, s{sHs}, s66
      s_lshl_b32 s{sHs}, s{sHs}, 10
      s_add_u32 s{sHs}, s{sHs}, {WS_H}
      s_add_u32 s{sHe}, s{sHs}, {43*1024}
      s_lshl_b32 s66, s{sROT}, 10
      s_add_u32 s{sHc}, s{sHs}, s66
      s_lshl_b32 s{sFo}, s{sRB}, 1
      s_add_u32 s{sFo}, s{sFo}, s74
      s_lshl_b32 s{sFo}, s{sFo}, 5
      s_lshl_b32 s66, s{sCB}, 1
      s_add_u32 s{sFo}, s{sFo}, s66
      s_add_u32 s{sFo}, s{sFo}, s75
      s_lshl_b32 s{sFo}, s{sFo}, {cfg.fsh}
      s_add_u32 s{sFo}, s{sFo}, {WS_FH}
      s_lshl_b32 s{sFi}, s{sRB2}, 5
      s_mul_i32 s66, s75, 14
      s_add_u32 s{sFi}, s{sFi}, s66
      s_lshl_b32 s{sFi}, s{sFi}, {cfg.fsh}
      s_add_u32 s{sFi}, s{sFi}, {WS_FH}
      s_lshl_b32 s{sX4}, s{sW}, 12
      s_mul_i32 s{sX3}, s{sW}, 3072
      s_lshl_b32 s{sX1}, s{sW}, 10
      s_mul_i32 s{sWs}, s75, {43*16384}
      s_lshl_b32 s66, s74, 13
      s_add_u32 s{sWs}, s{sWs}, s66
      s_lshl_b32 s66, s{sCB2}, 7
      s_add_u32 s{sWs}, s{sWs}, s66
      s_add_u32 s{sWe}, s{sWs}, {43*16384}
      s_add_u32 s66, s{sROT}, 16
      s_cmp_ge_u32 s66, 43 @ s_cselect_b32 s67, 43, 0
      s_sub_u32 s66, s66, s67
      s_lshl_b32 s66, s66, 14
      s_add_u32 s{sWc}, s{sWs}, s66
      s_mov_b32 s{WD}, s28
      s_mov_b32 s{WD+1}, s29
      s_mov_b32 s{WD+2}, {1376*1024}
      s_mov_b32 s{WD+3}, 0x20000
      s_mov_b32 s{OUT}, s30
      s_mov_b32 s{OUT+1}, s31
      s_mov_b32 s{OUT+2}, 0x200000
      s_mov_b32 s{OUT+3}, 0x20000'''
    fill = [x.strip().replace(' @ ', '\n') for x in fill.split('\n')]
    nv = max(i for i, x in enumerate(fill) if x.startswith('v_')) + 1
    for _ in range(nv + cfg.gfa): p(fill.pop(0))
    tn('g_adr')
    DP = ('quad_perm:[1,0,3,2]', 'quad_perm:[2,3,0,1]', 'row_half_mirror', 'row_mirror')
    for r in range(2): p(f'v_dot2_f32_bf16 v{1 + r}, v{XL + 4*r}, s77, 0')
    tn('g_ln')
    for j in range(1, 4):
        for r in range(2): p(f'v_dot2_f32_bf16 v{1 + r}, v{XL + 4*r + j}, s77, v{1 + r}')
    un = []
    for r in range(2):
        for j in range(4):
            un += [f'v_lshlrev_b32 v{XC + 8*r + 2*j}, 16, v{XL + 4*r + j}', f'v_and_b32 v{XC + 8*r + 2*j + 1}, 0xffff0000, v{XL + 4*r + j}']
    for _ in range(3): p(un.pop(0))
    for m in DP:
        for r in range(2): p(f'v_add_f32_dpp v{1 + r}, v{1 + r}, v{1 + r} {m} row_mask:0xf bank_mask:0xf')
        for _ in range(2): p(un.pop(0))
    while un: p(un.pop(0))
    p(f'v_mul_f32 v{MU}, 0x3c000000, v1\nv_mul_f32 v{MU + 2}, 0x3c000000, v2')
    for j in range(4):
        for r in range(2):
            x = XC + 8*r + 2*j
            p(f'v_pk_add_f32 {vr(x, 2)}, {vr(x, 2)}, {vr(MU + 2*r, 2)} op_sel_hi:[1,0] neg_lo:[0,1] neg_hi:[0,1]')
    for j in range(4):
        for r in range(2):
            x = XC + 8*r + 2*j
            if j == 0: p(f'v_pk_mul_f32 {vr(2 + 2*r, 2)}, {vr(x, 2)}, {vr(x, 2)}')
            else: p(f'v_pk_fma_f32 {vr(2 + 2*r, 2)}, {vr(x, 2)}, {vr(x, 2)}, {vr(2 + 2*r, 2)}')
    for r in range(2): p(f'v_add_f32 v{MU + 2*r + 1}, v{2 + 2*r}, v{3 + 2*r}')
    for m in DP:
        for r in range(2): p(f'v_add_f32_dpp v{MU + 2*r + 1}, v{MU + 2*r + 1}, v{MU + 2*r + 1} {m} row_mask:0xf bank_mask:0xf')
    p(f's_mov_b32 exec_lo, 0x10001\ns_mov_b32 exec_hi, 0x10001\nds_write_b128 v{vLw}, {vr(MU, 4)}')
    p(f's_mov_b64 exec, 1\nds_add_u32 v{vM}, v7 offset:{C_L}\ns_mov_b64 exec, -1')
    tn('g_lnw')
    lds_spin(vM, C_L, 4, 1)
    tn('g_lnx')
    R2 = (0, 1)
    p(f'ds_read_b128 {vr(XL, 4)}, v{vSt}')
    for r in R2: p(f'v_mov_b32 v{LR + 2*r}, 0x3727c5ac')
    for r in R2: p(f'v_add_f32_dpp v{36 + r}, v{XL + 2*r}, v{XL + 2*r} quad_perm:[1,0,3,2] row_mask:0xf bank_mask:0xf')
    for r in R2: p(f'v_add_f32_dpp v{36 + r}, v{36 + r}, v{36 + r} quad_perm:[2,3,0,1] row_mask:0xf bank_mask:0xf')
    for r in R2: p(f'v_mul_f32 v{36 + r}, 0x3e800000, v{36 + r}')
    for r in R2: p(f'v_sub_f32 v{38 + r}, v{XL + 2*r}, v{36 + r}')
    for r in R2: p(f'v_mul_f32 v{38 + r}, v{38 + r}, v{38 + r}')
    for r in R2: p(f'v_fmac_f32 v{XL + 2*r + 1}, 0x43000000, v{38 + r}')
    for r in R2: p(f'v_sub_f32 v{LD + 2*r}, v{MU + 2*r}, v{36 + r}')
    for r in R2: p(f'v_add_f32_dpp v{38 + r}, v{XL + 2*r + 1}, v{XL + 2*r + 1} quad_perm:[1,0,3,2] row_mask:0xf bank_mask:0xf')
    for r in R2: p(f'v_cvt_pk_bf16_f32 v{MU + 2*r}, -v{36 + r}, -v{36 + r}')
    for r in R2: p(f'v_add_f32_dpp v{38 + r}, v{38 + r}, v{38 + r} quad_perm:[2,3,0,1] row_mask:0xf bank_mask:0xf')
    for r in R2: p(f'v_fmac_f32 v{LR + 2*r}, 0x3b000000, v{38 + r}')
    for r in R2: p(f'v_rsq_f32 v{LR + 2*r}, v{LR + 2*r}')
    for r in R2: p(f'v_mul_f32 v{LD + 2*r}, v{LD + 2*r}, v{LR + 2*r}')
    for j in range(4):
        for r in R2:
            x = XC + 8*r + 2*j
            p(f'v_pk_fma_f32 {vr(x, 2)}, {vr(x, 2)}, {vr(LR + 2*r, 2)}, {vr(LD + 2*r, 2)} op_sel_hi:[1,0,0]')
    pos = lambda i: 4*(i & 1) + 2*(i >> 2) + ((i >> 1) & 1)
    for z in range(2):
        for i in range(z, 8, 2): p(f'v_cvt_pk_bf16_f32 v{PK + pos(i)}, v{XC + i}, v{XC + 8 + i}')
    for r in R2: p(f'v_mul_f32 v{MU + 2*r + 1}, v{LR + 2*r}, v{LR + 2*r}')
    for k in range(2):
        for z in range(2): p(f'v_permlane32_swap_b32 v{PK + 4*z + k}, v{PK + 4*z + k + 2}')
    for z in range(2):
        for k in range(2): p(f'v_permlane16_swap_b32 v{PK + 4*z + 2*k}, v{PK + 4*z + 2*k + 1}')
    for z in range(2):
        if not cfg.nost & 1: p(f'buffer_store_dwordx4 {vr(PK + 4*z, 4)}, v{vXn}, {srd(WS)}, s{sXn + z} offen sc1')
    p(f's_mov_b32 exec_lo, 0x10001\ns_mov_b32 exec_hi, 0x10001\nbuffer_store_dwordx4 {vr(MU, 4)}, v{vSo}, {srd(WS)}, s{sSt} offen sc1\ns_mov_b64 exec, -1')
    tn('g_lns')
    for _ in range(cfg.gfb):
        if fill: p(fill.pop(0))
    mktag()
    p('s_barrier')
    tn('g_b0')
    def reads(g):
        s, ks = g >> 2, g & 3; sl = s % 3; b = FR[g & 1]
        wo = sl * 12288 + ks * 16 * 192
        xr = lambda tt: f'ds_read_b128 {vr(b + 12 + 4*tt, 4)}, v{vXa + ks} offset:{sl*16384 + tt*4096}'
        if g == 32:
            xr = lambda tt: '\n'.join(f'ds_read2_b32 {vr(b + 12 + 4*tt + 2*k, 2)}, v{vMB} offset0:{64*tt} offset1:{64*tt}' for k in range(2))
        wr = lambda T, j: f'ds_read_b64_tr_b16 {vr(b + 4*T + 2*j, 2)}, v{(vWg, vW1, vWu)[T]} offset:{wo + j*768}'
        if g == 32: return [xr(0), wr(0, 0), wr(0, 1), wr(2, 0), wr(2, 1), wr(1, 0), wr(1, 1), xr(1)]
        return [xr(0), wr(0, 0), wr(0, 1), xr(1), wr(1, 0), wr(1, 1), wr(2, 0), wr(2, 1)]
    extra = {}
    def add(g, m, item): extra.setdefault((g, m), []).append(item)
    add(11, 1, 's_waitcnt vmcnt(0)')
    add(31, 0, lambda: lds_pre(vM, C_S, 1))
    add(31, 2, lambda: (lds_post(vM, C_S, 4, 1), tn('g_b8')))
    for g in range(32):
        nxt = reads(g + 1)
        if (g & 3) == 3:
            dist = {2: nxt[0:2], 3: nxt[2:4], 4: nxt[4:6], 5: nxt[6:8]}
            if g < 31: add(g, 2, 'BARRIER')
        else:
            dist = {0: nxt[0:2], 1: nxt[2:3], 2: nxt[3:5], 3: nxt[5:6], 4: nxt[6:7], 5: nxt[7:8]}
        for m, l in dist.items():
            for x in l: add(g, m, x)
    for g in range(2):
        for T in range(3):
            a = CSA + 16*T
            add(g, 2*T + 1, ('MFMA', f'v_mfma_f32_32x32x16_bf16 {vr(a, 16)}, {vr(ONE, 4)}, {vr(FR[g] + 4*T, 4)}, {"0" if g == 0 else vr(a, 16)}'))
    add(2, 3, f'v_permlane32_swap_b32 v{CSA}, v{CSA + 32}')
    add(2, 4, f'v_cvt_pk_bf16_f32 v{CSA}, v{CSA}, v{CSA + 16}')
    add(2, 5, f'ds_write_b16 v{vCS1}, v{CSA}')
    add(3, 0, f'ds_write_b16_d16_hi v{vCS2}, v{CSA}')
    for x in reads(0): p(x)
    nb = 0
    for g in range(32):
        b = FR[g & 1]
        for m in range(6):
            T, tt = m >> 1, m & 1
            a = ACC + 16 * (2*T + tt)
            c = '0' if g == 0 else vr(a, 16)
            p(f'v_mfma_f32_32x32x16_bf16 {vr(a, 16)}, {vr(b + 4*T, 4)}, {vr(b + 12 + 4*tt, 4)}, {c}')
            late = []
            ex = extra.get((g, m), [])
            for x in ex:
                if x == 'BARRIER':
                    p('s_waitcnt lgkmcnt(0)\ns_barrier'); nb += 1
                    if nb == cfg.gprio: p('s_setprio 2')
                    tn(f'g_b{nb}')
                elif isinstance(x, tuple): late.append(x[1])
                else: emit(x)
            if g >= cfg.gf0 and 'BARRIER' not in ex:
                for _ in range(cfg.gf):
                    if fill: p(fill.pop(0))
            for x in late: p(x)
        if g == 29: assert not fill
    for tt in range(2):
        for T in (0, 2, 1):
            a = ACC + 16 * (2*T + tt)
            p(f'v_mfma_f32_32x32x16_bf16 {vr(a, 16)}, {vr(FR[0] + 4*T, 4)}, {vr(FR[0] + 12 + 4*tt, 4)}, {vr(a, 16)}')
    lds_add(vM, C_G, 7)
    tn('g_corr')
    hmod = '' if cfg.wbl2 else [' sc1', ' sc0 sc1', ' nt sc1', ' nt sc0 sc1'][cfg.hs]
    for tt in range(2):
        for q in range(3):
            if q < 2: ga, ua = ACC + 16*tt + 8*q, ACC + 16*(4 + tt) + 8*q
            else: ga, ua = ACC + 16*(2 + tt), ACC + 16*(2 + tt) + 8
            for e in range(8): p(f'v_mul_f32 v{ga + e}, v{ga + e}, v{ua + e}')
            for j in range(4): p(f'v_cvt_pk_bf16_f32 v{ga + j}, v{ga + 2*j}, v{ga + 2*j + 1}')
            hst = p(f'buffer_store_dwordx4 {vr(ga, 4)}, v{vH2 if q == 2 else vH01}, {srd(WS)}, s{70 + tt} offen offset:{1024*q}{hmod}')
    if cfg.wbl2:
        p('s_waitcnt vmcnt(0)')
        hst = p('buffer_wbl2 sc1')
    tn('g_hst')
    if cfg.gp2 != 2: p(f's_setprio {cfg.gp2}')
    HW = cfg.hwin; HB = 176; AC2 = 224; RF = 32; NRF = 16; RING = cfg.adist + 1
    assert HW <= 12 and RING <= 3
    def afr(n): return RF + 8 * (n if n < NRF else (n - NRF) % RING)
    def aread(n, dt, s):
        base, stride = piece_loc(n)
        reg, rb_ = {4096: (vA4, XR), 3072: (vA3, GR), 1024: (vA1, UR2)}[stride]
        p(f'ds_read_b64_tr_b16 {vr(afr(n) + 4*dt + 2*s, 2)}, v{reg + dt} offset:{base - rb_ + stride*s}')
    def g_wd(n):
        base, stride = piece_loc(n)
        p(f's_add_u32 m0, s{ {4096: sX4, 3072: sX3, 1024: sX1}[stride] }, {base}')
        p(f'buffer_load_dwordx4 v{vWd}, {srd(WD)}, s{sWc} offen lds')
        adv = f's_add_u32 s{sWc}, s{sWc}, 16384\ns_cmp_eq_u32 s{sWc}, s{sWe}\ns_cselect_b32 s{sWc}, s{sWs}, s{sWc}'
        if n < 42: p(adv)
    def grpC():
        lds_spin(vM, C_G, 4, 1)
        for n in range(16, 27): g_wd(n)
        tn('g_c')
    def ackflag():
        p.wait_vm(hst)
        tn('g_ack')
        flag_store(sFo)
        p(f'v_lshrrev_b32 v1, 10, v{vOut}\nv_lshlrev_b32 v1, 3, v1\ns_movk_i32 s66, {WS_ST + 4}')
        p(f'buffer_load_dword v160, v1, {srd(WS)}, s66 offen sc1')
    def preread():
        lds_spin(vCk, C_W, 2, 1)
        tn('g_cw')
        for n in range(NRF):
            for dt in range(2):
                for s_ in range(2): aread(n, dt, s_)
        lds_add(vCk, C_R, 7)
        tn('g_pre')
    for x in {0: (ackflag, grpC, preread), 1: (grpC, ackflag, preread), 2: (grpC, preread, ackflag), 3: (preread, ackflag, grpC), 4: (preread, grpC, ackflag)}[cfg.cfirst]: x()
    lds_spin(vCk, C_R, 2, 1)
    early = cfg.spoll & 1 and cfg.pearly
    for n in range(27, 43):
        if early and n == 27 + cfg.pearly: p(f's_load_dwordx16 s[16:31], s[34:35], s{sFi} glc')
        g_wd(n)
    tn('g_d')
    if cfg.spoll & 1: spoll(16, 16, sFi, early)
    else: vpoll(16, sFi)
    tn('g_fh')
    if cfg.gp3 != cfg.gp2: p(f's_setprio {cfg.gp3}')
    def hload(n):
        if cfg.g2x == 1 and n >= HW: return
        hm = [" sc1", "", " nt", " sc0 sc1", " nt sc1"][cfg.hl]
        if cfg.hat: p(f'buffer_load_dwordx4 {vr(HB + 4*(n % HW), 4)}, off, {srd(44)}, s{sHc}{hm}')
        else: p(f'buffer_load_dwordx4 {vr(HB + 4*(n % HW), 4)}, v{vHl}, {srd(WS)}, s{sHc} offen{hm}')
        if n < 42 and cfg.g2x != 2: p(f's_add_u32 s{sHc}, s{sHc}, 1024\ns_cmp_eq_u32 s{sHc}, s{sHe}\ns_cselect_b32 s{sHc}, s{sHs}, s{sHc}')
    if cfg.hat: p(f's_mov_b32 s44, s34\ns_or_b32 s45, s35, 0x100000\ns_mov_b32 s46, {WS_SIZE}\ns_mov_b32 s47, 0x800000')
    for n in range(HW): hload(n)
    fX, fR, fB, fY, fP, vXt = 56, 160, 72, 88, 96, 161
    g2 = {}
    def add2(n, m, x): g2.setdefault((n, m), []).append(x)
    xa_ = [f's_mul_i32 s66, s75, {CCH}\ns_lshl_b32 s67, s74, 11\ns_add_u32 s66, s66, s67\ns_add_u32 s66, s66, {KS + 12288}',
           'v_and_b32 v1, 31, v0', 'v_bfe_u32 v2, v0, 2, 2', 'v_lshl_add_u32 v1, v1, 6, s66', 'v_lshl_add_u32 v1, v2, 4, v1',
           'v_lshrrev_b32 v2, 5, v0', f'v_lshl_add_u32 v{vXt}, v2, 3, v1'] + [f'v_xor_b32 v{vXt + j}, {16*j}, v{vXt}' for j in (1, 2, 3)]
    xa_ += [f's_lshl_b32 s66, s{sW}, 12\ns_add_u32 s66, s66, {XR + 16384}\nv_add_u32 v5, s66, v{vHl}',
            f's_xor_b32 s66, s{sW}, 2\ns_lshl_b32 s66, s66, 12\ns_add_u32 s66, s66, {XR + 16384}\nv_add_u32 v6, s66, v{vHl}']
    for k, x in enumerate(xa_): add2(1 + k // 2, k & 1, x)
    assert cfg.xstep >= 9
    add2(cfg.xstep - 1, 0, lambda: lds_pre(vCk, C_X, 4)); add2(cfg.xstep, 0, lambda: lds_post(vCk, C_X, 2, 4))
    for j in range(4): add2(cfg.xstep, 1, f'ds_read_b64 {vr(fX + 2*j, 2)}, v{vXt + j}')
    xw = []
    for j in range(8): xw += [f'v_lshlrev_b32 v{fB + 2*j}, 16, v{fX + j}', f'v_and_b32 v{fB + 2*j + 1}, 0xffff0000, v{fX + j}']
    xs0 = cfg.xstep + 2
    for k, x in enumerate(xw): add2(xs0 + k // 4, (k >> 1) & 1, x)
    assert xs0 + len(xw) // 4 <= cfg.ystep
    n2 = NRF - cfg.adist
    add2(0, 0, lambda: lds_add(vCk, C_W3, 7))
    add2(n2 - 2, 0, lambda: lds_pre(vCk, C_W3, 3)); add2(n2 - 1, 1, lambda: lds_post(vCk, C_W3, 2, 3))
    add2(24, 1, lambda: (lds_add(vCk, C_F, 7), tn('g_n27')))
    add2(cfg.ystep - 1, 0, lambda: lds_pre(vCk, C_Y, 3)); add2(cfg.ystep, 0, lambda: (lds_post(vCk, C_Y, 2, 3), tn('g_y')))
    for Q in range(4): add2(cfg.ystep, 1, f'ds_read_b64_tr_b16 {vr(fY + 2*Q, 2)}, v{vYA} offset:{1024*Q}')
    yw = []
    for j in range(8):
        yw += [f'v_lshlrev_b32 v1, 16, v{fY + j}', f'v_and_b32 v2, 0xffff0000, v{fY + j}',
               f'v_add_f32 v{fB + 2*j}, v{fB + 2*j}, v1', f'v_add_f32 v{fB + 2*j + 1}, v{fB + 2*j + 1}, v2']
    ng = 2*(42 - cfg.ystep) - 2
    per = -(-len(yw) // ng)
    for k, x in enumerate(yw): gi = 2*(cfg.ystep + 1) + 1 + k // per; add2(gi >> 1, gi & 1, x)
    add2(40, 0, lambda: lds_pre(vCk, C_F, 4)); add2(41, 1, lambda: lds_post(vCk, C_F, 2, 4))
    for n in range(43):
        for m in range(2):
            dt = m if n < 42 else 1 - m
            a = AC2 + 16 * dt
            c = '0' if n == 0 else vr(a, 16)
            p(f'v_mfma_f32_32x32x16_bf16 {vr(a, 16)}, {vr(afr(n) + 4*dt, 4)}, {vr(HB + 4*(n % HW), 4)}, {c}')
            if n == 0 and m == 0: tn('g_h0')
            if n == 16 and m == 0: tn('g_n16')
            if cfg.g2o == 0:
                if NRF <= n + cfg.adist <= 42:
                    for s_ in range(2): aread(n + cfg.adist, m, s_)
                if m == 1 and n + HW < 43: hload(n + HW)
            elif cfg.g2o == 1:
                if m == 0 and n >= 1 and n - 1 + HW < 43: hload(n - 1 + HW)
                if m == 1 and NRF <= n + cfg.adist <= 42:
                    for dd in range(2):
                        for s_ in range(2): aread(n + cfg.adist, dd, s_)
            elif cfg.g2o == 2:
                if m == 1 and n + HW < 43: hload(n + HW)
                if m == 0 and NRF <= n + cfg.adist <= 42:
                    for dd in range(2):
                        for s_ in range(2): aread(n + cfg.adist, dd, s_)
            elif cfg.g2o == 3:
                if m == 1 and n + HW < 43: hload(n + HW)
                if NRF <= n + cfg.adist <= 42:
                    for s_ in range(2): aread(n + cfg.adist, m, s_)
            for x in g2.get((n, m), []): emit(x)
    tn('g_g2')
    for Q in range(4): p(f'ds_write_b128 v5, {vr(AC2 + 16 + 4*Q, 4)} offset:{1024*Q}')
    for e in range(16): p(f'v_fmac_f32 v{fB + e}, v{AC2 + e}, v{fR}')
    p('s_waitcnt lgkmcnt(0)\ns_barrier')
    ts(8)
    for Q in range(4): p(f'ds_read_b128 {vr(fP + 4*Q, 4)}, v6 offset:{1024*Q}')
    for h in range(2):
        for e in range(8*h, 8*h + 8): p(f'v_fmac_f32 v{fB + e}, v{fP + e}, v{fR}')
        for j in range(4*h, 4*h + 4): p(f'v_cvt_pk_bf16_f32 v{fX + j}, v{fB + 2*j}, v{fB + 2*j + 1}')
        p(f'v_permlane32_swap_b32 v{fX + 4*h}, v{fX + 4*h + 2}\nv_permlane32_swap_b32 v{fX + 4*h + 1}, v{fX + 4*h + 3}')
        p(f'buffer_store_dwordx4 {vr(fX + 4*h, 4)}, v{vOut}, {srd(OUT)}, 0 offen offset:{32*h}')
    finish()

    p.label('L_S')
    p.vmq, p.dsq = st0
    prio = [0]
    def setprio(x):
        if prio[0] != x: p(f's_setprio {x}'); prio[0] = x
    setprio((cfg.sprio >> 8) & 1)
    vXo, vWo, vWd, vIdx, vL16, vPar = 10, 14, 17, 20, 31, 32
    LAM, Wv, P1, P2, P4, Q1, Q2, Q4, Q8, Q16, E1, E2, E4, E8, T0, T1 = range(40, 72, 2)
    hW, hP1, hP2, hP4, hE1, hE2, hE4, hE8 = range(72, 80)
    hq = lambda j: 79 + j
    vSR, vDW, vDR = 109, 110, 111
    AFr, BFr, DK = 112, 144, 176
    vTA, vCA, vUB, vXB, vYS, vYL, vYW, vCk, vF, vUo, vPoll, vM, vOne, vCSr, vXS = 224, 228, 229, 233, 234, 235, 236, 237, 238, 239, 240, 244, 245, 248, 226
    sX4, sX3, sX1, sWc, sWs, sWe, sYB, sCS, sFA, sFYo, sFYi = 6, 7, 8, 9, 10, 11, 22, 30, 31, 32, 33
    p(f'''s_sub_u32 s74, s{sW}, 4
      s_lshr_b32 s75, s74, 1
      s_and_b32 s77, s74, 1
      s_lshr_b32 s66, s2, 3
      s_lshl_b32 s66, s66, 1
      s_add_u32 s66, s66, s75
      s_lshl_b32 s66, s66, 3
      s_and_b32 s67, s2, 7
      s_add_u32 s73, s66, s67
      s_lshl_b32 s67, s73, 8
      s_lshl_b32 s68, s77, 7
      s_add_u32 s67, s67, s68
      v_lshl_add_u32 v18, v0, 1, s67
      s_lshl_b32 s66, s73, 1
      v_mov_b32 v19, s66''')
    def par_loads():
        p(f'global_load_ushort v{vPar + 6}, v19, s[18:19]')
        for i in range(6): p(f'global_load_ushort v{vPar + i}, v18, s[{6 + 2*i}:{7 + 2*i}]')
        p(f'global_load_ushort v{vPar + 7}, v19, s[20:21]')
    p(f'''s_and_b32 s66, s{sRB}, 1
      s_lshl_b32 s67, s66, 2
      v_and_b32 v1, 7, v0
      v_lshrrev_b32 v2, 4, v0
      v_xor_b32 v1, v1, v2
      v_xor_b32 v1, s67, v1
      v_lshrrev_b32 v2, 3, v0
      s_lshl_b32 s68, s74, 15
      v_lshl_add_u32 v2, v2, 10, s68
      v_lshl_add_u32 v{vXo}, v1, 4, v2
      v_xor_b32 v1, 4, v1
      v_lshl_add_u32 v2, v1, 4, v2
      v_add_u32 v{vXo + 1}, {7168}, v2
      v_add_u32 v{vXo + 2}, {2*7168}, v{vXo}
      v_add_u32 v{vXo + 3}, {3*7168}, v2''')
    wcalc = lambda i: f'''v_add_u32 v1, {64*i}, v0
          v_mul_u32_u24 v2, 0x5556, v1
          v_lshrrev_b32 v2, 18, v2
          v_mul_u32_u24 v3, 12, v2
          v_sub_u32 v3, v1, v3
          v_add_u32 v2, s33, v2
          v_xor_b32 v2, s32, v2
          v_lshlrev_b32 v3, 4, v3
          v_mad_u32_u24 v2, v2, s31, v3
          v_subrev_u32 v{vWo + i}, {1024*i}, v2'''
    p(f'''s_lshl_b32 s66, s74, 12
      s_add_u32 s66, s66, {XR}
      s_mul_i32 s68, s74, 3072
      s_add_u32 s67, s68, {GR}
      s_add_u32 s68, s68, {UR}
      s_lshl_b32 s69, s{sRB}, 17
      s_mul_i32 s70, s{sCB}, 192
      s_lshr_b32 s71, s{sRB}, 1
      v_lshlrev_b32 v{vL16}, 4, v0''')
    if cfg.ypois: p('v_mov_b64 v[4:5], -1\nv_mov_b64 v[6:7], -1')
    p('s_waitcnt lgkmcnt(0)')
    tn('s_karg')
    p('s_barrier')
    if cfg.parfirst: par_loads()
    srds('S')
    m0 = [None]
    def setm0(key, text):
        if m0[0] != key: p(text); m0[0] = key
    slabh = {}
    def dma_items(s):
        sl = s % 3
        it = []
        def x(i):
            if i == 0:
                p(f's_add_u32 s78, s71, {s}\ns_and_b32 s78, s78, 7\ns_lshl_b32 s76, s78, 7\ns_add_u32 s76, s76, s69')
                p(f's_mul_i32 s23, s78, {64*2752}\ns_add_u32 s23, s23, s70')
            setm0(('x', s), f's_add_u32 m0, s66, {sl*16384}')
            p(f'buffer_load_dwordx4 v{vXo + i}, {srd(XD)}, s76 offen offset:{1024*i} lds')
        def w(k, i):
            setm0(('w', s, k), f's_add_u32 m0, s{67 + k}, {sl*12288}')
            slabh[s] = p(f'buffer_load_dwordx4 v{vWo + i}, {srd((WG, WU)[k])}, s23 offen offset:{1024*i} lds')
        for i in range(4): it.append(lambda i=i: x(i))
        for k in range(2):
            for i in range(3): it.append(lambda k=k, i=i: w(k, i))
        return it
    def seg(work, dma=()):
        work = list(work); dma = list(dma)
        gap = max(1, -(-len(work) // len(dma))) if dma else len(work)
        if cfg.dmaf and dma: gap = min(gap, cfg.dmaf - 1)
        while work or dma:
            if dma: emit(dma.pop(0))
            for _ in range(gap if dma else len(work)):
                if work: emit(work.pop(0))
    d0 = dma_items(0)
    p(f's_and_b32 s32, s{sRB}, 1\ns_lshl_b32 s32, s32, 5\ns_lshl_b32 s33, s74, 4\ns_movk_i32 s31, 2752')
    for i in range(4):
        emit(d0.pop(0))
        if i < 3: p(wcalc(i))
    if not cfg.parfirst: par_loads()
    srds2('S')
    p(f's_lshl_b32 s{sYB}, s73, 12\ns_add_u32 s{sYB}, s{sYB}, {WS_YT}')
    d1 = dma_items(1)
    if cfg.ypois:
        p(f's_lshl_b32 s72, s77, 11\ns_add_u32 s72, s72, s{sYB}')
        d1.insert(9, f'buffer_store_dwordx4 v[4:7], v{vL16}, {srd(WS)}, s72 offen sc1\nbuffer_store_dwordx4 v[4:7], v{vL16}, {srd(WS)}, s72 offen offset:1024 sc1')
    sT0 = 17
    vTX, vTY = vTA, vTA + 1
    w_idx = []
    A = w_idx.append
    A('v_and_b32 v1, 31, v0'); A('v_lshrrev_b32 v2, 5, v0')
    A(f's_xor_b32 s24, s74, 1\ns_mul_i32 s24, s24, 8704\ns_add_u32 s24, s24, {KS}'); A(f'v_add_u32 v{vDR}, s24, v{vL16}')
    A(f'''s_mul_i32 s{sT0}, s75, {TCH}
      s_add_u32 s{sT0}, s{sT0}, {TT + 16}
      s_mul_i32 s18, s77, 62
      s_add_u32 s18, s18, 128
      s_lshl_b32 s19, s77, 3
      s_add_u32 s19, s19, s{sT0}
      s_add_u32 s19, s19, 1024''')
    A('v_sub_u32 v8, 2, v2'); A('v_lshlrev_b32 v3, v8, v1'); A('v_mad_u32_u24 v3, v2, s18, v3'); A(f'v_lshl_add_u32 v{vTX}, v3, 2, s19')
    A(f'''s_mul_i32 s18, s77, 124
      s_add_u32 s18, s18, 4
      s_lshl_b32 s19, s77, 11
      s_add_u32 s19, s19, s{sT0}
      s_mul_i32 s20, s77, 3
      s_sub_u32 s20, 3, s20''')
    A('v_lshlrev_b32 v3, s20, v1'); A('v_mad_u32_u24 v3, v2, s18, v3'); A(f'v_lshl_add_u32 v{vTY}, v3, 2, s19')
    w_idxB = w_idx
    w_idx = []
    A = w_idx.append
    A(f's_mul_i32 s25, s74, 8704'); A(f's_add_u32 s25, s25, {KS}')
    A('v_and_b32 v1, 31, v0'); A('v_lshrrev_b32 v2, 5, v0'); A('v_mul_u32_u24 v3, 272, v1'); A('v_lshl_add_u32 v3, v2, 4, v3')
    A(f'v_add_u32 v{vSR}, s25, v3'); A(f'v_add_u32 v{vDW}, s25, v{vL16}')
    A(f'v_mov_b32 v{vM}, {MISC}'); A(f'v_mov_b32 v{vOne}, 1')
    A(f's_lshl_b32 s24, s75, 2\ns_add_u32 s24, s24, {MISC}'); A(f'v_mov_b32 v{vCk}, s24')
    A(f's_mul_i32 s24, s74, 96\ns_add_u32 s24, s24, {CSL}'); A(f'v_add_u32 v{vCSr}, s24, v{vL16}')
    A(f'''s_mul_i32 s{sCS}, s{sCB}, 6144
      s_mul_i32 s24, s{sRB}, 192
      s_add_u32 s{sCS}, s{sCS}, s24
      s_mul_i32 s24, s75, 3072
      s_add_u32 s{sCS}, s{sCS}, s24
      s_mul_i32 s24, s77, 96
      s_add_u32 s{sCS}, s{sCS}, s24
      s_add_u32 s{sCS}, s{sCS}, {WS_CSP}
      s_lshl_b32 s{sFA}, s{sTB}, 2
      s_add_u32 s{sFA}, s{sFA}, {WS_FA}
      s_cmp_eq_u32 s74, 0
      s_cselect_b32 s{sFA}, s{sFA}, {BIG}''')
    A(lambda: tn('s_idx'))

    def cmul(o, d, x, y, t):
        o.append(f'v_pk_mul_f32 {vr(t, 2)}, {vr(x, 2)}, {vr(y, 2)} op_sel:[0,0] op_sel_hi:[1,0]')
        o.append(f'v_pk_fma_f32 {vr(d, 2)}, {vr(x, 2)}, {vr(y, 2)}, {vr(t, 2)} op_sel:[1,1,0] op_sel_hi:[0,1,1] neg_lo:[1,0,0]')
    tv = [0]
    def hmul(o, d, x, y):
        t = 107 + tv[0] % 2; tv[0] += 1
        o.append(f'v_pk_mul_f16 v{t}, v{x}, v{y} op_sel:[0,0] op_sel_hi:[1,0]')
        o.append(f'v_pk_fma_f16 v{d}, v{x}, v{y}, v{t} op_sel:[1,1,0] op_sel_hi:[0,1,1] neg_lo:[1,0,0]')
    def put(o, row, r):
        o.append(lambda: (setm0('ks', 's_mov_b32 m0, s25'), p(f'ds_write_addtid_b32 v{r} offset:{272*row}')))
    w_set = []
    A = w_set.append
    for i in (6, 0, 1, 2, 3, 4, 5, 7): A(f'v_lshlrev_b32 v{vPar + i}, 16, v{vPar + i}')
    A(lambda: tn('s_par'))
    ld = vPar + 6
    A(f's_mov_b32 s24, {LOG2E}'); A(f'v_mul_f32 v1, s24, v{ld}'); A(f'v_fma_f32 v2, v{ld}, s24, -v1')
    A(f'v_fmac_f32 v2, {LOG2E_LO}, v{ld}'); A('v_exp_f32 v1, v1'); A(f'v_mul_f32 v2, {LN2}, v2'); A('v_fmac_f32 v1, v1, v2')
    A('v_cvt_pk_bf16_f32 v1, v1, v1'); A('v_and_b32 v1, 0xffff0000, v1')
    for i in range(4): A(f'v_mul_f32 v{vPar + i}, v{vPar + i}, v1')
    cmul(w_set, Wv, vPar + 4, vPar + 2, T0)
    A(f'v_mul_f32 v{LAM}, s24, v{vPar}'); A(f'v_mul_f32 v{LAM + 1}, {INV2PI}, v{vPar + 1}')
    A(f'v_max_f32 v8, |v{Wv}|, |v{Wv + 1}|')
    mx = [f'v_max_u32_dpp v8, v8, v8 {m} row_mask:0xf bank_mask:0xf' for m in DP]
    for (dst, n) in ((P1, 1), (Q1, 8), (E1, 256)):
        if n == 1: A(f'v_exp_f32 v1, v{LAM}'); A(f'v_fract_f32 v2, v{LAM + 1}')
        else:
            lit = {8: 0x41000000, 256: 0x43800000}[n]
            A(f'v_mul_f32 v1, {lit}, v{LAM}'); A(f'v_mul_f32 v2, {lit}, v{LAM + 1}'); A('v_exp_f32 v1, v1'); A('v_fract_f32 v2, v2')
        if mx: A(mx.pop(0))
        A('v_cos_f32 v3, v2'); A(f'v_sin_f32 v{dst + 1}, v2')
        if mx: A(mx.pop(0))
        A(f'v_mul_f32 v{dst}, v1, v3'); A(f'v_mul_f32 v{dst + 1}, v1, v{dst + 1}')
    for k in range(4): A(f'v_readlane_b32 s{26 + k}, v8, {16*k}')
    cmul(w_set, P2, P1, P1, T0); cmul(w_set, E2, E1, E1, T1)
    A(f's_max_u32 s26, s26, s27\ns_max_u32 s28, s28, s29\ns_max_u32 s26, s26, s28\ns_lshr_b32 s26, s26, 23\ns_sub_u32 s26, 266, s26\ns_min_u32 s26, s26, 253')
    A(f's_sub_u32 s27, 254, s26\ns_lshl_b32 s27, s27, 23\ns_lshl_b32 s26, s26, 23')
    cmul(w_set, P4, P2, P2, T0); cmul(w_set, E4, E2, E2, T1)
    A(f'v_mul_f32 v{Wv}, s26, v{Wv}'); A(f'v_mul_f32 v{Wv + 1}, s26, v{Wv + 1}')
    cmul(w_set, Q2, Q1, Q1, T0); cmul(w_set, E8, E4, E4, T1)
    for (h, f) in ((hW, Wv), (hP1, P1), (hE1, E1), (hP2, P2)): A(f'v_cvt_pk_f16_f32 v{h}, v{f}, -v{f + 1}')
    cmul(w_set, Q4, Q2, Q2, T0)
    for (h, f) in ((hE2, E2), (hP4, P4)): A(f'v_cvt_pk_f16_f32 v{h}, v{f}, -v{f + 1}')
    cmul(w_set, Q8, Q4, Q4, T0)
    for (h, f) in ((hE4, E4), (hE8, E8)): A(f'v_cvt_pk_f16_f32 v{h}, v{f}, -v{f + 1}')
    cmul(w_set, Q16, Q8, Q8, T0)
    for (j, f) in ((1, Q1), (2, Q2), (4, Q4), (8, Q8), (16, Q16)): A(f'v_cvt_pk_f16_f32 v{hq(j)}, v{f}, v{f + 1}')
    w_k = []
    keep = {0: hW, 1: 96, 2: 97, 3: 98, 8: 99, 9: 100, 12: 101, 14: 102}
    ov = [0]
    rows = [(1, 0, hP1), (8, 0, hE1), (2, 0, hP2), (12, 0, hE2), (3, 1, hP2), (9, 8, hP2), (14, 8, hE2), (4, 0, hP4), (5, 1, hP4), (6, 2, hP4),
            (7, 3, hP4), (10, 8, hP4), (11, 9, hP4), (13, 12, hP4), (15, 14, hP4), (16, 0, hE4), (17, 8, hE4), (18, 12, hE4), (19, 14, hE4), (20, 0, hE8)]
    put(w_k, 0, hW)
    pend = None
    for (row, src, fac) in rows:
        if row in keep: d = keep[row]
        else: d = 103 + ov[0] % 4; ov[0] += 1
        hmul(w_k, d, keep[src], fac)
        if pend: put(w_k, *pend)
        pend = (row, d)
    put(w_k, *pend)
    for ks in range(8): w_k.append(f'ds_read_b128 {vr(AFr + 4*ks, 4)}, v{vSR} offset:{32*ks}')
    w_k.append('v_mov_b32 v1, 0x3c00'); put(w_k, 0, 1)
    for j in (1, 2, 4, 8, 16): put(w_k, j, hq(j))
    pend = None
    for j in [3, 5, 6, 7] + list(range(9, 16)) + list(range(17, 32)):
        hb = 1 << (j.bit_length() - 1)
        if j < 16: d = hq(j)
        else: d = 103 + ov[0] % 4; ov[0] += 1
        hmul(w_k, d, hq(j - hb), hq(hb))
        if pend: put(w_k, *pend)
        pend = (j, d)
    put(w_k, *pend)
    for ks in range(8): w_k.append(f'ds_read_b128 {vr(BFr + 4*ks, 4)}, v{vSR} offset:{32*ks}')
    for ks in range(8):
        w_k.append(f'v_mfma_f32_32x32x16_f16 {vr(DK, 16)}, {vr(AFr + 4*ks, 4)}, {vr(BFr + 4*ks, 4)}, {"0" if ks == 0 else vr(DK, 16)}')
    def two_way(f0, f1):
        L1 = p.newlabel('HF'); L2 = p.newlabel('HFX')
        p(f's_cmp_eq_u32 s77, 0\ns_cbranch_scc0 {L1}')
        p.cond_begin(); f0(); p(f's_branch {L2}'); p.cond_end()
        p.label(L1)
        p.cond_begin(); f1(); p.cond_end()
        p.label(L2)
    def xadr0():
        p(f'''s_sub_u32 s18, s{sT0}, 12
          s_add_u32 s19, s18, 512
          v_lshl_add_u32 v1, v0, 5, s18
          v_lshl_add_u32 v2, v0, 4, s19
          v_min_u32 v21, v1, v2
          v_lshrrev_b32 v1, 5, v0
          v_add_u32 v2, 31, v0
          v_mad_i32_i24 v22, v1, -4, v21
          v_lshrrev_b32 v2, 6, v2
          v_mad_i32_i24 v23, v1, -8, v21
          v_lshl_add_u32 v20, v2, 2, v21
          v_mad_i32_i24 v24, v1, -12, v21
          v_lshrrev_b32 v1, 1, v0
          v_mul_u32_u24 v1, {CST - 32}, v1
          v_add_u32 v25, v1, v{vXB}
          v_mov_b64 v[4:5], 0
          v_mov_b64 v[6:7], 0''')
    def xadr1():
        p(f'''s_add_u32 s18, s{sT0}, 1528
          s_add_u32 s19, s{sT0}, 2044
          v_min_u32 v1, 1, v0
          v_lshl_add_u32 v20, v0, 3, s18
          v_lshl_add_u32 v22, v0, 2, s19
          v_and_b32 v2, 1, v0
          v_lshl_add_u32 v21, v1, 2, v20
          v_lshl_add_u32 v24, v1, 2, v22
          v_lshl_add_u32 v23, v2, 2, v22''')
    def exp0():
        p('''ds_read2_b32 v[80:81], v20 offset0:0 offset1:1
          ds_read_b32 v82, v20 offset:8
          ds_read_b32 v83, v21 offset:12
          ds_read2_b32 v[84:85], v22 offset0:4 offset1:5
          ds_read_b32 v86, v22 offset:24
          ds_read_b32 v87, v23 offset:28
          ds_read2_b32 v[88:89], v24 offset0:8 offset1:9
          ds_read_b32 v90, v24 offset:40''')
        p('s_mov_b64 exec, 0xff\nds_write_b128 v25, v[4:7]\ns_mov_b64 exec, -1')
        for g in (3, 2, 1, 0):
            d = 104 + 4*g
            for j in range(4): p(f'v_cvt_pk_bf16_f32 v{d + j}, v{83 - g + 2*j}, v{84 - g + 2*j}')
            p(f'ds_write_b128 v{vXB}, {vr(d, 4)} offset:{32 + CST*g}')
    def exp1():
        p('''ds_read2_b32 v[82:83], v20 offset0:2 offset1:3
          ds_read_b32 v84, v20 offset:16
          ds_read2_b32 v[86:87], v22 offset0:1 offset1:2
          ds_read_b32 v88, v23 offset:4
          ds_read2_b32 v[90:91], v22 offset0:65 offset1:66
          ds_read_b32 v92, v23 offset:260
          ds_read2_b32 v[80:81], v21 offset0:0 offset1:1
          ds_read_b32 v89, v24''')
        a_, b_, c_, d_, e_ = 80, 81, 82, 83, 84
        seqB = {-3: a_, -2: b_, -1: c_, 0: c_, 1: c_, 2: c_, 3: d_, 4: d_, 5: d_, 6: e_, 7: e_}
        def seqC(j, j1, X, a): return {-3: a, -2: j, -1: j, 0: j, 1: j, 2: j, 3: j, 4: X, 5: j1, 6: j1, 7: j1}
        passes = [(seqB, 104, 1024), (seqC(86, 87, 88, 89), 108, 2048), (seqC(90, 91, 92, 90), 112, 3072)]
        cur = {}
        for g in range(4):
            for (sq, q, off) in passes:
                for j in range(4):
                    pr = (sq[2*j - g], sq[2*j + 1 - g])
                    if cur.get(q + j) != pr: p(f'v_cvt_pk_bf16_f32 v{q + j}, v{pr[0]}, v{pr[1]}'); cur[q + j] = pr
                p(f'ds_write_b128 v{vXB}, {vr(q, 4)} offset:{32 + off + CST*g}')
    def dump(r):
        for i in range(6): p(f'v_mul_f32 v{80 + i}, s27, v{r + i}')
        p(f'ds_write_b128 v{vDW}, v[80:83]\nds_write_b64 v{vDW}, v[84:85] offset:1024')
    w_k.append(lambda: two_way(lambda: (xadr0(), dump(DK + 6)), lambda: (xadr1(), dump(DK))))
    w_T = [f'ds_read_b128 v[80:83], v{vDR}', f'ds_read_b64 v[84:85], v{vDR} offset:1024']
    def t0():
        for i in range(6): p(f'v_fma_f32 v{80 + i}, v{DK + i}, s27, v{80 + i}')
        one_lane(lambda: p(f'v_add_f32 v80, v80, v{vPar + 7}'))
        p(f'ds_write_b128 v{vTY}, v[80:83]\nds_write_b64 v{vTX}, v[84:85]')
    def t1():
        for i in range(6): p(f'v_fma_f32 v{80 + i}, v{DK + 6 + i}, s27, v{80 + i}')
        p(f'ds_write_b64 v{vTX}, v[80:81]\nds_write_b32 v{vTY}, v82')
        p(f's_mov_b32 exec_hi, 0\nds_write2_b32 v{vTY}, v83, v84 offset0:32 offset1:64\nds_write_b32 v{vTY}, v85 offset:384\ns_mov_b64 exec, -1')
    def bar(s, h):
        tn(f's_w{s}')
        p.wait_vm(h); tn(f's_l{s}'); p('s_waitcnt lgkmcnt(0)\ns_barrier')
        tn(f's_b{s}')
    sKC, sXT = 21, 18
    w_mid = []
    A = w_mid.append
    A('v_lshrrev_b32 v1, 4, v0'); A('v_and_b32 v2, 15, v0'); A('v_bfe_u32 v3, v0, 2, 2'); A('v_and_b32 v8, 3, v0')
    A(f'v_mul_u32_u24 v3, {CST}, v3'); A('v_lshl_add_u32 v3, v8, 3, v3'); A('v_mad_i32_i24 v3, v1, -16, v3')
    A(f's_mul_i32 s{sKC}, s75, {CCH}\ns_add_u32 s{sKC}, s{sKC}, {KS}\ns_lshl_b32 s72, s77, 8\ns_add_u32 s72, s72, s{sKC}\ns_add_u32 s72, s72, 56')
    A(f'v_add_u32 v{vCA}, s72, v3')
    A(f'v_add_u32 v{vXB}, s{sKC}, v{vL16}')
    A('v_lshl_add_u32 v3, v2, 1, v1')
    A(f's_lshl_b32 s72, s77, 4\ns_sub_u32 s72, 30, s72\ns_lshl_b32 s28, s75, 9\ns_add_u32 s28, s28, {UP}')
    A(f'v_add_u32 v{vUB + 3}, s72, v3')
    def ub(rr):
        o = [f'v_subrev_u32 v{vUB + 3}, 4, v{vUB + 3}'] if rr else []
        return o + [f'v_and_b32 v8, 32, v{vUB + 3}', f'v_add_u32 v8, v8, v{vUB + 3}', f'v_lshl_add_u32 v{vUB + rr}, v8, 4, s28']
    w_mid += ub(0) + ub(1)
    w_gap = ub(2) + ub(3)
    A = w_gap.append
    A(f's_lshl_b32 s72, s74, 2\ns_add_u32 s72, s72, {MISC}'); A(f'v_mov_b32 v{vF}, s72'); A(f'v_xor_b32 v7, 4, v{vF}')
    A('v_lshrrev_b32 v1, 4, v0'); A('v_and_b32 v2, 15, v0')
    A('v_and_b32 v3, 1, v1'); A('v_lshlrev_b32 v3, 9, v3'); A('v_lshl_add_u32 v3, v2, 5, v3'); A('v_lshrrev_b32 v8, 1, v1')
    A(f'v_lshl_add_u32 v{vYS}, v8, 4, v3')
    A('v_and_b32 v3, 3, v0'); A('v_xor_b32 v3, v3, v1'); A('v_lshlrev_b32 v3, 4, v3'); A('v_lshrrev_b32 v8, 2, v0'); A(f'v_lshl_add_u32 v{vXS}, v8, 10, v3')
    A('v_lshrrev_b32 v3, 3, v0'); A('v_and_b32 v8, 7, v0'); A(f'v_lshlrev_b32 v8, 4, v8'); A(f'v_lshl_add_u32 v{vYL}, v3, 12, v8')
    A(f'v_and_b32 v8, 0x7f, v{vWd}'); A('v_lshl_add_u32 v8, v3, 7, v8')
    A(f's_lshl_b32 s72, s77, 11\ns_add_u32 s72, s72, s{sKC}\ns_add_u32 s19, s72, 12288\ns_add_u32 s72, s72, 8192')
    A(f'v_add_u32 v{vYW}, s72, v8')
    A(f's_lshl_b32 s{sXT}, s{sRB2}, 16\ns_lshl_b32 s72, s77, 15\ns_add_u32 s{sXT}, s{sXT}, s72')
    A(f's_lshl_b32 s72, s{sCB2}, 7\ns_add_u32 s{sXT}, s{sXT}, s72\ns_lshl_b32 s72, s75, 6')
    A(f's_add_u32 s{sXT}, s{sXT}, s72\ns_add_u32 s20, s{sXT}, {16384 - 1024}\ns_mov_b32 s{XD + 2}, 0x200000')
    A(f's_lshl_b32 s12, s{sCB2}, 18\ns_lshl_b32 s13, s74, 16\ns_add_u32 s12, s12, s13')
    A(f's_lshl_b32 s13, s{sRB2}, 7\ns_add_u32 s12, s12, s13\ns_add_u32 s12, s12, {WS_YT}\ns_add_u32 s13, s12, 32768')
    if not cfg.ypois:
        fl = f'''s_lshr_b32 s{sFYo}, s2, 3
          s_lshl_b32 s{sFYo}, s{sFYo}, 1
          s_add_u32 s{sFYo}, s{sFYo}, s77
          s_lshl_b32 s{sFYo}, s{sFYo}, 1
          s_add_u32 s{sFYo}, s{sFYo}, s75
          s_lshl_b32 s{sFYo}, s{sFYo}, 3
          s_and_b32 s24, s2, 7
          s_add_u32 s{sFYo}, s{sFYo}, s24
          s_lshl_b32 s{sFYo}, s{sFYo}, {cfg.fsh}
          s_add_u32 s{sFYo}, s{sFYo}, {WS_FY}
          s_lshl_b32 s{sFYi}, s{sCB2}, 2
          s_add_u32 s{sFYi}, s{sFYi}, s74
          s_lshl_b32 s{sFYi}, s{sFYi}, 1
          s_lshr_b32 s24, s{sRB2}, 4
          s_add_u32 s{sFYi}, s{sFYi}, s24
          s_lshl_b32 s{sFYi}, s{sFYi}, {4 + cfg.fsh}
          s_add_u32 s{sFYi}, s{sFYi}, {WS_FY}'''.split('\n')
        for i in range(0, len(fl), 3): A('\n'.join(fl[i:i + 3]))
    w_adr = []
    A = w_adr.append
    A('v_lshrrev_b32 v3, 3, v0'); A('v_and_b32 v8, 7, v0')
    A('v_bfe_u32 v18, v0, 4, 1'); A('v_lshlrev_b32 v18, 2, v18'); A('v_xor_b32 v8, v8, v18'); A('v_lshlrev_b32 v8, 4, v8')
    A(f'v_lshl_add_u32 v{vWd}, v3, 10, v8')
    A('v_and_b32 v3, 31, v0'); A('v_lshrrev_b32 v8, 5, v0'); A('v_lshlrev_b32 v8, 4, v8'); A(f'v_lshl_add_u32 v{vUo}, v3, {4 + xs}, v8')
    A(rot_setup())
    A(f'''s_lshl_b32 s{sX4}, s74, 12
      s_mul_i32 s{sX3}, s74, 3072
      s_lshl_b32 s{sX1}, s74, 10
      s_mul_i32 s{sWs}, s75, {43*16384}
      s_lshl_b32 s72, s77, 13
      s_add_u32 s{sWs}, s{sWs}, s72
      s_lshl_b32 s72, s{sCB2}, 7
      s_add_u32 s{sWs}, s{sWs}, s72
      s_add_u32 s{sWe}, s{sWs}, {43*16384}
      s_lshl_b32 s72, s{sROT}, 14
      s_add_u32 s{sWc}, s{sWs}, s72''')
    wdh = {}
    def wd_dma(n):
        base, stride = piece_loc(n)
        setm0(('wd', n), f's_add_u32 m0, s{ {4096: sX4, 3072: sX3, 1024: sX1}[stride] }, {base}')
        wdh[n] = p(f'buffer_load_dwordx4 v{vWd}, {srd(WD)}, s{sWc} offen lds')
        if n < 42: p(f's_add_u32 s{sWc}, s{sWc}, 16384\ns_cmp_eq_u32 s{sWc}, s{sWe}\ns_cselect_b32 s{sWc}, s{sWs}, s{sWc}')
    k = len(w_adr)
    npre = 0
    nm = len(w_k) - 9
    blk = w_idxB + w_mid
    ipos = min(cfg.ipos, nm)
    assert cfg.apos <= ipos
    tail = w_k[nm:]
    nmix = min(cfg.mix, len(blk)); mixb = blk[len(blk) - nmix:]; blk = blk[:len(blk) - nmix]
    t2 = []
    for i in range(8):
        t2.append(tail[i]); q = -(-len(mixb) // (8 - i)); t2 += mixb[:q]; mixb = mixb[q:]
    Wl = w_k[:cfg.apos] + w_adr + w_k[cfg.apos:ipos] + blk + w_k[ipos:nm] + t2 + [tail[8], lambda: tn('s_dump'), ('P', C_D)]
    iadr = cfg.apos + k
    Wl += [('C', C_D), lambda: tn('s_cd')] + w_T + [lambda: (two_way(t0, t1), tn('s_t')), ('P', C_T), ('C', C_T), lambda: (tn('s_ct'), two_way(exp0, exp1), tn('s_exp')), ('P', C_E)]
    if cfg.nok: Wl = w_adr + [('P', C_E)]; iadr = 0
    cuts = [0, cfg.c0, cfg.c1, cfg.c2, cfg.c3, cfg.c4, cfg.c5, cfg.c6, cfg.c7, len(Wl)]
    if cfg.nok: cuts = [0, 0, 0, 0, 20, 40, 60, k, k, len(Wl)]
    assert cuts == sorted(cuts) and iadr <= cfg.c6 and cuts[-2] < len(Wl), (iadr, len(Wl))
    if cfg.verbose: print('len Wl', len(Wl), 'adr', k, 'w_k', len(w_k), 'idx', len(w_idx), len(w_idxB), 'set', len(w_set))
    if cfg.verbose: print('sync', [(i, x) for i, x in enumerate(Wl) if isinstance(x, tuple)])
    stg = lambda i: max(j for j in range(9) if cuts[j] <= i)
    ppos = {x[1]: i for i, x in enumerate(Wl) if isinstance(x, tuple) and x[0] == 'P'}
    cpos = {x[1]: i for i, x in enumerate(Wl) if isinstance(x, tuple) and x[0] == 'C'}
    def sync_item(x):
        kind, c = x
        reg, tgt = (vCk, 2) if c in (C_D, C_T) else (vM, 4)
        need = c not in cpos or stg(ppos[c]) == stg(cpos[c])
        if not need: return lambda: None
        if kind == 'P': return lambda: lds_add(reg, c, vOne)
        return lambda: lds_spin(reg, c, tgt, 1)
    Wl = [sync_item(x) if isinstance(x, tuple) else x for x in Wl]
    stage = {j - 1: Wl[cuts[j]:cuts[j + 1]] for j in range(9)}
    pro = w_idx + ([] if cfg.nok == 1 else w_set) + stage[-1]
    seg(pro[:cfg.i0], d0)
    tn('s_dma0')
    seg(pro[cfg.i0:cfg.d1]); seg(pro[cfg.d1:], d1)
    for sb in range(6):
        if sb == 1: mktag()
        bar(sb, slabh[sb])
        setprio((cfg.sprio >> sb) & 1)
        dm = dma_items(sb + 2)
        if sb == 1:
            p(f'ds_read_b128 {vr(vCSr, 4)}, v{vCSr}')
            dm.insert(2, f's_mov_b64 exec, 63\nbuffer_store_dwordx4 {vr(vCSr, 4)}, v{vL16}, {srd(WS)}, s{sCS} offen sc1\ns_mov_b64 exec, -1')
        if sb == 3:
            p(f'v_mov_b32 v{vCSr}, s{sTAG}\nv_mov_b32 v{vCSr + 1}, s{sFA}')
            one_lane(lambda: p(f'buffer_store_dword v{vCSr}, v{vCSr + 1}, {srd(WS)}, 0 offen sc1'))
        if cfg.npf and cfg.pf0 <= sb < cfg.pf0 + cfg.npf:
            q = sb - cfg.pf0; nl = -(-86 // cfg.npf)
            def pfx(q=q, nl=nl):
                if q == 0: p(f's_lshr_b32 s12, s2, 3\ns_lshl_b32 s12, s12, 2\ns_add_u32 s12, s12, s74\ns_mul_i32 s12, s12, {86*128}\nv_lshlrev_b32 v252, 7, v0')
                else: p(f's_add_u32 s12, s12, {nl*128}')
                p(f's_bfm_b64 exec, {nl}, 0\nbuffer_load_dword v{253 + q % 3}, v252, {srd(WD)}, s12 offen\ns_mov_b64 exec, -1')
            dm.insert(cfg.pfi, pfx)
        if sb == 5: p(f'buffer_load_dwordx4 {vr(vPoll, 4)}, v{vL16}, {srd(WS)}, 0 offen offset:{WS_FA} sc1')
        seg(stage[sb], dm)
    bar(6, slabh[6])
    setprio((cfg.sprio >> 6) & 1)
    def fa_check():
        for j in range(4): p(f'v_xor_b32 v{vPoll + j}, s{sTAG}, v{vPoll + j}')
        p(f'v_or3_b32 v{vPoll}, v{vPoll}, v{vPoll + 1}, v{vPoll + 2}\nv_or_b32 v{vPoll}, v{vPoll}, v{vPoll + 3}\nv_cmp_ne_u32 vcc, 0, v{vPoll}\ns_cmp_eq_u64 vcc, 0')
    Lx = p.newlabel('FAX'); L = p.newlabel('FA')
    fa_check()
    p(f's_cbranch_scc1 {Lx}')
    p.cond_begin()
    p(f's_mov_b32 s79, {cfg.spin}')
    p.label(L)
    p(f'buffer_load_dwordx4 {vr(vPoll, 4)}, v{vL16}, {srd(WS)}, 0 offen offset:{WS_FA} sc1')
    fa_check()
    p(f's_cbranch_scc1 {Lx}')
    p(f's_sub_u32 s79, s79, 1\ns_cmp_lg_u32 s79, 0\ns_cbranch_scc1 {L}')
    p.cond_end()
    p.label(Lx)
    tn('s_fa')
    p(f'''s_mul_i32 s15, s{sCB}, 6144
      s_add_u32 s15, s15, s{sX1}
      s_add_u32 s15, s15, {WS_CSP}
      s_add_u32 s16, s{sX1}, {GR2}
      s_cmp_lt_u32 s74, 3
      s_cselect_b32 m0, s16, {UR2}
      s_add_u32 s16, s15, 4096''')
    p(f'buffer_load_dwordx4 v{vL16}, {srd(WS)}, s15 offen sc1 lds')
    p(f'''s_lshl_b32 s15, s{sRB}, 10
      s_add_u32 s15, s15, {WS_ST}
      s_cmp_lt_u32 s74, 2
      s_cselect_b32 s15, s16, s15
      s_min_u32 s16, s{sX1}, 2048
      s_add_u32 m0, s16, {UR2 + 1024}''')
    sth = p(f'buffer_load_dwordx4 v{vL16}, {srd(WS)}, s15 offen sc1 lds')
    uh = [None]
    def u_dma(k):
        if k == 0:
            p(f'''s_lshr_b32 s13, s2, {2 + xs}
              s_lshl_b32 s13, s13, 3
              s_and_b32 s14, s2, 7
              s_add_u32 s13, s13, s14
              s_lshl_b32 s13, s13, {12 + xs}
              s_bfe_u32 s14, s2, {0x10000*(xs - 1) + 3}
              s_lshl_b32 s14, s14, 5
              s_add_u32 s13, s13, s14
              s_lshl_b32 s14, s74, {10 + xs}
              s_add_u32 s13, s13, s14
              s_lshl_b32 s14, s74, 11
              s_add_u32 s13, s13, {WS_XNT}''')
        elif cfg.xa > 2: p(f's_add_u32 s13, s13, {512*cfg.xa - 1024}')
        setm0('u', f's_add_u32 m0, s14, {UP + 1024}')
        uh[0] = p(f'buffer_load_dwordx4 v{vUo}, {srd(WS)}, s13 offen offset:{1024*k} sc1 lds')
    m0[0] = None
    L = p.newlabel('EP')
    p(f's_or_b32 s15, s2, s74\ns_cmp_eq_u32 s15, 0\ns_cbranch_scc0 {L}')
    p.cond_begin()
    p(f'v_mov_b32 v194, s{sTAG}\nv_mov_b32 v195, {WS_E}')
    one_lane(lambda: p(f'buffer_store_dword v194, v195, {srd(WS)}, 0 offen sc1'))
    p.cond_end()
    p.label(L)
    zp = [f's_lshr_b32 s15, s{sX1}, 2\ns_add_u32 s15, s15, {UP}\nv_add_u32 v192, s15, v{vL16}', 'v_mov_b64 v[196:197], 0', 'v_mov_b64 v[198:199], 0',
          's_mov_b64 exec, 0xffff\nds_write_b128 v192, v[196:199]\ns_mov_b64 exec, -1']
    dq = [(lambda n=n: wd_dma(n)) for n in range(16)]
    dq[cfg.upos:cfg.upos] = [lambda: u_dma(0), lambda: u_dma(1)]
    assert cfg.na6 <= 6 + (2 if cfg.upos <= 6 else 0)
    seg(zp + stage[6], dq[:cfg.na6])
    bar(7, slabh[7])
    setprio((cfg.sprio >> 7) & 1)
    w7 = list(stage[7])
    w7.insert(min(cfg.cs_at, len(w7) - 1), lambda: (p.wait_vm(sth), lds_add(vM, C_S, vOne), tn('s_cs')))
    w7.insert(len(w7) - 1, lambda: p.wait_vm(uh[0]))
    cwsig = lambda: (p.wait_vm(wdh[15]), lds_add(vCk, C_W, vOne), tn('s_cw'))
    if cfg.cw_k < 0:
        assert -cfg.cw_k >= cfg.bspan
        w7.insert(min(-cfg.cw_k, len(w7)), cwsig)
    assert cfg.bspan <= len(w7) - 2
    dq7 = dq[cfg.na6:]; dqc = dq7[cfg.nb7:]; dq7 = dq7[:cfg.nb7]
    seg(w7[:cfg.bspan], dq7)
    tn('s_bi')
    seg(w7[cfg.bspan:])
    setprio(cfg.cprio)
    lds_spin(vM, C_E, 4, 1)
    tn('s_ce')
    CAf, CBf, CD = [32, 64], [96, 128], 192
    def cfrags(rr):
        o = []; st_ = rr & 1
        for k in range(8):
            o.append(f'ds_read_b128 {vr(CBf[st_] + 4*k, 4)}, v{vUB + rr} offset:{1024*k}')
            for s in range(2):
                o.append(f'ds_read_b64_tr_b16 {vr(CAf[st_] + 4*k + 2*s, 2)}, v{vCA} offset:{512*k + 64*rr + 8*(1 - s)}')
        return o
    cev = {}
    def addc(k, x): cev.setdefault(min(k, 144), []).append(x)
    for i, x in enumerate(dqc): addc(cfg.bc0 + cfg.bcs*i, x)
    if cfg.cw_k >= 0:
        assert cfg.cw_k > cfg.bc0 + cfg.bcs*len(dqc)
        addc(cfg.cw_k, cwsig)
    addc(3*36 + 28, lambda: one_lane(lambda: p(f'ds_write_b32 v{vF}, v{vOne} offset:{F1}')))
    for x in cfrags(0): p(x)
    kk = 0
    for rr in range(4):
        nxt = cfrags(rr + 1) if rr < 3 else []
        st_ = rr & 1
        pairs = sorted(((a, b) for a in range(8) for b in range(8 - a)), key=lambda ab: (max(ab), ab[0]))
        seen = set()
        for k, (a, b) in enumerate(pairs):
            c = a + b; d = CD + 4*c
            cc = '0' if (rr == 0 and c not in seen) else vr(d, 4)
            seen.add(c)
            p(f'v_mfma_f32_16x16x32_bf16 {vr(d, 4)}, {vr(CAf[st_] + 4*a, 4)}, {vr(CBf[st_] + 4*b, 4)}, {cc}')
            if nxt and k >= 2: p(nxt.pop(0))
            elif w_gap and kk >= cfg.gap0: p(w_gap.pop(0))
            for x in cev.get(kk, []): emit(x)
            kk += 1
        assert not nxt
    assert not w_gap
    tn('s_conv')
    lds_spin(7, F1, 1, 6)
    Lb = p.newlabel('XB'); Le = p.newlabel('XE')
    p(f's_cmp_eq_u32 s77, 0\ns_cbranch_scc0 {Lb}')
    for hf in range(2):
        if hf == 1: p.label(Lb)
        p.cond_begin()
        snd, kp = (4, 0) if hf == 0 else (0, 4)
        for k in range(4): p(f'ds_write_b128 v{vXB}, {vr(CD + 4*(snd + k), 4)} offset:{4096*hf + 1024*k}')
        one_lane(lambda: p(f'ds_write_b32 v{vF}, v{vOne} offset:{F2}'))
        lds_spin(7, F2, 1, 6)
        tn('s_f2')
        for k in range(4): p(f'ds_read_b128 {vr(32 + 4*k, 4)}, v{vXB} offset:{4096*(1 - hf) + 1024*k}')
        for k in range(4):
            for j in range(4): p(f'v_add_f32 v{32 + 4*k + j}, v{32 + 4*k + j}, v{CD + 4*(kp + k) + j}')
            for j in range(2): p(f'v_cvt_pk_bf16_f32 v{48 + 2*k + j}, v{32 + 4*k + 2*j}, v{32 + 4*k + 2*j + 1}')
            if cfg.ypois:
                for j in range(2): p(f'v_min_u32 v{48 + 2*k + j}, -2, v{48 + 2*k + j}')
            if k & 1:
                r = 48 + 2*(k - 1)
                p(f'v_permlane16_swap_b32 v{r}, v{r + 2}\nv_permlane16_swap_b32 v{r + 1}, v{r + 3}')
                p(f'buffer_store_dwordx4 {vr(r, 4)}, v{vYS}, {srd(WS)}, s{sYB} offen offset:{512*(kp + k - 1)} sc1')
        if hf == 0: p(f's_branch {Le}')
        p.cond_end()
    p.label(Le)
    tn('s_yst')
    for x in cev.get(144, []): emit(x)
    p(f's_mov_b32 m0, s19\nbuffer_load_dwordx4 v{vXS}, {srd(XD)}, s{sXT} offen lds\nbuffer_load_dwordx4 v{vXS}, {srd(XD)}, s20 offen offset:1024 lds')
    if cfg.ypois:
        p('s_waitcnt vmcnt(0)')
        tn('s_yack')
        lds_add(vCk, C_X, vOne)
        L = p.newlabel('YP'); Lx = p.newlabel('YPX')
        p(f's_mov_b32 s79, {cfg.spin}')
        p.label(L)
        for k in range(2): p(f'buffer_load_dwordx4 {vr(32 + 4*k, 4)}, v{vYL}, {srd(WS)}, s{12 + k} offen sc1')
        p('''v_max3_u32 v1, v32, v33, v34
          v_max3_u32 v1, v1, v35, v36
          v_max3_u32 v1, v1, v37, v38
          v_max_u32 v1, v1, v39
          v_cmp_eq_u32 vcc, -1, v1
          s_cmp_eq_u64 vcc, 0''')
        p(f's_cbranch_scc1 {Lx}')
        p(f's_sub_u32 s79, s79, 1\ns_cmp_lg_u32 s79, 0\ns_cbranch_scc1 {L}')
        p.label(Lx)
        tn('s_fy')
    else:
        p('s_waitcnt vmcnt(0)')
        tn('s_yack')
        flag_store(sFYo)
        lds_add(vCk, C_X, vOne)
        if cfg.spoll & 2: spoll(36, 16, sFYi)
        else: vpoll(16, sFYi)
        tn('s_fy')
        for k in range(2): p(f'buffer_load_dwordx4 {vr(32 + 4*k, 4)}, v{vYL}, {srd(WS)}, s{12 + k} offen sc1')
        p('s_waitcnt vmcnt(0)')
        tn('s_yl')
    for k in range(2): p(f'ds_write_b128 v{vYW}, {vr(32 + 4*k, 4)} offset:{1024*k}')
    lds_add(vCk, C_Y, vOne)
    p('s_waitcnt lgkmcnt(0)')
    tn('s_yw')
    p('s_barrier')
    ts(8)
    finish()
    p.label('L_END')
    p('s_endpgm')
    return p.text()

HEADER = open('cdna_kernels/' + KNAME + '.s.ref').read().split('; Override launch')[0]

def build(cfg):
    k = dict(name=KNAME + '_kernel', grid=(256, 1, 1), block=(512, 1, 1), lds=LDS_SIZE, body=gen(cfg), vgpr=256, sgpr=102, accum=256)
    return build_file([k], header_comment=HEADER)

if __name__ == '__main__':
    cfg = Cfg()
    out = sys.argv[1]
    for a in sys.argv[2:]:
        k, v = a.split('='); setattr(cfg, k, type(getattr(Cfg, k))(int(v, 0)))
    open(out, 'w').write(build(cfg))
```

```python
import sys, copy
from asmlib import build_file, KNAME
from asm2 import Prog

WS_E = 0; WS_FA = 1024; WS_ST = 4096; WS_FH = 0xA00000; WS_FY = 0xA40000; WS_CSP = 32768
WS_XNT = 0x40000; WS_YT = 0x240000; WS_H = 0x440000; WS_DBG = 0x1000000
WS_SIZE = 0x2000000
BIG = 0x40000000
KS = 0; XR = 34816; GR = 83968; UR = 120864; TT = 157760; TCH = 2704; MISC = 163168; LDS_SIZE = 163840
CCH = 17408; CST = 4160
GR2 = GR + 24576; UR2 = UR + 24576; UP = GR2 + 3072; MB = UR2 + 3072; LNX = MISC + 128
C_W, C_R, C_W3, C_Y, C_F, C_D, C_L, C_S, C_G, C_T, C_E, F1, F2, C_X, C_W4 = 0, 8, 16, 24, 32, 40, 48, 52, 56, 72, 64, 80, 96, 112, 120
CSL = LNX
sW = 3
XD, WG, WU, WD, OUT, WS = 36, 40, 44, 48, 52, 56
sTAG, sRB, sCB, sTB, sRB2, sCB2, sROT = 60, 62, 63, 64, 65, 100, 101
def srd(b): return f's[{b}:{b + 3}]'
def vr(a, n): return f'v[{a}:{a + n - 1}]'
LOG2E = 0x3FB8AA3B; LOG2E_LO = 0x32A57060; LN2 = 0x3F317218; INV2PI = 0x3E22F983

class Cfg:
    ts = False
    hwin = 10
    adist = 2
    parfirst = 1
    r2c = 88; r2j = 176; r2x = 22
    xa = 8
    gfa = 0; gfb = 99; gf = 1; gf0 = 2
    d1 = 200
    c0 = 30; c1 = 60; c2 = 90; c3 = 120; c4 = 150; c5 = 180; c6 = 210; c7 = 240
    ipre = 0; ipos = 150; npf = 0; pf0 = 1; pfi = 5
    apos = 150
    sprio = 0xff
    gprio = 7
    gp2 = 0; gp3 = 2
    cprio = 0
    cs_at = 0
    bspan = 40
    cw_k = 0
    pearly = 0; hl = 0; hs = 0; na6 = 2; upos = 0
    i0 = 50
    cfirst = 2
    spoll = 3
    fsh = 2
    ystep = 37
    xstep = 10
    ypois = 0
    wbl2 = 0
    spin = 1 << 16
    tset = 0
    padph = 0; padw = 0; padcyc = 0; rt8 = 0; rt = 0
    nch = -1; ncy = -1
    tch = 0; tpos = 0
    dpre = 16; dper = 1; dst = 0; dm = 1; ydma = 1
    nb7 = 99; bc0 = 0; bcs = 2; mix = 99; gap0 = 26; cpf = 0; g2x = 0; g2o = 0; hat = 0; verbose = 0; nok = 0; dmaf = 0; nost = 0; wsoff = 0

TSETS = [
  (['g_lns', 'g_b0', 'g_b4', 'g_b8', 'g_hst', 'g_fh'], ['s_b0', 's_b4', 's_b7', 's_ce', 's_conv', 's_fy']),
  (['g_karg', 'g_ln', 'g_lnw', 'g_lnx', 'g_lns', 'g_b0'], ['s_karg', 's_dma0', 's_idx', 's_par', 's_w0', 's_l0']),
  (['g_b0', 'g_b1', 'g_b2', 'g_b3', 'g_b4', 'g_b5'], ['s_w1', 's_l1', 's_w2', 's_l2', 's_w3', 's_l3']),
  (['g_b8', 'g_hst', 'g_ack', 'g_cw', 'g_d', 'g_fh'], ['s_b7', 's_cs', 's_bi', 's_ce', 's_cw', 's_conv']),
  (['g_b4', 'g_b5', 'g_b6', 'g_b7', 'g_b8', 'g_h0'], ['s_w4', 's_w5', 's_w6', 's_fa', 's_w7', 's_l7']),
  (['g_fh', 'g_h0', 'g_n16', 'g_n27', 'g_y', 'g_g2'], ['s_conv', 's_yst', 's_yack', 's_fy', 's_yl', 's_yw']),
  (['g_b8', 'g_corr', 'g_hst', 'g_cw', 'g_pre', 'g_ack'], ['s_w4', 's_l4', 's_w5', 's_l5', 's_w6', 's_l6']),
  (['g_b8', 'g_hst', 'g_c', 'g_ack', 'g_cw', 'g_d'], ['s_dump', 's_cd', 's_t', 's_ct', 's_exp', 's_ce']),
]
def gen(cfg):
    p = Prog()
    def ts(i, real=False):
        if cfg.ts: p(f'{"s_memrealtime" if (real or (cfg.padph and not cfg.padcyc) or (cfg.rt and i not in (1,))) else "s_memtime"} s[{80 + 2 * i}:{81 + 2 * i}]')
    def tn(name):
        for l in TSETS[cfg.tset]:
            if name in l: ts(2 + l.index(name))
            if cfg.ts and name + '#' in l: i = 2 + l.index(name + '#'); p(f's_memtime s[{80 + 2 * i}:{81 + 2 * i}]')
    def one_lane(f):
        p('s_mov_b64 exec, 1'); r = f(); p('s_mov_b64 exec, -1'); return r
    def lds_spin(addr_v, off, target, tmpv):
        L = p.newlabel('SPIN'); Lx = p.newlabel('SPINX')
        p(f's_mov_b32 s79, {cfg.spin * 8}')
        p.label(L)
        p(f'ds_read_b32 v{tmpv}, v{addr_v} offset:{off}')
        p(f'v_readfirstlane_b32 s78, v{tmpv}')
        p(f's_cmp_ge_u32 s78, {target}')
        p(f's_cbranch_scc1 {Lx}')
        p('s_sub_u32 s79, s79, 1')
        p('s_cmp_lg_u32 s79, 0')
        p(f's_cbranch_scc1 {L}')
        p.label(Lx)
    def lds_pre(addr_v, off, tmpv): p(f'ds_read_b32 v{tmpv}, v{addr_v} offset:{off}')
    def lds_post(addr_v, off, target, tmpv):
        Lx = p.newlabel('POK')
        p(f'v_readfirstlane_b32 s78, v{tmpv}\ns_cmp_ge_u32 s78, {target}\ns_cbranch_scc1 {Lx}')
        p.cond_begin(); lds_spin(addr_v, off, target, tmpv); p.cond_end()
        p.label(Lx)
    def lds_add(addr_v, off, onev): one_lane(lambda: p(f'ds_add_u32 v{addr_v}, v{onev} offset:{off}'))
    def emit(x):
        if callable(x): x()
        else: p(x)

    p('s_cmp_ge_u32 s2, 256\ns_cbranch_scc1 L_END')
    p('s_load_dwordx16 s[4:19], s[0:1], 0\ns_load_dwordx16 s[20:35], s[0:1], 64')
    ts(0, True); ts(1)
    p('v_lshrrev_b32 v1, 6, v0')
    p('v_lshlrev_b32 v2, 4, v0')
    p(f'v_readfirstlane_b32 s{sW}, v1')
    p(f'v_cmp_gt_u32 vcc, {(LNX - TT) // 16}, v0')
    p(f'v_add_u32 v2, {TT}, v2')
    p('v_and_b32 v0, 63, v0')
    p('v_mov_b64 v[4:5], 0\nv_mov_b64 v[6:7], 0')
    p('s_mov_b64 exec, vcc')
    p('ds_write_b128 v2, v[4:7]')
    p('s_mov_b64 exec, -1')
    p(f'''s_and_b32 s66, s2, 7
      s_lshr_b32 s67, s2, 3
      s_and_b32 s68, s66, 3
      s_lshr_b32 s69, s66, 2
      s_and_b32 s70, s67, 3
      s_lshl_b32 s71, s68, 2
      s_add_u32 s{sRB}, s71, s70
      s_lshl_b32 s{sRB2}, s68, 3
      s_lshl_b32 s72, s69, 2
      s_add_u32 s{sRB2}, s{sRB2}, s72
      s_add_u32 s{sRB2}, s{sRB2}, s70
      s_lshr_b32 s{sCB2}, s67, 2
      s_mul_i32 s{sCB}, s69, 7
      s_add_u32 s{sCB}, s{sCB}, s{sCB2}
      s_and_b32 s70, s67, 1
      s_add_u32 s71, s71, s70
      s_lshl_b32 s69, s69, 1
      s_add_u32 s71, s71, s69
      s_bfe_u32 s70, s67, 0x10001
      s_add_u32 s70, s70, 14
      s_cmp_lt_u32 s67, 28
      s_cselect_b32 s{sRB}, s{sRB}, s71
      s_cselect_b32 s{sCB}, s{sCB}, s70
      s_lshl_b32 s{sTB}, s{sRB}, 4
      s_add_u32 s{sTB}, s{sTB}, s{sCB}''')
    p(f's_cmp_ge_u32 s{sW}, 4')
    p('s_cbranch_scc1 L_S')
    st0 = (copy.deepcopy(p.vmq), copy.deepcopy(p.dsq))

    def srds(role):
        if cfg.wsoff: p(f's_add_u32 s34, s34, {cfg.wsoff}\ns_addc_u32 s35, s35, 0')
        p(f's_load_dword s{sTAG}, s[34:35], {WS_E}')
        if role == 'S':
            p(f's_cmp_eq_u32 s{sCB}, 15')
            p(f'''s_mov_b32 s{XD}, s4\ns_mov_b32 s{XD+1}, s5\ns_cselect_b32 s{XD+2}, 0, 0x200000\ns_mov_b32 s{XD+3}, 0x20000
              s_mov_b32 s{WG}, s24\ns_mov_b32 s{WG+1}, s25\ns_cselect_b32 s{WG+2}, 0, {512*2752}\ns_mov_b32 s{WG+3}, 0x20000
              s_mov_b32 s{WU}, s26\ns_mov_b32 s{WU+1}, s27\ns_mov_b32 s{WU+2}, s{WG+2}\ns_mov_b32 s{WU+3}, 0x20000''')
    def srds2(role):
        p(f's_mov_b32 s{WS}, s34\ns_mov_b32 s{WS+1}, s35\ns_mov_b32 s{WS+2}, {WS_SIZE}\ns_mov_b32 s{WS+3}, 0x20000')
        p(f's_mov_b32 s{WD}, s28\ns_mov_b32 s{WD+1}, s29\ns_mov_b32 s{WD+2}, {1376*1024}\ns_mov_b32 s{WD+3}, 0x20000')
    def mktag():
        p('s_waitcnt lgkmcnt(0)')
        p(f's_mul_i32 s{sTAG}, s{sTAG}, 0x9E3779B1\ns_add_u32 s{sTAG}, s{sTAG}, 0x7F4A7C15\ns_mov_b32 s{sTAG + 1}, s{sTAG}')
    def rot_setup():
        return f'''s_mul_i32 s{sROT}, s{sCB2}, {cfg.r2c}
          s_bfe_u32 s72, s2, 0x20003
          s_mul_i32 s72, s72, {cfg.r2j}
          s_add_u32 s{sROT}, s{sROT}, s72
          s_and_b32 s72, s2, 7
          s_mul_i32 s72, s72, {cfg.r2x}
          s_add_u32 s{sROT}, s{sROT}, s72
          s_lshr_b32 s{sROT}, s{sROT}, 4
          s_cmp_ge_u32 s{sROT}, 43
          s_cselect_b32 s72, 43, 0
          s_sub_u32 s{sROT}, s{sROT}, s72'''
    assert (7*cfg.r2c + 3*cfg.r2j + 7*cfg.r2x) // 16 < 86
    def spoll(base, n, soff, issued=False):
        L = p.newlabel('SP'); Lr = p.newlabel('SPR'); Lx = p.newlabel('SPX'); Li = p.newlabel('SPI')
        p(f's_mov_b32 s79, {cfg.spin}')
        if issued: p(f's_branch {Li}')
        p.label(L)
        p(f's_load_dwordx{n} s[{base}:{base + n - 1}], s[34:35], s{soff} glc')
        p.label(Li)
        p('s_waitcnt lgkmcnt(0)')
        for i in range(0, n, 2):
            p(f's_cmp_eq_u64 s[{base + i}:{base + i + 1}], s[{sTAG}:{sTAG + 1}]')
            p(f's_cbranch_scc0 {Lr}' if i < n - 2 else f's_cbranch_scc1 {Lx}')
        p.label(Lr)
        p(f's_sub_u32 s79, s79, 1\ns_cmp_lg_u32 s79, 0\ns_cbranch_scc1 {L}')
        p.label(Lx)
    def vpoll(n, soff):
        L = p.newlabel('VP'); Lx = p.newlabel('VPX')
        p(f'v_and_b32 v1, {n - 1}, v0\nv_lshlrev_b32 v1, {cfg.fsh}, v1\ns_mov_b32 s79, {cfg.spin}')
        p.label(L)
        p(f'buffer_load_dword v2, v1, {srd(WS)}, s{soff} offen sc1')
        p(f'v_cmp_ne_u32 vcc, s{sTAG}, v2\ns_cmp_eq_u64 vcc, 0')
        p(f's_cbranch_scc1 {Lx}')
        p(f's_sub_u32 s79, s79, 1\ns_cmp_lg_u32 s79, 0\ns_cbranch_scc1 {L}')
        p.label(Lx)
    def flag_store(soff):
        p(f'v_mov_b32 v1, s{sTAG}\nv_mov_b32 v2, 0')
        one_lane(lambda: p(f'buffer_store_dword v1, v2, {srd(WS)}, s{soff} offen sc1'))
    def finish():
        if cfg.ts:
            p('s_waitcnt vmcnt(0)')
            ts(9)
            if cfg.rt8: ts(8, True)
            if cfg.rt: p('s_memtime s[66:67]\ns_waitcnt lgkmcnt(0)\ns_sub_u32 s67, s66, s82')
            if cfg.rt and cfg.tset == 8: p('s_sub_u32 s86, s86, s82\ns_sub_u32 s90, s90, s82\ns_sub_u32 s94, s94, s82')
            if cfg.rt: p('s_mov_b32 s82, s67')
            p('s_waitcnt lgkmcnt(0)')
            if cfg.padph:
                L = p.newlabel('PAD'); Lx = p.newlabel('PADX')
                p(f's_cmp_eq_u32 s{sW}, {cfg.padw}\ns_cbranch_scc0 {Lx}')
                if cfg.padcyc: p(f's_sub_u32 s66, s{80 + 2*cfg.padph}, s82\ns_lshr_b32 s66, s66, 2')
                else: p(f's_sub_u32 s66, s{80 + 2*cfg.padph}, s80\ns_lshl_b32 s66, s66, 2')
                p(f's_min_u32 s66, s66, 20000\ns_add_u32 s66, s66, 3000')
                p.label(L)
                p(f's_memrealtime s[68:69]\ns_waitcnt lgkmcnt(0)\ns_sub_u32 s68, s68, s80\ns_cmp_lt_u32 s68, s66\ns_cbranch_scc1 {L}')
                p.label(Lx)
                p('s_endpgm')
                return
            for i in range(10): p(f'v_writelane_b32 v1, s{80 + 2*i}, {i}')
            p(f's_lshl_b32 s66, s2, 3\ns_add_u32 s66, s66, s{sW}\ns_lshl_b32 s66, s66, 6\ns_add_u32 s66, s66, {WS_DBG}')
            p('v_lshlrev_b32 v2, 2, v0')
            p('s_mov_b64 exec, 0x3ff')
            p(f'buffer_store_dword v1, v2, {srd(WS)}, s66 offen')
        p('s_endpgm')
    def piece_loc(n):
        if n >= 27: n -= 27
        groups = [(0, 4, XR + 32768, 4096), (4, 1, UR2 + 4096, 1024), (5, 1, UR2 + 8192, 1024), (6, 4, XR, 4096), (10, 3, GR, 3072),
                  (13, 3, UR, 3072), (16, 4, XR + 16384, 4096), (20, 3, GR + 12288, 3072), (23, 3, UR + 12288, 3072), (26, 1, UR2, 1024)]
        for (n0, cnt, base, stride) in groups:
            if n0 <= n < n0 + cnt: return base + 1024*(n - n0), stride

    vA4, vA3, vA1, vYA, vOut = 8, 10, 12, 14, 15
    vXa, vWg, vWu, vW1, vCS1, vCS2, vH01, vH2, vHl, vCk, vM, vWd, vMB = 16, 20, 21, 22, 23, 24, 25, 26, 27, 28, 29, 30, 31
    FR = [120, 140]
    ACC = 160
    XL, XC, MU, CSA, ONE = 32, 40, 56, 68, 116
    vSt, vXn, vLw, vSo = 60, 61, 62, 63
    LR, LD, PK = 68, 72, 76
    sHc, sHs, sHe, sFo, sFi, sXn, sSt = 6, 7, 8, 9, 10, 12, 14
    sX4, sX3, sX1, sWc, sWs, sWe, sW26 = 36, 37, 38, 39, 40, 41, 42
    xs = {2: 1, 4: 2, 8: 3}[cfg.xa]
    p(f'''v_lshrrev_b32 v6, 4, v0
      v_and_b32 v7, 15, v0
      v_lshlrev_b32 v1, 4, v7
      v_lshl_add_u32 v1, v6, 11, v1
      s_lshl_b32 s66, s{sTB}, 13
      s_lshl_b32 s67, s{sW}, 8
      s_add_u32 s66, s66, s67
      v_add_u32 v64, s66, v1
      v_lshlrev_b32 v{vHl}, 4, v0''')
    p(f's_and_b32 s74, s{sW}, 1\ns_lshr_b32 s75, s{sW}, 1')
    p(f'''v_and_b32 v1, 31, v0
      v_lshrrev_b32 v2, 5, v0
      v_bfe_u32 v3, v0, 1, 3
      v_xor_b32 v3, v3, v2
      s_lshl_b32 s66, s74, 13
      s_add_u32 s66, s66, {XR}
      v_lshl_add_u32 v4, v1, 7, s66''')
    for ks in range(4):
        p(f'v_xor_b32 v5, {2*ks}, v3\nv_lshl_add_u32 v{vXa + ks}, v5, 4, v4')
    p(f'''v_bfe_u32 v3, v0, 2, 2
      v_lshl_add_u32 v3, v2, 3, v3
      v_mul_u32_u24 v3, 192, v3
      v_and_b32 v4, 3, v0
      v_lshl_add_u32 v3, v4, 3, v3
      s_mul_i32 s66, s75, 96
      v_add_u32 v3, s66, v3
      v_bfe_u32 v4, v0, 4, 1
      v_lshl_add_u32 v5, v4, 5, v3
      v_add_u32 v{vWg}, {GR}, v5
      v_add_u32 v{vWu}, {UR}, v5
      v_mul_u32_u24 v4, {UR - GR}, v4
      v_add_u32 v3, {GR + 64}, v3
      v_add_u32 v{vW1}, v3, v4''')
    p('s_waitcnt lgkmcnt(0)')
    tn('g_karg')
    p(f'''global_load_dwordx4 {vr(XL, 4)}, v64, s[4:5]
      global_load_dwordx4 {vr(XL + 4, 4)}, v64, s[4:5] offset:1024''')
    if cfg.cpf:
        p('s_getpc_b64 s[68:69]')
        p.label('L_PC')
        p(f'''s_lshr_b32 s66, s2, 3
          s_lshl_b32 s66, s66, 2
          s_add_u32 s66, s66, s{sW}
          s_lshl_b32 s66, s66, 8
          v_lshl_add_u32 v65, v0, 7, s66
          v_min_u32 v65, L_END-L_PC, v65
          s_mov_b64 exec, 3
          global_load_dword v66, v65, s[68:69]
          s_mov_b64 exec, -1''')
    def touch():
        p.auto = False
        if cfg.tch & 4: p('v_lshlrev_b32 v65, 21, v0\ns_mov_b64 exec, 0x3e\nglobal_load_dword v67, v65, s[34:35]')
        if cfg.tch & 8:
            p(f'''s_mul_i32 s66, s2, {43*128}
              s_mul_i32 s67, s{sW}, {11*128}
              s_add_u32 s66, s66, s67
              v_lshl_add_u32 v65, v0, 7, s66
              s_cmp_eq_u32 s{sW}, 3
              s_cselect_b32 s67, 10, 11
              s_bfm_b64 exec, s67, 0
              global_load_dword v67, v65, s[28:29]''')
        if cfg.tch & 16:
            p(f'''s_lshl_b32 s66, s2, 2
              s_add_u32 s66, s66, s{sW}
              s_and_b32 s67, s66, 1
              s_lshr_b32 s66, s66, 1
              s_lshl_b32 s66, s66, 7
              s_mul_i32 s67, s67, {WS_FY - WS_FH}
              s_add_u32 s66, s66, s67
              s_add_u32 s66, s66, {WS_FH}
              v_mov_b32 v65, s66
              s_mov_b64 exec, 1
              global_load_dword v67, v65, s[34:35]''')
            assert cfg.nch <= 3 and cfg.ncy <= 3
        p('s_mov_b64 exec, 1')
        if cfg.tch & 1: p(f'global_load_dword v67, v{vHl}, s[28:29]')
        if cfg.tch & 2: p(f'global_load_dword v67, v{vHl}, s[30:31]')
        p('s_mov_b64 exec, -1')
        p.auto = True
    if cfg.tch and cfg.tpos == 0: touch()
    srds('G')
    p(f's_mov_b32 s{WS}, s34\ns_mov_b32 s{WS+1}, s35\ns_mov_b32 s{WS+2}, {WS_SIZE}\ns_mov_b32 s{WS+3}, 0x20000')
    p('s_barrier')
    p(f'''v_and_b32 v3, 3, v0
      v_lshlrev_b32 v3, 4, v3
      v_lshl_add_u32 v3, v6, 6, v3
      v_add_u32 v{vSt}, {LNX}, v3
      s_lshl_b32 s66, s{sW}, 4
      s_add_u32 s66, s66, {LNX}
      v_lshl_add_u32 v{vLw}, v6, 6, s66
      v_lshrrev_b32 v3, {xs}, v7
      v_lshlrev_b32 v3, {15 + xs}, v3
      v_lshl_add_u32 v3, v6, {13 + xs}, v3
      v_and_b32 v4, {cfg.xa - 1}, v7
      v_lshl_add_u32 v{vXn}, v4, 4, v3
      s_lshl_b32 s{sXn}, s{sW}, 19
      s_lshl_b32 s66, s{sTB}, {4 + xs}
      s_add_u32 s{sXn}, s{sXn}, s66
      s_add_u32 s{sXn}, s{sXn}, {WS_XNT}
      s_add_u32 s{sXn + 1}, s{sXn}, {4096*cfg.xa}
      s_lshl_b32 s{sSt}, s{sTB}, 6
      s_add_u32 s{sSt}, s{sSt}, {WS_ST}
      s_cmp_eq_u32 s{sW}, 0
      s_cselect_b32 s66, 0, {BIG}
      v_lshl_add_u32 v{vSo}, v6, 4, s66
      s_mul_i32 s66, s75, 96
      s_add_u32 s66, s66, {CSL}
      v_mul_u32_u24 v3, 192, v2
      v_lshl_add_u32 v3, v1, 1, v3
      v_add_u32 v{vCS1}, s66, v3
      v_bfe_u32 v3, v0, 4, 1
      v_mul_u32_u24 v3, 192, v3
      v_lshl_add_u32 v3, v7, 1, v3
      s_add_u32 s66, s66, 64
      v_add_u32 v{vCS2}, s66, v3
      v_mov_b32 v{vM}, {MISC}
      v_mov_b32 v7, 1
      s_mov_b32 s77, 0x3f803f80''')
    for r in range(4): p(f'v_mov_b32 v{ONE + r}, s77')
    if cfg.nch < 0:
        hflag_adr = f'''s_lshl_b32 s{sFo}, s{sRB}, 1
      s_add_u32 s{sFo}, s{sFo}, s74
      s_lshl_b32 s{sFo}, s{sFo}, 5
      s_lshl_b32 s66, s{sCB}, 1
      s_add_u32 s{sFo}, s{sFo}, s66
      s_add_u32 s{sFo}, s{sFo}, s75
      s_lshl_b32 s{sFo}, s{sFo}, {cfg.fsh}
      s_add_u32 s{sFo}, s{sFo}, {WS_FH}
      s_lshl_b32 s{sFi}, s{sRB2}, 5
      s_mul_i32 s66, s75, 14
      s_add_u32 s{sFi}, s{sFi}, s66
      s_lshl_b32 s{sFi}, s{sFi}, {cfg.fsh}
      s_add_u32 s{sFi}, s{sFi}, {WS_FH}'''
    else:
        hflag_adr = f'''s_lshl_b32 s{sFo}, s{sRB}, 1
      s_add_u32 s{sFo}, s{sFo}, s74
      s_lshl_b32 s{sFo}, s{sFo}, {8 + cfg.nch}
      s_add_u32 s{sFo}, s{sFo}, {WS_FH}
      s_lshl_b32 s11, s{sCB}, 1
      s_add_u32 s11, s11, s75
      s_lshl_b32 s{sFi}, s{sRB2}, 1
      s_add_u32 s{sFi}, s{sFi}, s75
      s_lshl_b32 s{sFi}, s{sFi}, {cfg.nch}
      s_lshl_b32 s66, s{sCB2}, 1
      s_add_u32 s66, s66, s74
      s_and_b32 s66, s66, {(1 << cfg.nch) - 1}
      s_add_u32 s{sFi}, s{sFi}, s66
      s_lshl_b32 s{sFi}, s{sFi}, 7
      s_add_u32 s{sFi}, s{sFi}, {WS_FH}'''
    fill = f'''s_lshl_b32 s66, s74, 9
      s_add_u32 s66, s66, {MB}
      v_lshl_add_u32 v{vMB}, v1, 3, s66
      s_mul_i32 s66, s{sCB}, 6
      s_mul_i32 s67, s75, 3
      s_add_u32 s66, s66, s67
      s_cmp_le_u32 s66, 84 @ s_cselect_b32 s67, 0, {BIG}
      v_add_u32 v{vH01}, s67, v{vHl}
      s_cmp_le_u32 s66, 83 @ s_cselect_b32 s67, 0, {BIG}
      v_add_u32 v{vH2}, s67, v{vHl}
      s_lshl_b32 s67, s{sRB}, 2
      s_lshl_b32 s68, s74, 1
      s_add_u32 s67, s67, s68
      s_mul_i32 s67, s67, 86
      s_add_u32 s66, s66, s67
      s_lshl_b32 s66, s66, 10
      s_add_u32 s70, s66, {WS_H}
      s_add_u32 s71, s70, {86*1024}
      v_bfe_u32 v3, v0, 2, 2
      v_lshl_add_u32 v3, v2, 2, v3
      v_bfe_u32 v4, v3, 1, 1
      v_lshlrev_b32 v4, 6, v4
      v_lshl_add_u32 v3, v3, 7, v4
      v_bfe_u32 v4, v0, 4, 1
      v_lshl_add_u32 v3, v4, 5, v3
      v_and_b32 v4, 3, v0
      v_lshl_add_u32 v3, v4, 3, v3
      s_lshl_b32 s66, s74, 6
      v_xor_b32 v4, s66, v3
      s_mul_i32 s66, s75, {CCH}
      s_add_u32 s66, s66, {KS + 8192}
      v_add_u32 v{vYA}, s66, v4
      s_lshl_b32 s66, s75, 6
      v_xor_b32 v3, s66, v3
      v_xor_b32 v4, 64, v3
      s_lshl_b32 s66, s75, 13
      s_add_u32 s66, s66, {XR}
      s_mul_i32 s67, s75, 6144
      s_add_u32 s67, s67, {GR}
      s_lshl_b32 s68, s75, 11
      s_add_u32 s68, s68, {UR2}
      v_add_u32 v{vA4}, s66, v3
      v_add_u32 v{vA4 + 1}, s66, v4
      v_add_u32 v{vA3}, s67, v3
      v_add_u32 v{vA3 + 1}, s67, v4
      v_add_u32 v{vA1}, s68, v3
      v_add_u32 v{vA1 + 1}, s68, v4
      s_lshl_b32 s66, s{sRB2}, 16
      s_lshl_b32 s67, s74, 15
      s_add_u32 s66, s66, s67
      s_lshl_b32 s67, s{sCB2}, 7
      s_add_u32 s66, s66, s67
      s_lshl_b32 s67, s75, 6
      s_add_u32 s66, s66, s67
      v_lshlrev_b32 v3, 10, v1
      v_lshl_add_u32 v3, v2, 4, v3
      v_add_u32 v{vOut}, s66, v3
      s_lshl_b32 s66, s75, 2
      s_add_u32 s66, s66, {MISC}
      v_mov_b32 v{vCk}, s66
      v_lshrrev_b32 v3, 3, v0
      v_and_b32 v4, 7, v0
      v_bfe_u32 v5, v0, 4, 1
      v_lshlrev_b32 v5, 2, v5
      v_xor_b32 v4, v4, v5
      v_lshlrev_b32 v4, 4, v4
      v_lshl_add_u32 v{vWd}, v3, 10, v4
      {rot_setup()}
      s_lshl_b32 s{sHs}, s{sRB2}, 1
      s_add_u32 s{sHs}, s{sHs}, s74
      s_mul_i32 s{sHs}, s{sHs}, 86
      s_mul_i32 s66, s75, 43
      s_add_u32 s{sHs}, s{sHs}, s66
      s_lshl_b32 s{sHs}, s{sHs}, 10
      s_add_u32 s{sHs}, s{sHs}, {WS_H}
      s_add_u32 s{sHe}, s{sHs}, {43*1024}
      s_lshl_b32 s66, s{sROT}, 10
      s_add_u32 s{sHc}, s{sHs}, s66
      {hflag_adr}
      s_lshl_b32 s{sX4}, s{sW}, 12
      s_mul_i32 s{sX3}, s{sW}, 3072
      s_lshl_b32 s{sX1}, s{sW}, 10
      s_mul_i32 s{sWs}, s75, {43*16384}
      s_lshl_b32 s66, s74, 13
      s_add_u32 s{sWs}, s{sWs}, s66
      s_lshl_b32 s66, s{sCB2}, 7
      s_add_u32 s{sWs}, s{sWs}, s66
      s_add_u32 s{sWe}, s{sWs}, {43*16384}
      s_add_u32 s66, s{sROT}, 16
      s_cmp_ge_u32 s66, 43 @ s_cselect_b32 s67, 43, 0
      s_sub_u32 s66, s66, s67
      s_lshl_b32 s66, s66, 14
      s_add_u32 s{sWc}, s{sWs}, s66
      s_mov_b32 s{WD}, s28
      s_mov_b32 s{WD+1}, s29
      s_mov_b32 s{WD+2}, {1376*1024}
      s_mov_b32 s{WD+3}, 0x20000
      s_mov_b32 s{OUT}, s30
      s_mov_b32 s{OUT+1}, s31
      s_mov_b32 s{OUT+2}, 0x200000
      s_mov_b32 s{OUT+3}, 0x20000'''
    fill = [x.strip().replace(' @ ', '\n') for x in fill.split('\n')]
    nv = max(i for i, x in enumerate(fill) if x.startswith('v_')) + 1
    for _ in range(nv + cfg.gfa): p(fill.pop(0))
    tn('g_adr')
    DP = ('quad_perm:[1,0,3,2]', 'quad_perm:[2,3,0,1]', 'row_half_mirror', 'row_mirror')
    for r in range(2): p(f'v_dot2_f32_bf16 v{1 + r}, v{XL + 4*r}, s77, 0')
    tn('g_ln')
    for j in range(1, 4):
        for r in range(2): p(f'v_dot2_f32_bf16 v{1 + r}, v{XL + 4*r + j}, s77, v{1 + r}')
    un = []
    for r in range(2):
        for j in range(4):
            un += [f'v_lshlrev_b32 v{XC + 8*r + 2*j}, 16, v{XL + 4*r + j}', f'v_and_b32 v{XC + 8*r + 2*j + 1}, 0xffff0000, v{XL + 4*r + j}']
    for _ in range(3): p(un.pop(0))
    for m in DP:
        for r in range(2): p(f'v_add_f32_dpp v{1 + r}, v{1 + r}, v{1 + r} {m} row_mask:0xf bank_mask:0xf')
        for _ in range(2): p(un.pop(0))
    while un: p(un.pop(0))
    p(f'v_mul_f32 v{MU}, 0x3c000000, v1\nv_mul_f32 v{MU + 2}, 0x3c000000, v2')
    for j in range(4):
        for r in range(2):
            x = XC + 8*r + 2*j
            p(f'v_pk_add_f32 {vr(x, 2)}, {vr(x, 2)}, {vr(MU + 2*r, 2)} op_sel_hi:[1,0] neg_lo:[0,1] neg_hi:[0,1]')
    for j in range(4):
        for r in range(2):
            x = XC + 8*r + 2*j
            if j == 0: p(f'v_pk_mul_f32 {vr(2 + 2*r, 2)}, {vr(x, 2)}, {vr(x, 2)}')
            else: p(f'v_pk_fma_f32 {vr(2 + 2*r, 2)}, {vr(x, 2)}, {vr(x, 2)}, {vr(2 + 2*r, 2)}')
    for r in range(2): p(f'v_add_f32 v{MU + 2*r + 1}, v{2 + 2*r}, v{3 + 2*r}')
    for m in DP:
        for r in range(2): p(f'v_add_f32_dpp v{MU + 2*r + 1}, v{MU + 2*r + 1}, v{MU + 2*r + 1} {m} row_mask:0xf bank_mask:0xf')
    p(f's_mov_b32 exec_lo, 0x10001\ns_mov_b32 exec_hi, 0x10001\nds_write_b128 v{vLw}, {vr(MU, 4)}')
    p(f's_mov_b64 exec, 1\nds_add_u32 v{vM}, v7 offset:{C_L}\ns_mov_b64 exec, -1')
    tn('g_lnw')
    lds_spin(vM, C_L, 4, 1)
    tn('g_lnx')
    R2 = (0, 1)
    p(f'ds_read_b128 {vr(XL, 4)}, v{vSt}')
    for r in R2: p(f'v_mov_b32 v{LR + 2*r}, 0x3727c5ac')
    for r in R2: p(f'v_add_f32_dpp v{36 + r}, v{XL + 2*r}, v{XL + 2*r} quad_perm:[1,0,3,2] row_mask:0xf bank_mask:0xf')
    for r in R2: p(f'v_add_f32_dpp v{36 + r}, v{36 + r}, v{36 + r} quad_perm:[2,3,0,1] row_mask:0xf bank_mask:0xf')
    for r in R2: p(f'v_mul_f32 v{36 + r}, 0x3e800000, v{36 + r}')
    for r in R2: p(f'v_sub_f32 v{38 + r}, v{XL + 2*r}, v{36 + r}')
    for r in R2: p(f'v_mul_f32 v{38 + r}, v{38 + r}, v{38 + r}')
    for r in R2: p(f'v_fmac_f32 v{XL + 2*r + 1}, 0x43000000, v{38 + r}')
    for r in R2: p(f'v_sub_f32 v{LD + 2*r}, v{MU + 2*r}, v{36 + r}')
    for r in R2: p(f'v_add_f32_dpp v{38 + r}, v{XL + 2*r + 1}, v{XL + 2*r + 1} quad_perm:[1,0,3,2] row_mask:0xf bank_mask:0xf')
    for r in R2: p(f'v_cvt_pk_bf16_f32 v{MU + 2*r}, -v{36 + r}, -v{36 + r}')
    for r in R2: p(f'v_add_f32_dpp v{38 + r}, v{38 + r}, v{38 + r} quad_perm:[2,3,0,1] row_mask:0xf bank_mask:0xf')
    for r in R2: p(f'v_fmac_f32 v{LR + 2*r}, 0x3b000000, v{38 + r}')
    for r in R2: p(f'v_rsq_f32 v{LR + 2*r}, v{LR + 2*r}')
    for r in R2: p(f'v_mul_f32 v{LD + 2*r}, v{LD + 2*r}, v{LR + 2*r}')
    for j in range(4):
        for r in R2:
            x = XC + 8*r + 2*j
            p(f'v_pk_fma_f32 {vr(x, 2)}, {vr(x, 2)}, {vr(LR + 2*r, 2)}, {vr(LD + 2*r, 2)} op_sel_hi:[1,0,0]')
    pos = lambda i: 4*(i & 1) + 2*(i >> 2) + ((i >> 1) & 1)
    for z in range(2):
        for i in range(z, 8, 2): p(f'v_cvt_pk_bf16_f32 v{PK + pos(i)}, v{XC + i}, v{XC + 8 + i}')
    for r in R2: p(f'v_mul_f32 v{MU + 2*r + 1}, v{LR + 2*r}, v{LR + 2*r}')
    for k in range(2):
        for z in range(2): p(f'v_permlane32_swap_b32 v{PK + 4*z + k}, v{PK + 4*z + k + 2}')
    for z in range(2):
        for k in range(2): p(f'v_permlane16_swap_b32 v{PK + 4*z + 2*k}, v{PK + 4*z + 2*k + 1}')
    for z in range(2):
        if not cfg.nost & 1: p(f'buffer_store_dwordx4 {vr(PK + 4*z, 4)}, v{vXn}, {srd(WS)}, s{sXn + z} offen sc1')
    p(f's_mov_b32 exec_lo, 0x10001\ns_mov_b32 exec_hi, 0x10001\nbuffer_store_dwordx4 {vr(MU, 4)}, v{vSo}, {srd(WS)}, s{sSt} offen sc1\ns_mov_b64 exec, -1')
    tn('g_lns')
    if cfg.tch and cfg.tpos == 1: touch()
    for _ in range(cfg.gfb):
        if fill: p(fill.pop(0))
    mktag()
    p('s_barrier')
    tn('g_b0')
    def reads(g):
        s, ks = g >> 2, g & 3; sl = s % 3; b = FR[g & 1]
        wo = sl * 12288 + ks * 16 * 192
        xr = lambda tt: f'ds_read_b128 {vr(b + 12 + 4*tt, 4)}, v{vXa + ks} offset:{sl*16384 + tt*4096}'
        if g == 32:
            xr = lambda tt: '\n'.join(f'ds_read2_b32 {vr(b + 12 + 4*tt + 2*k, 2)}, v{vMB} offset0:{64*tt} offset1:{64*tt}' for k in range(2))
        wr = lambda T, j: f'ds_read_b64_tr_b16 {vr(b + 4*T + 2*j, 2)}, v{(vWg, vW1, vWu)[T]} offset:{wo + j*768}'
        if g == 32: return [xr(0), wr(0, 0), wr(0, 1), wr(2, 0), wr(2, 1), wr(1, 0), wr(1, 1), xr(1)]
        return [xr(0), wr(0, 0), wr(0, 1), xr(1), wr(1, 0), wr(1, 1), wr(2, 0), wr(2, 1)]
    extra = {}
    def add(g, m, item): extra.setdefault((g, m), []).append(item)
    add(11, 1, 's_waitcnt vmcnt(0)')
    if cfg.tch and cfg.tpos >= 2: add(cfg.tpos, 2, touch)
    add(31, 0, lambda: lds_pre(vM, C_S, 1))
    add(31, 2, lambda: (lds_post(vM, C_S, 4, 1), tn('g_b8')))
    for g in range(32):
        nxt = reads(g + 1)
        if (g & 3) == 3:
            dist = {2: nxt[0:2], 3: nxt[2:4], 4: nxt[4:6], 5: nxt[6:8]}
            if g < 31: add(g, 2, 'BARRIER')
        else:
            dist = {0: nxt[0:2], 1: nxt[2:3], 2: nxt[3:5], 3: nxt[5:6], 4: nxt[6:7], 5: nxt[7:8]}
        for m, l in dist.items():
            for x in l: add(g, m, x)
    for g in range(2):
        for T in range(3):
            a = CSA + 16*T
            add(g, 2*T + 1, ('MFMA', f'v_mfma_f32_32x32x16_bf16 {vr(a, 16)}, {vr(ONE, 4)}, {vr(FR[g] + 4*T, 4)}, {"0" if g == 0 else vr(a, 16)}'))
    add(2, 3, f'v_permlane32_swap_b32 v{CSA}, v{CSA + 32}')
    add(2, 4, f'v_cvt_pk_bf16_f32 v{CSA}, v{CSA}, v{CSA + 16}')
    add(2, 5, f'ds_write_b16 v{vCS1}, v{CSA}')
    add(3, 0, f'ds_write_b16_d16_hi v{vCS2}, v{CSA}')
    for x in reads(0): p(x)
    nb = 0
    for g in range(32):
        b = FR[g & 1]
        for m in range(6):
            T, tt = m >> 1, m & 1
            a = ACC + 16 * (2*T + tt)
            c = '0' if g == 0 else vr(a, 16)
            p(f'v_mfma_f32_32x32x16_bf16 {vr(a, 16)}, {vr(b + 4*T, 4)}, {vr(b + 12 + 4*tt, 4)}, {c}')
            late = []
            ex = extra.get((g, m), [])
            for x in ex:
                if x == 'BARRIER':
                    p('s_waitcnt lgkmcnt(0)\ns_barrier'); nb += 1
                    if nb == cfg.gprio: p('s_setprio 2')
                    tn(f'g_b{nb}')
                elif isinstance(x, tuple): late.append(x[1])
                else: emit(x)
            if g >= cfg.gf0 and 'BARRIER' not in ex:
                for _ in range(cfg.gf):
                    if fill: p(fill.pop(0))
            for x in late: p(x)
        if g == 29: assert not fill
    for tt in range(2):
        for T in (0, 2, 1):
            a = ACC + 16 * (2*T + tt)
            p(f'v_mfma_f32_32x32x16_bf16 {vr(a, 16)}, {vr(FR[0] + 4*T, 4)}, {vr(FR[0] + 12 + 4*tt, 4)}, {vr(a, 16)}')
    lds_add(vM, C_G, 7)
    tn('g_corr')
    hmod = '' if cfg.wbl2 else [' sc1', ' sc0 sc1', ' nt sc1', ' nt sc0 sc1'][cfg.hs]
    for tt in range(2):
        for q in range(3):
            if q < 2: ga, ua = ACC + 16*tt + 8*q, ACC + 16*(4 + tt) + 8*q
            else: ga, ua = ACC + 16*(2 + tt), ACC + 16*(2 + tt) + 8
            for e in range(8): p(f'v_mul_f32 v{ga + e}, v{ga + e}, v{ua + e}')
            for j in range(4): p(f'v_cvt_pk_bf16_f32 v{ga + j}, v{ga + 2*j}, v{ga + 2*j + 1}')
            hst = p(f'buffer_store_dwordx4 {vr(ga, 4)}, v{vH2 if q == 2 else vH01}, {srd(WS)}, s{70 + tt} offen offset:{1024*q}{hmod}')
    if cfg.wbl2:
        p('s_waitcnt vmcnt(0)')
        hst = p('buffer_wbl2 sc1')
    tn('g_hst')
    if cfg.gp2 != 2: p(f's_setprio {cfg.gp2}')
    HW = cfg.hwin; HB = 176; AC2 = 224; RF = 32; NRF = 16; RING = cfg.adist + 1
    assert HW <= 12 and RING <= 3
    def afr(n): return RF + 8 * (n if n < NRF else (n - NRF) % RING)
    def aread(n, dt, s):
        base, stride = piece_loc(n)
        reg, rb_ = {4096: (vA4, XR), 3072: (vA3, GR), 1024: (vA1, UR2)}[stride]
        p(f'ds_read_b64_tr_b16 {vr(afr(n) + 4*dt + 2*s, 2)}, v{reg + dt} offset:{base - rb_ + stride*s}')
    gwh = {}
    def g_wd(n):
        base, stride = piece_loc(n)
        p(f's_add_u32 m0, s{ {4096: sX4, 3072: sX3, 1024: sX1}[stride] }, {base}')
        gwh[n] = p(f'buffer_load_dwordx4 v{vWd}, {srd(WD)}, s{sWc} offen lds')
        adv = f's_add_u32 s{sWc}, s{sWc}, 16384\ns_cmp_eq_u32 s{sWc}, s{sWe}\ns_cselect_b32 s{sWc}, s{sWs}, s{sWc}'
        if n < 42: p(adv)
    def grpC():
        lds_spin(vM, C_G, 4, 1)
        for n in range(16, 27): g_wd(n)
        tn('g_c')
    def ackflag():
        if cfg.nch >= 0:
            p(f'''v_lshrrev_b32 v1, {cfg.nch}, v0
              v_mul_u32_u24 v1, 14, v1
              v_sub_u32 v1, s11, v1
              v_cmp_gt_u32 vcc, 16, v1
              v_lshlrev_b32 v2, 7, v0
              v_lshl_add_u32 v2, v1, 2, v2
              v_mov_b32 v1, s{sTAG}
              s_and_b32 vcc_lo, vcc_lo, {(1 << (2 << cfg.nch)) - 1}
              s_mov_b32 vcc_hi, 0''')
        p.wait_vm(hst)
        tn('g_ack')
        if cfg.nch >= 0: p(f's_mov_b64 exec, vcc\nbuffer_store_dword v1, v2, {srd(WS)}, s{sFo} offen sc1\ns_mov_b64 exec, -1')
        else: flag_store(sFo)
        p(f'v_lshrrev_b32 v1, 10, v{vOut}\nv_lshlrev_b32 v1, 3, v1\ns_movk_i32 s66, {WS_ST + 4}')
        p(f'buffer_load_dword v160, v1, {srd(WS)}, s66 offen sc1')
    def preread():
        lds_spin(vCk, C_W, 2, 1)
        tn('g_cw')
        for n in range(NRF):
            for dt in range(2):
                for s_ in range(2): aread(n, dt, s_)
        lds_add(vCk, C_R, 7)
        tn('g_pre')
    for x in {0: (ackflag, grpC, preread), 1: (grpC, ackflag, preread), 2: (grpC, preread, ackflag), 3: (preread, ackflag, grpC), 4: (preread, grpC, ackflag)}[cfg.cfirst]: x()
    lds_spin(vCk, C_R, 2, 1)
    early = cfg.spoll & 1 and cfg.pearly
    for n in range(27, 27 + cfg.dpre + 1):
        if early and n == 27 + cfg.pearly: p(f's_load_dwordx16 s[16:31], s[34:35], s{sFi} glc')
        if n < 27 + cfg.dpre: g_wd(n)
    tn('g_d')
    if cfg.spoll & 1: spoll(16, 16, sFi, early)
    else: vpoll(16, sFi)
    tn('g_fh')
    if cfg.gp3 != cfg.gp2: p(f's_setprio {cfg.gp3}')
    def hload(n):
        if cfg.g2x == 1 and n >= HW: return
        hm = [" sc1", "", " nt", " sc0 sc1", " nt sc1"][cfg.hl]
        if cfg.hat: p(f'buffer_load_dwordx4 {vr(HB + 4*(n % HW), 4)}, off, {srd(44)}, s{sHc}{hm}')
        else: p(f'buffer_load_dwordx4 {vr(HB + 4*(n % HW), 4)}, v{vHl}, {srd(WS)}, s{sHc} offen{hm}')
        if n < 42 and cfg.g2x != 2: p(f's_add_u32 s{sHc}, s{sHc}, 1024\ns_cmp_eq_u32 s{sHc}, s{sHe}\ns_cselect_b32 s{sHc}, s{sHs}, s{sHc}')
    if cfg.hat: p(f's_mov_b32 s44, s34\ns_or_b32 s45, s35, 0x100000\ns_mov_b32 s46, {WS_SIZE}\ns_mov_b32 s47, 0x800000')
    for n in range(HW): hload(n)
    fX, fR, fB, fY, fP, vXt = 56, 160, 72, 88, 96, 161
    g2 = {}
    def add2(n, m, x): g2.setdefault((n, m), []).append(x)
    xa_ = [f's_mul_i32 s66, s75, {CCH}\ns_lshl_b32 s67, s74, 11\ns_add_u32 s66, s66, s67\ns_add_u32 s66, s66, {KS + 12288}',
           'v_and_b32 v1, 31, v0', 'v_bfe_u32 v2, v0, 2, 2', 'v_lshl_add_u32 v1, v1, 6, s66', 'v_lshl_add_u32 v1, v2, 4, v1',
           'v_lshrrev_b32 v2, 5, v0', f'v_lshl_add_u32 v{vXt}, v2, 3, v1'] + [f'v_xor_b32 v{vXt + j}, {16*j}, v{vXt}' for j in (1, 2, 3)]
    xa_ += [f's_lshl_b32 s66, s{sW}, 12\ns_add_u32 s66, s66, {XR + 16384}\nv_add_u32 v5, s66, v{vHl}',
            f's_xor_b32 s66, s{sW}, 2\ns_lshl_b32 s66, s66, 12\ns_add_u32 s66, s66, {XR + 16384}\nv_add_u32 v6, s66, v{vHl}']
    for k, x in enumerate(xa_): add2(1 + k // 2, k & 1, x)
    assert cfg.xstep >= 9
    add2(cfg.xstep - 1, 0, lambda: lds_pre(vCk, C_X, 4)); add2(cfg.xstep, 0, lambda: lds_post(vCk, C_X, 2, 4))
    for j in range(4): add2(cfg.xstep, 1, f'ds_read_b64 {vr(fX + 2*j, 2)}, v{vXt + j}')
    xw = []
    for j in range(8): xw += [f'v_lshlrev_b32 v{fB + 2*j}, 16, v{fX + j}', f'v_and_b32 v{fB + 2*j + 1}, 0xffff0000, v{fX + j}']
    xs0 = cfg.xstep + 2
    for k, x in enumerate(xw): add2(xs0 + k // 4, (k >> 1) & 1, x)
    assert xs0 + len(xw) // 4 <= cfg.ystep
    n2 = NRF - cfg.adist
    pre2 = {}
    if cfg.dpre < 16:
        for k, n in enumerate(range(27 + cfg.dpre, 43)):
            nl = cfg.dst + k // cfg.dper
            pre2.setdefault((nl, cfg.dm), []).append(lambda n=n: g_wd(n))
        dsig = nl + HW + (0 if (cfg.dm == 1 or cfg.g2o != 1) else -1)
        assert dsig <= 27 - cfg.adist - 3, dsig
        add2(dsig, 0, lambda: (p.wait_vm(gwh[42]), lds_add(vCk, C_W4, 7)))
        add2(27 - cfg.adist - 2, 0, lambda: lds_pre(vCk, C_W4, 3)); add2(27 - cfg.adist - 1, 1, lambda: lds_post(vCk, C_W4, 2, 3))
    add2(0, 0, lambda: lds_add(vCk, C_W3, 7))
    add2(n2 - 2, 0, lambda: lds_pre(vCk, C_W3, 3)); add2(n2 - 1, 1, lambda: lds_post(vCk, C_W3, 2, 3))
    add2(24, 1, lambda: (lds_add(vCk, C_F, 7), tn('g_n27')))
    add2(cfg.ystep - 1, 0, lambda: lds_pre(vCk, C_Y, 3)); add2(cfg.ystep, 0, lambda: (lds_post(vCk, C_Y, 2, 3), tn('g_y')))
    for Q in range(4): add2(cfg.ystep, 1, f'ds_read_b64_tr_b16 {vr(fY + 2*Q, 2)}, v{vYA} offset:{1024*Q}')
    yw = []
    for j in range(8):
        yw += [f'v_lshlrev_b32 v1, 16, v{fY + j}', f'v_and_b32 v2, 0xffff0000, v{fY + j}',
               f'v_add_f32 v{fB + 2*j}, v{fB + 2*j}, v1', f'v_add_f32 v{fB + 2*j + 1}, v{fB + 2*j + 1}, v2']
    ng = 2*(42 - cfg.ystep) - 2
    per = -(-len(yw) // ng)
    for k, x in enumerate(yw): gi = 2*(cfg.ystep + 1) + 1 + k // per; add2(gi >> 1, gi & 1, x)
    add2(40, 0, lambda: lds_pre(vCk, C_F, 4)); add2(41, 1, lambda: lds_post(vCk, C_F, 2, 4))
    for n in range(43):
        for m in range(2):
            dt = m if n < 42 else 1 - m
            a = AC2 + 16 * dt
            c = '0' if n == 0 else vr(a, 16)
            p(f'v_mfma_f32_32x32x16_bf16 {vr(a, 16)}, {vr(afr(n) + 4*dt, 4)}, {vr(HB + 4*(n % HW), 4)}, {c}')
            if n == 0 and m == 0: tn('g_h0')
            if n == 16 and m == 0: tn('g_n16')
            for x in pre2.get((n, m), []): emit(x)
            if cfg.g2o == 0:
                if NRF <= n + cfg.adist <= 42:
                    for s_ in range(2): aread(n + cfg.adist, m, s_)
                if m == 1 and n + HW < 43: hload(n + HW)
            elif cfg.g2o == 1:
                if m == 0 and n >= 1 and n - 1 + HW < 43: hload(n - 1 + HW)
                if m == 1 and NRF <= n + cfg.adist <= 42:
                    for dd in range(2):
                        for s_ in range(2): aread(n + cfg.adist, dd, s_)
            elif cfg.g2o == 2:
                if m == 1 and n + HW < 43: hload(n + HW)
                if m == 0 and NRF <= n + cfg.adist <= 42:
                    for dd in range(2):
                        for s_ in range(2): aread(n + cfg.adist, dd, s_)
            elif cfg.g2o == 3:
                if m == 1 and n + HW < 43: hload(n + HW)
                if NRF <= n + cfg.adist <= 42:
                    for s_ in range(2): aread(n + cfg.adist, m, s_)
            for x in g2.get((n, m), []): emit(x)
    tn('g_g2')
    for Q in range(4): p(f'ds_write_b128 v5, {vr(AC2 + 16 + 4*Q, 4)} offset:{1024*Q}')
    for e in range(16): p(f'v_fmac_f32 v{fB + e}, v{AC2 + e}, v{fR}')
    p('s_waitcnt lgkmcnt(0)\ns_barrier')
    ts(8)
    for Q in range(4): p(f'ds_read_b128 {vr(fP + 4*Q, 4)}, v6 offset:{1024*Q}')
    for h in range(2):
        for e in range(8*h, 8*h + 8): p(f'v_fmac_f32 v{fB + e}, v{fP + e}, v{fR}')
        for j in range(4*h, 4*h + 4): p(f'v_cvt_pk_bf16_f32 v{fX + j}, v{fB + 2*j}, v{fB + 2*j + 1}')
        p(f'v_permlane32_swap_b32 v{fX + 4*h}, v{fX + 4*h + 2}\nv_permlane32_swap_b32 v{fX + 4*h + 1}, v{fX + 4*h + 3}')
        p(f'buffer_store_dwordx4 {vr(fX + 4*h, 4)}, v{vOut}, {srd(OUT)}, 0 offen offset:{32*h}')
    finish()

    p.label('L_S')
    p.vmq, p.dsq = st0
    prio = [0]
    def setprio(x):
        if prio[0] != x: p(f's_setprio {x}'); prio[0] = x
    setprio((cfg.sprio >> 8) & 1)
    vXo, vWo, vWd, vIdx, vL16, vPar = 10, 14, 17, 20, 31, 32
    LAM, Wv, P1, P2, P4, Q1, Q2, Q4, Q8, Q16, E1, E2, E4, E8, T0, T1 = range(40, 72, 2)
    hW, hP1, hP2, hP4, hE1, hE2, hE4, hE8 = range(72, 80)
    hq = lambda j: 79 + j
    vSR, vDW, vDR = 109, 110, 111
    AFr, BFr, DK = 112, 144, 176
    vTA, vCA, vUB, vXB, vYS, vYL, vYW, vCk, vF, vUo, vPoll, vM, vOne, vCSr, vXS = 224, 228, 229, 233, 234, 235, 236, 237, 238, 239, 240, 244, 245, 248, 226
    sX4, sX3, sX1, sWc, sWs, sWe, sYB, sCS, sFA, sFYo, sFYi = 6, 7, 8, 9, 10, 11, 22, 30, 31, 32, 33
    p(f'''s_sub_u32 s74, s{sW}, 4
      s_lshr_b32 s75, s74, 1
      s_and_b32 s77, s74, 1
      s_lshr_b32 s66, s2, 3
      s_lshl_b32 s66, s66, 1
      s_add_u32 s66, s66, s75
      s_lshl_b32 s66, s66, 3
      s_and_b32 s67, s2, 7
      s_add_u32 s73, s66, s67
      s_lshl_b32 s67, s73, 8
      s_lshl_b32 s68, s77, 7
      s_add_u32 s67, s67, s68
      v_lshl_add_u32 v18, v0, 1, s67
      s_lshl_b32 s66, s73, 1
      v_mov_b32 v19, s66''')
    def par_loads():
        p(f'global_load_ushort v{vPar + 6}, v19, s[18:19]')
        for i in range(6): p(f'global_load_ushort v{vPar + i}, v18, s[{6 + 2*i}:{7 + 2*i}]')
        p(f'global_load_ushort v{vPar + 7}, v19, s[20:21]')
    p(f'''s_and_b32 s66, s{sRB}, 1
      s_lshl_b32 s67, s66, 2
      v_and_b32 v1, 7, v0
      v_lshrrev_b32 v2, 4, v0
      v_xor_b32 v1, v1, v2
      v_xor_b32 v1, s67, v1
      v_lshrrev_b32 v2, 3, v0
      s_lshl_b32 s68, s74, 15
      v_lshl_add_u32 v2, v2, 10, s68
      v_lshl_add_u32 v{vXo}, v1, 4, v2
      v_xor_b32 v1, 4, v1
      v_lshl_add_u32 v2, v1, 4, v2
      v_add_u32 v{vXo + 1}, {7168}, v2
      v_add_u32 v{vXo + 2}, {2*7168}, v{vXo}
      v_add_u32 v{vXo + 3}, {3*7168}, v2''')
    wcalc = lambda i: f'''v_add_u32 v1, {64*i}, v0
          v_mul_u32_u24 v2, 0x5556, v1
          v_lshrrev_b32 v2, 18, v2
          v_mul_u32_u24 v3, 12, v2
          v_sub_u32 v3, v1, v3
          v_add_u32 v2, s33, v2
          v_xor_b32 v2, s32, v2
          v_lshlrev_b32 v3, 4, v3
          v_mad_u32_u24 v2, v2, s31, v3
          v_subrev_u32 v{vWo + i}, {1024*i}, v2'''
    p(f'''s_lshl_b32 s66, s74, 12
      s_add_u32 s66, s66, {XR}
      s_mul_i32 s68, s74, 3072
      s_add_u32 s67, s68, {GR}
      s_add_u32 s68, s68, {UR}
      s_lshl_b32 s69, s{sRB}, 17
      s_mul_i32 s70, s{sCB}, 192
      s_lshr_b32 s71, s{sRB}, 1
      v_lshlrev_b32 v{vL16}, 4, v0''')
    if cfg.ypois: p('v_mov_b64 v[4:5], -1\nv_mov_b64 v[6:7], -1')
    p('s_waitcnt lgkmcnt(0)')
    tn('s_karg')
    p('s_barrier')
    if cfg.parfirst: par_loads()
    srds('S')
    m0 = [None]
    def setm0(key, text):
        if m0[0] != key: p(text); m0[0] = key
    slabh = {}
    def dma_items(s):
        sl = s % 3
        it = []
        def x(i):
            if i == 0:
                p(f's_add_u32 s78, s71, {s}\ns_and_b32 s78, s78, 7\ns_lshl_b32 s76, s78, 7\ns_add_u32 s76, s76, s69')
                p(f's_mul_i32 s23, s78, {64*2752}\ns_add_u32 s23, s23, s70')
            setm0(('x', s), f's_add_u32 m0, s66, {sl*16384}')
            p(f'buffer_load_dwordx4 v{vXo + i}, {srd(XD)}, s76 offen offset:{1024*i} lds')
        def w(k, i):
            setm0(('w', s, k), f's_add_u32 m0, s{67 + k}, {sl*12288}')
            slabh[s] = p(f'buffer_load_dwordx4 v{vWo + i}, {srd((WG, WU)[k])}, s23 offen offset:{1024*i} lds')
        for i in range(4): it.append(lambda i=i: x(i))
        for k in range(2):
            for i in range(3): it.append(lambda k=k, i=i: w(k, i))
        return it
    def seg(work, dma=()):
        work = list(work); dma = list(dma)
        gap = max(1, -(-len(work) // len(dma))) if dma else len(work)
        if cfg.dmaf and dma: gap = min(gap, cfg.dmaf - 1)
        while work or dma:
            if dma: emit(dma.pop(0))
            for _ in range(gap if dma else len(work)):
                if work: emit(work.pop(0))
    d0 = dma_items(0)
    p(f's_and_b32 s32, s{sRB}, 1\ns_lshl_b32 s32, s32, 5\ns_lshl_b32 s33, s74, 4\ns_movk_i32 s31, 2752')
    for i in range(4):
        emit(d0.pop(0))
        if i < 3: p(wcalc(i))
    if not cfg.parfirst: par_loads()
    srds2('S')
    p(f's_lshl_b32 s{sYB}, s73, 12\ns_add_u32 s{sYB}, s{sYB}, {WS_YT}')
    d1 = dma_items(1)
    if cfg.ypois:
        p(f's_lshl_b32 s72, s77, 11\ns_add_u32 s72, s72, s{sYB}')
        d1.insert(9, f'buffer_store_dwordx4 v[4:7], v{vL16}, {srd(WS)}, s72 offen sc1\nbuffer_store_dwordx4 v[4:7], v{vL16}, {srd(WS)}, s72 offen offset:1024 sc1')
    sT0 = 17
    vTX, vTY = vTA, vTA + 1
    w_idx = []
    A = w_idx.append
    A('v_and_b32 v1, 31, v0'); A('v_lshrrev_b32 v2, 5, v0')
    A(f's_xor_b32 s24, s74, 1\ns_mul_i32 s24, s24, 8704\ns_add_u32 s24, s24, {KS}'); A(f'v_add_u32 v{vDR}, s24, v{vL16}')
    A(f'''s_mul_i32 s{sT0}, s75, {TCH}
      s_add_u32 s{sT0}, s{sT0}, {TT + 16}
      s_mul_i32 s18, s77, 62
      s_add_u32 s18, s18, 128
      s_lshl_b32 s19, s77, 3
      s_add_u32 s19, s19, s{sT0}
      s_add_u32 s19, s19, 1024''')
    A('v_sub_u32 v8, 2, v2'); A('v_lshlrev_b32 v3, v8, v1'); A('v_mad_u32_u24 v3, v2, s18, v3'); A(f'v_lshl_add_u32 v{vTX}, v3, 2, s19')
    A(f'''s_mul_i32 s18, s77, 124
      s_add_u32 s18, s18, 4
      s_lshl_b32 s19, s77, 11
      s_add_u32 s19, s19, s{sT0}
      s_mul_i32 s20, s77, 3
      s_sub_u32 s20, 3, s20''')
    A('v_lshlrev_b32 v3, s20, v1'); A('v_mad_u32_u24 v3, v2, s18, v3'); A(f'v_lshl_add_u32 v{vTY}, v3, 2, s19')
    w_idxB = w_idx
    w_idx = []
    A = w_idx.append
    A(f's_mul_i32 s25, s74, 8704'); A(f's_add_u32 s25, s25, {KS}')
    A('v_and_b32 v1, 31, v0'); A('v_lshrrev_b32 v2, 5, v0'); A('v_mul_u32_u24 v3, 272, v1'); A('v_lshl_add_u32 v3, v2, 4, v3')
    A(f'v_add_u32 v{vSR}, s25, v3'); A(f'v_add_u32 v{vDW}, s25, v{vL16}')
    A(f'v_mov_b32 v{vM}, {MISC}'); A(f'v_mov_b32 v{vOne}, 1')
    A(f's_lshl_b32 s24, s75, 2\ns_add_u32 s24, s24, {MISC}'); A(f'v_mov_b32 v{vCk}, s24')
    A(f's_mul_i32 s24, s74, 96\ns_add_u32 s24, s24, {CSL}'); A(f'v_add_u32 v{vCSr}, s24, v{vL16}')
    A(f'''s_mul_i32 s{sCS}, s{sCB}, 6144
      s_mul_i32 s24, s{sRB}, 192
      s_add_u32 s{sCS}, s{sCS}, s24
      s_mul_i32 s24, s75, 3072
      s_add_u32 s{sCS}, s{sCS}, s24
      s_mul_i32 s24, s77, 96
      s_add_u32 s{sCS}, s{sCS}, s24
      s_add_u32 s{sCS}, s{sCS}, {WS_CSP}
      s_lshl_b32 s{sFA}, s{sTB}, 2
      s_add_u32 s{sFA}, s{sFA}, {WS_FA}
      s_cmp_eq_u32 s74, 0
      s_cselect_b32 s{sFA}, s{sFA}, {BIG}''')
    A(lambda: tn('s_idx'))

    def cmul(o, d, x, y, t):
        o.append(f'v_pk_mul_f32 {vr(t, 2)}, {vr(x, 2)}, {vr(y, 2)} op_sel:[0,0] op_sel_hi:[1,0]')
        o.append(f'v_pk_fma_f32 {vr(d, 2)}, {vr(x, 2)}, {vr(y, 2)}, {vr(t, 2)} op_sel:[1,1,0] op_sel_hi:[0,1,1] neg_lo:[1,0,0]')
    tv = [0]
    def hmul(o, d, x, y):
        t = 107 + tv[0] % 2; tv[0] += 1
        o.append(f'v_pk_mul_f16 v{t}, v{x}, v{y} op_sel:[0,0] op_sel_hi:[1,0]')
        o.append(f'v_pk_fma_f16 v{d}, v{x}, v{y}, v{t} op_sel:[1,1,0] op_sel_hi:[0,1,1] neg_lo:[1,0,0]')
    def put(o, row, r):
        o.append(lambda: (setm0('ks', 's_mov_b32 m0, s25'), p(f'ds_write_addtid_b32 v{r} offset:{272*row}')))
    w_set = []
    A = w_set.append
    for i in (6, 0, 1, 2, 3, 4, 5, 7): A(f'v_lshlrev_b32 v{vPar + i}, 16, v{vPar + i}')
    A(lambda: tn('s_par'))
    ld = vPar + 6
    A(f's_mov_b32 s24, {LOG2E}'); A(f'v_mul_f32 v1, s24, v{ld}'); A(f'v_fma_f32 v2, v{ld}, s24, -v1')
    A(f'v_fmac_f32 v2, {LOG2E_LO}, v{ld}'); A('v_exp_f32 v1, v1'); A(f'v_mul_f32 v2, {LN2}, v2'); A('v_fmac_f32 v1, v1, v2')
    A('v_cvt_pk_bf16_f32 v1, v1, v1'); A('v_and_b32 v1, 0xffff0000, v1')
    for i in range(4): A(f'v_mul_f32 v{vPar + i}, v{vPar + i}, v1')
    cmul(w_set, Wv, vPar + 4, vPar + 2, T0)
    A(f'v_mul_f32 v{LAM}, s24, v{vPar}'); A(f'v_mul_f32 v{LAM + 1}, {INV2PI}, v{vPar + 1}')
    A(f'v_max_f32 v8, |v{Wv}|, |v{Wv + 1}|')
    mx = [f'v_max_u32_dpp v8, v8, v8 {m} row_mask:0xf bank_mask:0xf' for m in DP]
    for (dst, n) in ((P1, 1), (Q1, 8), (E1, 256)):
        if n == 1: A(f'v_exp_f32 v1, v{LAM}'); A(f'v_fract_f32 v2, v{LAM + 1}')
        else:
            lit = {8: 0x41000000, 256: 0x43800000}[n]
            A(f'v_mul_f32 v1, {lit}, v{LAM}'); A(f'v_mul_f32 v2, {lit}, v{LAM + 1}'); A('v_exp_f32 v1, v1'); A('v_fract_f32 v2, v2')
        if mx: A(mx.pop(0))
        A('v_cos_f32 v3, v2'); A(f'v_sin_f32 v{dst + 1}, v2')
        if mx: A(mx.pop(0))
        A(f'v_mul_f32 v{dst}, v1, v3'); A(f'v_mul_f32 v{dst + 1}, v1, v{dst + 1}')
    for k in range(4): A(f'v_readlane_b32 s{26 + k}, v8, {16*k}')
    cmul(w_set, P2, P1, P1, T0); cmul(w_set, E2, E1, E1, T1)
    A(f's_max_u32 s26, s26, s27\ns_max_u32 s28, s28, s29\ns_max_u32 s26, s26, s28\ns_lshr_b32 s26, s26, 23\ns_sub_u32 s26, 266, s26\ns_min_u32 s26, s26, 253')
    A(f's_sub_u32 s27, 254, s26\ns_lshl_b32 s27, s27, 23\ns_lshl_b32 s26, s26, 23')
    cmul(w_set, P4, P2, P2, T0); cmul(w_set, E4, E2, E2, T1)
    A(f'v_mul_f32 v{Wv}, s26, v{Wv}'); A(f'v_mul_f32 v{Wv + 1}, s26, v{Wv + 1}')
    cmul(w_set, Q2, Q1, Q1, T0); cmul(w_set, E8, E4, E4, T1)
    for (h, f) in ((hW, Wv), (hP1, P1), (hE1, E1), (hP2, P2)): A(f'v_cvt_pk_f16_f32 v{h}, v{f}, -v{f + 1}')
    cmul(w_set, Q4, Q2, Q2, T0)
    for (h, f) in ((hE2, E2), (hP4, P4)): A(f'v_cvt_pk_f16_f32 v{h}, v{f}, -v{f + 1}')
    cmul(w_set, Q8, Q4, Q4, T0)
    for (h, f) in ((hE4, E4), (hE8, E8)): A(f'v_cvt_pk_f16_f32 v{h}, v{f}, -v{f + 1}')
    cmul(w_set, Q16, Q8, Q8, T0)
    for (j, f) in ((1, Q1), (2, Q2), (4, Q4), (8, Q8), (16, Q16)): A(f'v_cvt_pk_f16_f32 v{hq(j)}, v{f}, v{f + 1}')
    w_k = []
    keep = {0: hW, 1: 96, 2: 97, 3: 98, 8: 99, 9: 100, 12: 101, 14: 102}
    ov = [0]
    rows = [(1, 0, hP1), (8, 0, hE1), (2, 0, hP2), (12, 0, hE2), (3, 1, hP2), (9, 8, hP2), (14, 8, hE2), (4, 0, hP4), (5, 1, hP4), (6, 2, hP4),
            (7, 3, hP4), (10, 8, hP4), (11, 9, hP4), (13, 12, hP4), (15, 14, hP4), (16, 0, hE4), (17, 8, hE4), (18, 12, hE4), (19, 14, hE4), (20, 0, hE8)]
    put(w_k, 0, hW)
    pend = None
    for (row, src, fac) in rows:
        if row in keep: d = keep[row]
        else: d = 103 + ov[0] % 4; ov[0] += 1
        hmul(w_k, d, keep[src], fac)
        if pend: put(w_k, *pend)
        pend = (row, d)
    put(w_k, *pend)
    for ks in range(8): w_k.append(f'ds_read_b128 {vr(AFr + 4*ks, 4)}, v{vSR} offset:{32*ks}')
    w_k.append('v_mov_b32 v1, 0x3c00'); put(w_k, 0, 1)
    for j in (1, 2, 4, 8, 16): put(w_k, j, hq(j))
    pend = None
    for j in [3, 5, 6, 7] + list(range(9, 16)) + list(range(17, 32)):
        hb = 1 << (j.bit_length() - 1)
        if j < 16: d = hq(j)
        else: d = 103 + ov[0] % 4; ov[0] += 1
        hmul(w_k, d, hq(j - hb), hq(hb))
        if pend: put(w_k, *pend)
        pend = (j, d)
    put(w_k, *pend)
    for ks in range(8): w_k.append(f'ds_read_b128 {vr(BFr + 4*ks, 4)}, v{vSR} offset:{32*ks}')
    for ks in range(8):
        w_k.append(f'v_mfma_f32_32x32x16_f16 {vr(DK, 16)}, {vr(AFr + 4*ks, 4)}, {vr(BFr + 4*ks, 4)}, {"0" if ks == 0 else vr(DK, 16)}')
    def two_way(f0, f1):
        L1 = p.newlabel('HF'); L2 = p.newlabel('HFX')
        p(f's_cmp_eq_u32 s77, 0\ns_cbranch_scc0 {L1}')
        p.cond_begin(); f0(); p(f's_branch {L2}'); p.cond_end()
        p.label(L1)
        p.cond_begin(); f1(); p.cond_end()
        p.label(L2)
    def xadr0():
        p(f'''s_sub_u32 s18, s{sT0}, 12
          s_add_u32 s19, s18, 512
          v_lshl_add_u32 v1, v0, 5, s18
          v_lshl_add_u32 v2, v0, 4, s19
          v_min_u32 v21, v1, v2
          v_lshrrev_b32 v1, 5, v0
          v_add_u32 v2, 31, v0
          v_mad_i32_i24 v22, v1, -4, v21
          v_lshrrev_b32 v2, 6, v2
          v_mad_i32_i24 v23, v1, -8, v21
          v_lshl_add_u32 v20, v2, 2, v21
          v_mad_i32_i24 v24, v1, -12, v21
          v_lshrrev_b32 v1, 1, v0
          v_mul_u32_u24 v1, {CST - 32}, v1
          v_add_u32 v25, v1, v{vXB}
          v_mov_b64 v[4:5], 0
          v_mov_b64 v[6:7], 0''')
    def xadr1():
        p(f'''s_add_u32 s18, s{sT0}, 1528
          s_add_u32 s19, s{sT0}, 2044
          v_min_u32 v1, 1, v0
          v_lshl_add_u32 v20, v0, 3, s18
          v_lshl_add_u32 v22, v0, 2, s19
          v_and_b32 v2, 1, v0
          v_lshl_add_u32 v21, v1, 2, v20
          v_lshl_add_u32 v24, v1, 2, v22
          v_lshl_add_u32 v23, v2, 2, v22''')
    def exp0():
        p('''ds_read2_b32 v[80:81], v20 offset0:0 offset1:1
          ds_read_b32 v82, v20 offset:8
          ds_read_b32 v83, v21 offset:12
          ds_read2_b32 v[84:85], v22 offset0:4 offset1:5
          ds_read_b32 v86, v22 offset:24
          ds_read_b32 v87, v23 offset:28
          ds_read2_b32 v[88:89], v24 offset0:8 offset1:9
          ds_read_b32 v90, v24 offset:40''')
        p('s_mov_b64 exec, 0xff\nds_write_b128 v25, v[4:7]\ns_mov_b64 exec, -1')
        for g in (3, 2, 1, 0):
            d = 104 + 4*g
            for j in range(4): p(f'v_cvt_pk_bf16_f32 v{d + j}, v{83 - g + 2*j}, v{84 - g + 2*j}')
            p(f'ds_write_b128 v{vXB}, {vr(d, 4)} offset:{32 + CST*g}')
    def exp1():
        p('''ds_read2_b32 v[82:83], v20 offset0:2 offset1:3
          ds_read_b32 v84, v20 offset:16
          ds_read2_b32 v[86:87], v22 offset0:1 offset1:2
          ds_read_b32 v88, v23 offset:4
          ds_read2_b32 v[90:91], v22 offset0:65 offset1:66
          ds_read_b32 v92, v23 offset:260
          ds_read2_b32 v[80:81], v21 offset0:0 offset1:1
          ds_read_b32 v89, v24''')
        a_, b_, c_, d_, e_ = 80, 81, 82, 83, 84
        seqB = {-3: a_, -2: b_, -1: c_, 0: c_, 1: c_, 2: c_, 3: d_, 4: d_, 5: d_, 6: e_, 7: e_}
        def seqC(j, j1, X, a): return {-3: a, -2: j, -1: j, 0: j, 1: j, 2: j, 3: j, 4: X, 5: j1, 6: j1, 7: j1}
        passes = [(seqB, 104, 1024), (seqC(86, 87, 88, 89), 108, 2048), (seqC(90, 91, 92, 90), 112, 3072)]
        cur = {}
        for g in range(4):
            for (sq, q, off) in passes:
                for j in range(4):
                    pr = (sq[2*j - g], sq[2*j + 1 - g])
                    if cur.get(q + j) != pr: p(f'v_cvt_pk_bf16_f32 v{q + j}, v{pr[0]}, v{pr[1]}'); cur[q + j] = pr
                p(f'ds_write_b128 v{vXB}, {vr(q, 4)} offset:{32 + off + CST*g}')
    def dump(r):
        for i in range(6): p(f'v_mul_f32 v{80 + i}, s27, v{r + i}')
        p(f'ds_write_b128 v{vDW}, v[80:83]\nds_write_b64 v{vDW}, v[84:85] offset:1024')
    w_k.append(lambda: two_way(lambda: (xadr0(), dump(DK + 6)), lambda: (xadr1(), dump(DK))))
    w_T = [f'ds_read_b128 v[80:83], v{vDR}', f'ds_read_b64 v[84:85], v{vDR} offset:1024']
    def t0():
        for i in range(6): p(f'v_fma_f32 v{80 + i}, v{DK + i}, s27, v{80 + i}')
        one_lane(lambda: p(f'v_add_f32 v80, v80, v{vPar + 7}'))
        p(f'ds_write_b128 v{vTY}, v[80:83]\nds_write_b64 v{vTX}, v[84:85]')
    def t1():
        for i in range(6): p(f'v_fma_f32 v{80 + i}, v{DK + 6 + i}, s27, v{80 + i}')
        p(f'ds_write_b64 v{vTX}, v[80:81]\nds_write_b32 v{vTY}, v82')
        p(f's_mov_b32 exec_hi, 0\nds_write2_b32 v{vTY}, v83, v84 offset0:32 offset1:64\nds_write_b32 v{vTY}, v85 offset:384\ns_mov_b64 exec, -1')
    def bar(s, h):
        tn(f's_w{s}')
        p.wait_vm(h); tn(f's_l{s}'); p('s_waitcnt lgkmcnt(0)\ns_barrier')
        tn(f's_b{s}')
    sKC, sXT = 21, 18
    w_mid = []
    A = w_mid.append
    A('v_lshrrev_b32 v1, 4, v0'); A('v_and_b32 v2, 15, v0'); A('v_bfe_u32 v3, v0, 2, 2'); A('v_and_b32 v8, 3, v0')
    A(f'v_mul_u32_u24 v3, {CST}, v3'); A('v_lshl_add_u32 v3, v8, 3, v3'); A('v_mad_i32_i24 v3, v1, -16, v3')
    A(f's_mul_i32 s{sKC}, s75, {CCH}\ns_add_u32 s{sKC}, s{sKC}, {KS}\ns_lshl_b32 s72, s77, 8\ns_add_u32 s72, s72, s{sKC}\ns_add_u32 s72, s72, 56')
    A(f'v_add_u32 v{vCA}, s72, v3')
    A(f'v_add_u32 v{vXB}, s{sKC}, v{vL16}')
    A('v_lshl_add_u32 v3, v2, 1, v1')
    A(f's_lshl_b32 s72, s77, 4\ns_sub_u32 s72, 30, s72\ns_lshl_b32 s28, s75, 9\ns_add_u32 s28, s28, {UP}')
    A(f'v_add_u32 v{vUB + 3}, s72, v3')
    def ub(rr):
        o = [f'v_subrev_u32 v{vUB + 3}, 4, v{vUB + 3}'] if rr else []
        return o + [f'v_and_b32 v8, 32, v{vUB + 3}', f'v_add_u32 v8, v8, v{vUB + 3}', f'v_lshl_add_u32 v{vUB + rr}, v8, 4, s28']
    w_mid += ub(0) + ub(1)
    w_gap = ub(2) + ub(3)
    A = w_gap.append
    A(f's_lshl_b32 s72, s74, 2\ns_add_u32 s72, s72, {MISC}'); A(f'v_mov_b32 v{vF}, s72'); A(f'v_xor_b32 v7, 4, v{vF}')
    A('v_lshrrev_b32 v1, 4, v0'); A('v_and_b32 v2, 15, v0')
    A('v_and_b32 v3, 1, v1'); A('v_lshlrev_b32 v3, 9, v3'); A('v_lshl_add_u32 v3, v2, 5, v3'); A('v_lshrrev_b32 v8, 1, v1')
    A(f'v_lshl_add_u32 v{vYS}, v8, 4, v3')
    A('v_and_b32 v3, 3, v0'); A('v_xor_b32 v3, v3, v1'); A('v_lshlrev_b32 v3, 4, v3'); A('v_lshrrev_b32 v8, 2, v0'); A(f'v_lshl_add_u32 v{vXS}, v8, 10, v3')
    if cfg.ydma:
        A('v_lshrrev_b32 v3, 3, v0'); A(f'v_and_b32 v8, 0x7f, v{vWd}'); A(f'v_lshl_add_u32 v{vYL}, v3, 12, v8')
        A(f's_lshl_b32 s72, s77, 11\ns_add_u32 s72, s72, s{sKC}\ns_add_u32 s19, s72, 12288\ns_add_u32 s14, s72, 8192')
    else:
        A('v_lshrrev_b32 v3, 3, v0'); A('v_and_b32 v8, 7, v0'); A(f'v_lshlrev_b32 v8, 4, v8'); A(f'v_lshl_add_u32 v{vYL}, v3, 12, v8')
        A(f'v_and_b32 v8, 0x7f, v{vWd}'); A('v_lshl_add_u32 v8, v3, 7, v8')
        A(f's_lshl_b32 s72, s77, 11\ns_add_u32 s72, s72, s{sKC}\ns_add_u32 s19, s72, 12288\ns_add_u32 s72, s72, 8192')
        A(f'v_add_u32 v{vYW}, s72, v8')
    A(f's_lshl_b32 s{sXT}, s{sRB2}, 16\ns_lshl_b32 s72, s77, 15\ns_add_u32 s{sXT}, s{sXT}, s72')
    A(f's_lshl_b32 s72, s{sCB2}, 7\ns_add_u32 s{sXT}, s{sXT}, s72\ns_lshl_b32 s72, s75, 6')
    A(f's_add_u32 s{sXT}, s{sXT}, s72\ns_add_u32 s20, s{sXT}, {16384 - 1024}\ns_mov_b32 s{XD + 2}, 0x200000')
    A(f's_lshl_b32 s12, s{sCB2}, 18\ns_lshl_b32 s13, s74, 16\ns_add_u32 s12, s12, s13')
    A(f's_lshl_b32 s13, s{sRB2}, 7\ns_add_u32 s12, s12, s13\ns_add_u32 s12, s12, {WS_YT}\ns_add_u32 s13, s12, {32768 - 1024*cfg.ydma}')
    if not cfg.ypois:
        fl = f'''s_lshr_b32 s{sFYo}, s2, 3
          s_lshl_b32 s{sFYo}, s{sFYo}, 1
          s_add_u32 s{sFYo}, s{sFYo}, s77
          s_lshl_b32 s{sFYo}, s{sFYo}, 1
          s_add_u32 s{sFYo}, s{sFYo}, s75
          s_lshl_b32 s{sFYo}, s{sFYo}, 3
          s_and_b32 s24, s2, 7
          s_add_u32 s{sFYo}, s{sFYo}, s24
          s_lshl_b32 s{sFYo}, s{sFYo}, {cfg.fsh}
          s_add_u32 s{sFYo}, s{sFYo}, {WS_FY}
          s_lshl_b32 s{sFYi}, s{sCB2}, 2
          s_add_u32 s{sFYi}, s{sFYi}, s74
          s_lshl_b32 s{sFYi}, s{sFYi}, 1
          s_lshr_b32 s24, s{sRB2}, 4
          s_add_u32 s{sFYi}, s{sFYi}, s24
          s_lshl_b32 s{sFYi}, s{sFYi}, {4 + cfg.fsh}
          s_add_u32 s{sFYi}, s{sFYi}, {WS_FY}'''.split('\n')
        if cfg.ncy >= 0:
            fl = f'''s_lshr_b32 s{sFYo}, s2, 3
          s_lshl_b32 s{sFYo}, s{sFYo}, 1
          s_add_u32 s{sFYo}, s{sFYo}, s77
          s_lshl_b32 s{sFYo}, s{sFYo}, {2 + cfg.ncy}
          s_add_u32 s{sFYo}, s{sFYo}, s75
          s_lshl_b32 s{sFYo}, s{sFYo}, 3
          s_and_b32 s24, s2, 7
          s_add_u32 s{sFYo}, s{sFYo}, s24
          s_lshl_b32 s{sFYo}, s{sFYo}, 2
          s_add_u32 s{sFYo}, s{sFYo}, {WS_FY}
          s_lshl_b32 s{sFYi}, s{sCB2}, 2
          s_add_u32 s{sFYi}, s{sFYi}, s74
          s_lshl_b32 s{sFYi}, s{sFYi}, 1
          s_lshr_b32 s24, s{sRB2}, 4
          s_add_u32 s{sFYi}, s{sFYi}, s24
          s_lshl_b32 s{sFYi}, s{sFYi}, {cfg.ncy}
          s_and_b32 s24, s{sRB2}, {(1 << cfg.ncy) - 1}
          s_add_u32 s{sFYi}, s{sFYi}, s24
          s_lshl_b32 s{sFYi}, s{sFYi}, 7
          s_add_u32 s{sFYi}, s{sFYi}, {WS_FY}'''.split('\n')
        for i in range(0, len(fl), 3): A('\n'.join(fl[i:i + 3]))
    w_adr = []
    A = w_adr.append
    A('v_lshrrev_b32 v3, 3, v0'); A('v_and_b32 v8, 7, v0')
    A('v_bfe_u32 v18, v0, 4, 1'); A('v_lshlrev_b32 v18, 2, v18'); A('v_xor_b32 v8, v8, v18'); A('v_lshlrev_b32 v8, 4, v8')
    A(f'v_lshl_add_u32 v{vWd}, v3, 10, v8')
    A('v_and_b32 v3, 31, v0'); A('v_lshrrev_b32 v8, 5, v0'); A('v_lshlrev_b32 v8, 4, v8'); A(f'v_lshl_add_u32 v{vUo}, v3, {4 + xs}, v8')
    A(rot_setup())
    A(f'''s_lshl_b32 s{sX4}, s74, 12
      s_mul_i32 s{sX3}, s74, 3072
      s_lshl_b32 s{sX1}, s74, 10
      s_mul_i32 s{sWs}, s75, {43*16384}
      s_lshl_b32 s72, s77, 13
      s_add_u32 s{sWs}, s{sWs}, s72
      s_lshl_b32 s72, s{sCB2}, 7
      s_add_u32 s{sWs}, s{sWs}, s72
      s_add_u32 s{sWe}, s{sWs}, {43*16384}
      s_lshl_b32 s72, s{sROT}, 14
      s_add_u32 s{sWc}, s{sWs}, s72''')
    wdh = {}
    def wd_dma(n):
        base, stride = piece_loc(n)
        setm0(('wd', n), f's_add_u32 m0, s{ {4096: sX4, 3072: sX3, 1024: sX1}[stride] }, {base}')
        wdh[n] = p(f'buffer_load_dwordx4 v{vWd}, {srd(WD)}, s{sWc} offen lds')
        if n < 42: p(f's_add_u32 s{sWc}, s{sWc}, 16384\ns_cmp_eq_u32 s{sWc}, s{sWe}\ns_cselect_b32 s{sWc}, s{sWs}, s{sWc}')
    k = len(w_adr)
    npre = 0
    nm = len(w_k) - 9
    blk = w_idxB + w_mid
    ipos = min(cfg.ipos, nm)
    assert cfg.apos <= ipos
    tail = w_k[nm:]
    nmix = min(cfg.mix, len(blk)); mixb = blk[len(blk) - nmix:]; blk = blk[:len(blk) - nmix]
    t2 = []
    for i in range(8):
        t2.append(tail[i]); q = -(-len(mixb) // (8 - i)); t2 += mixb[:q]; mixb = mixb[q:]
    Wl = w_k[:cfg.apos] + w_adr + w_k[cfg.apos:ipos] + blk + w_k[ipos:nm] + t2 + [tail[8], lambda: tn('s_dump'), ('P', C_D)]
    iadr = cfg.apos + k
    Wl += [('C', C_D), lambda: tn('s_cd')] + w_T + [lambda: (two_way(t0, t1), tn('s_t')), ('P', C_T), ('C', C_T), lambda: (tn('s_ct'), two_way(exp0, exp1), tn('s_exp')), ('P', C_E)]
    if cfg.nok: Wl = w_adr + [('P', C_E)]; iadr = 0
    cuts = [0, cfg.c0, cfg.c1, cfg.c2, cfg.c3, cfg.c4, cfg.c5, cfg.c6, cfg.c7, len(Wl)]
    if cfg.nok: cuts = [0, 0, 0, 0, 20, 40, 60, k, k, len(Wl)]
    assert cuts == sorted(cuts) and iadr <= cfg.c6 and cuts[-2] < len(Wl), (iadr, len(Wl))
    if cfg.verbose: print('len Wl', len(Wl), 'adr', k, 'w_k', len(w_k), 'idx', len(w_idx), len(w_idxB), 'set', len(w_set))
    if cfg.verbose: print('sync', [(i, x) for i, x in enumerate(Wl) if isinstance(x, tuple)])
    stg = lambda i: max(j for j in range(9) if cuts[j] <= i)
    ppos = {x[1]: i for i, x in enumerate(Wl) if isinstance(x, tuple) and x[0] == 'P'}
    cpos = {x[1]: i for i, x in enumerate(Wl) if isinstance(x, tuple) and x[0] == 'C'}
    def sync_item(x):
        kind, c = x
        reg, tgt = (vCk, 2) if c in (C_D, C_T) else (vM, 4)
        need = c not in cpos or stg(ppos[c]) == stg(cpos[c])
        if not need: return lambda: None
        if kind == 'P': return lambda: lds_add(reg, c, vOne)
        return lambda: lds_spin(reg, c, tgt, 1)
    Wl = [sync_item(x) if isinstance(x, tuple) else x for x in Wl]
    stage = {j - 1: Wl[cuts[j]:cuts[j + 1]] for j in range(9)}
    pro = w_idx + ([] if cfg.nok == 1 else w_set) + stage[-1]
    seg(pro[:cfg.i0], d0)
    tn('s_dma0')
    seg(pro[cfg.i0:cfg.d1]); seg(pro[cfg.d1:], d1)
    for sb in range(6):
        if sb == 1: mktag()
        bar(sb, slabh[sb])
        setprio((cfg.sprio >> sb) & 1)
        dm = dma_items(sb + 2)
        if sb == 1:
            p(f'ds_read_b128 {vr(vCSr, 4)}, v{vCSr}')
            dm.insert(2, f's_mov_b64 exec, 63\nbuffer_store_dwordx4 {vr(vCSr, 4)}, v{vL16}, {srd(WS)}, s{sCS} offen sc1\ns_mov_b64 exec, -1')
        if sb == 3:
            p(f'v_mov_b32 v{vCSr}, s{sTAG}\nv_mov_b32 v{vCSr + 1}, s{sFA}')
            one_lane(lambda: p(f'buffer_store_dword v{vCSr}, v{vCSr + 1}, {srd(WS)}, 0 offen sc1'))
        if cfg.npf and cfg.pf0 <= sb < cfg.pf0 + cfg.npf:
            q = sb - cfg.pf0; nl = -(-86 // cfg.npf)
            def pfx(q=q, nl=nl):
                if q == 0: p(f's_lshr_b32 s12, s2, 3\ns_lshl_b32 s12, s12, 2\ns_add_u32 s12, s12, s74\ns_mul_i32 s12, s12, {86*128}\nv_lshlrev_b32 v252, 7, v0')
                else: p(f's_add_u32 s12, s12, {nl*128}')
                p(f's_bfm_b64 exec, {nl}, 0\nbuffer_load_dword v{253 + q % 3}, v252, {srd(WD)}, s12 offen\ns_mov_b64 exec, -1')
            dm.insert(cfg.pfi, pfx)
        if sb == 5: p(f'buffer_load_dwordx4 {vr(vPoll, 4)}, v{vL16}, {srd(WS)}, 0 offen offset:{WS_FA} sc1')
        seg(stage[sb], dm)
    bar(6, slabh[6])
    setprio((cfg.sprio >> 6) & 1)
    def fa_check():
        for j in range(4): p(f'v_xor_b32 v{vPoll + j}, s{sTAG}, v{vPoll + j}')
        p(f'v_or3_b32 v{vPoll}, v{vPoll}, v{vPoll + 1}, v{vPoll + 2}\nv_or_b32 v{vPoll}, v{vPoll}, v{vPoll + 3}\nv_cmp_ne_u32 vcc, 0, v{vPoll}\ns_cmp_eq_u64 vcc, 0')
    Lx = p.newlabel('FAX'); L = p.newlabel('FA')
    fa_check()
    p(f's_cbranch_scc1 {Lx}')
    p.cond_begin()
    p(f's_mov_b32 s79, {cfg.spin}')
    p.label(L)
    p(f'buffer_load_dwordx4 {vr(vPoll, 4)}, v{vL16}, {srd(WS)}, 0 offen offset:{WS_FA} sc1')
    fa_check()
    p(f's_cbranch_scc1 {Lx}')
    p(f's_sub_u32 s79, s79, 1\ns_cmp_lg_u32 s79, 0\ns_cbranch_scc1 {L}')
    p.cond_end()
    p.label(Lx)
    tn('s_fa')
    p(f'''s_mul_i32 s15, s{sCB}, 6144
      s_add_u32 s15, s15, s{sX1}
      s_add_u32 s15, s15, {WS_CSP}
      s_add_u32 s16, s{sX1}, {GR2}
      s_cmp_lt_u32 s74, 3
      s_cselect_b32 m0, s16, {UR2}
      s_add_u32 s16, s15, 4096''')
    p(f'buffer_load_dwordx4 v{vL16}, {srd(WS)}, s15 offen sc1 lds')
    p(f'''s_lshl_b32 s15, s{sRB}, 10
      s_add_u32 s15, s15, {WS_ST}
      s_cmp_lt_u32 s74, 2
      s_cselect_b32 s15, s16, s15
      s_min_u32 s16, s{sX1}, 2048
      s_add_u32 m0, s16, {UR2 + 1024}''')
    sth = p(f'buffer_load_dwordx4 v{vL16}, {srd(WS)}, s15 offen sc1 lds')
    uh = [None]
    def u_dma(k):
        if k == 0:
            p(f'''s_lshr_b32 s13, s2, {2 + xs}
              s_lshl_b32 s13, s13, 3
              s_and_b32 s14, s2, 7
              s_add_u32 s13, s13, s14
              s_lshl_b32 s13, s13, {12 + xs}
              s_bfe_u32 s14, s2, {0x10000*(xs - 1) + 3}
              s_lshl_b32 s14, s14, 5
              s_add_u32 s13, s13, s14
              s_lshl_b32 s14, s74, {10 + xs}
              s_add_u32 s13, s13, s14
              s_lshl_b32 s14, s74, 11
              s_add_u32 s13, s13, {WS_XNT}''')
        elif cfg.xa > 2: p(f's_add_u32 s13, s13, {512*cfg.xa - 1024}')
        setm0('u', f's_add_u32 m0, s14, {UP + 1024}')
        uh[0] = p(f'buffer_load_dwordx4 v{vUo}, {srd(WS)}, s13 offen offset:{1024*k} sc1 lds')
    m0[0] = None
    L = p.newlabel('EP')
    p(f's_or_b32 s15, s2, s74\ns_cmp_eq_u32 s15, 0\ns_cbranch_scc0 {L}')
    p.cond_begin()
    p(f'v_mov_b32 v194, s{sTAG}\nv_mov_b32 v195, {WS_E}')
    one_lane(lambda: p(f'buffer_store_dword v194, v195, {srd(WS)}, 0 offen sc1'))
    p.cond_end()
    p.label(L)
    zp = [f's_lshr_b32 s15, s{sX1}, 2\ns_add_u32 s15, s15, {UP}\nv_add_u32 v192, s15, v{vL16}', 'v_mov_b64 v[196:197], 0', 'v_mov_b64 v[198:199], 0',
          's_mov_b64 exec, 0xffff\nds_write_b128 v192, v[196:199]\ns_mov_b64 exec, -1']
    dq = [(lambda n=n: wd_dma(n)) for n in range(16)]
    dq[cfg.upos:cfg.upos] = [lambda: u_dma(0), lambda: u_dma(1)]
    assert cfg.na6 <= 6 + (2 if cfg.upos <= 6 else 0)
    seg(zp + stage[6], dq[:cfg.na6])
    bar(7, slabh[7])
    setprio((cfg.sprio >> 7) & 1)
    w7 = list(stage[7])
    w7.insert(min(cfg.cs_at, len(w7) - 1), lambda: (p.wait_vm(sth), lds_add(vM, C_S, vOne), tn('s_cs')))
    w7.insert(len(w7) - 1, lambda: p.wait_vm(uh[0]))
    cwsig = lambda: (p.wait_vm(wdh[15]), lds_add(vCk, C_W, vOne), tn('s_cw'))
    if cfg.cw_k < 0:
        assert -cfg.cw_k >= cfg.bspan
        w7.insert(min(-cfg.cw_k, len(w7)), cwsig)
    assert cfg.bspan <= len(w7) - 2
    dq7 = dq[cfg.na6:]; dqc = dq7[cfg.nb7:]; dq7 = dq7[:cfg.nb7]
    seg(w7[:cfg.bspan], dq7)
    tn('s_bi')
    seg(w7[cfg.bspan:])
    setprio(cfg.cprio)
    lds_spin(vM, C_E, 4, 1)
    tn('s_ce')
    CAf, CBf, CD = [32, 64], [96, 128], 192
    def cfrags(rr):
        o = []; st_ = rr & 1
        for k in range(8):
            o.append(f'ds_read_b128 {vr(CBf[st_] + 4*k, 4)}, v{vUB + rr} offset:{1024*k}')
            for s in range(2):
                o.append(f'ds_read_b64_tr_b16 {vr(CAf[st_] + 4*k + 2*s, 2)}, v{vCA} offset:{512*k + 64*rr + 8*(1 - s)}')
        return o
    cev = {}
    def addc(k, x): cev.setdefault(min(k, 144), []).append(x)
    for i, x in enumerate(dqc): addc(cfg.bc0 + cfg.bcs*i, x)
    if cfg.cw_k >= 0:
        assert cfg.cw_k > cfg.bc0 + cfg.bcs*len(dqc)
        addc(cfg.cw_k, cwsig)
    addc(3*36 + 28, lambda: one_lane(lambda: p(f'ds_write_b32 v{vF}, v{vOne} offset:{F1}')))
    for x in cfrags(0): p(x)
    kk = 0
    for rr in range(4):
        nxt = cfrags(rr + 1) if rr < 3 else []
        st_ = rr & 1
        pairs = sorted(((a, b) for a in range(8) for b in range(8 - a)), key=lambda ab: (max(ab), ab[0]))
        seen = set()
        for k, (a, b) in enumerate(pairs):
            c = a + b; d = CD + 4*c
            cc = '0' if (rr == 0 and c not in seen) else vr(d, 4)
            seen.add(c)
            p(f'v_mfma_f32_16x16x32_bf16 {vr(d, 4)}, {vr(CAf[st_] + 4*a, 4)}, {vr(CBf[st_] + 4*b, 4)}, {cc}')
            if nxt and k >= 2: p(nxt.pop(0))
            elif w_gap and kk >= cfg.gap0: p(w_gap.pop(0))
            for x in cev.get(kk, []): emit(x)
            kk += 1
        assert not nxt
    assert not w_gap
    tn('s_conv')
    lds_spin(7, F1, 1, 6)
    xdma = lambda: p(f's_mov_b32 m0, s19\nbuffer_load_dwordx4 v{vXS}, {srd(XD)}, s{sXT} offen lds\nbuffer_load_dwordx4 v{vXS}, {srd(XD)}, s20 offen offset:1024 lds')
    if cfg.ydma: xdma()
    Lb = p.newlabel('XB'); Le = p.newlabel('XE')
    p(f's_cmp_eq_u32 s77, 0\ns_cbranch_scc0 {Lb}')
    for hf in range(2):
        if hf == 1: p.label(Lb)
        p.cond_begin()
        snd, kp = (4, 0) if hf == 0 else (0, 4)
        for k in range(4): p(f'ds_write_b128 v{vXB}, {vr(CD + 4*(snd + k), 4)} offset:{4096*hf + 1024*k}')
        one_lane(lambda: p(f'ds_write_b32 v{vF}, v{vOne} offset:{F2}'))
        lds_spin(7, F2, 1, 6)
        tn('s_f2')
        for k in range(4): p(f'ds_read_b128 {vr(32 + 4*k, 4)}, v{vXB} offset:{4096*(1 - hf) + 1024*k}')
        for k in range(4):
            for j in range(4): p(f'v_add_f32 v{32 + 4*k + j}, v{32 + 4*k + j}, v{CD + 4*(kp + k) + j}')
            for j in range(2): p(f'v_cvt_pk_bf16_f32 v{48 + 2*k + j}, v{32 + 4*k + 2*j}, v{32 + 4*k + 2*j + 1}')
            if cfg.ypois:
                for j in range(2): p(f'v_min_u32 v{48 + 2*k + j}, -2, v{48 + 2*k + j}')
            if k & 1:
                r = 48 + 2*(k - 1)
                p(f'v_permlane16_swap_b32 v{r}, v{r + 2}\nv_permlane16_swap_b32 v{r + 1}, v{r + 3}')
                p(f'buffer_store_dwordx4 {vr(r, 4)}, v{vYS}, {srd(WS)}, s{sYB} offen offset:{512*(kp + k - 1)} sc1')
        if hf == 0: p(f's_branch {Le}')
        p.cond_end()
    p.label(Le)
    tn('s_yst')
    for x in cev.get(144, []): emit(x)
    if not cfg.ydma: xdma()
    assert not (cfg.ydma and cfg.ypois)
    if cfg.ypois:
        p('s_waitcnt vmcnt(0)')
        tn('s_yack')
        lds_add(vCk, C_X, vOne)
        L = p.newlabel('YP'); Lx = p.newlabel('YPX')
        p(f's_mov_b32 s79, {cfg.spin}')
        p.label(L)
        for k in range(2): p(f'buffer_load_dwordx4 {vr(32 + 4*k, 4)}, v{vYL}, {srd(WS)}, s{12 + k} offen sc1')
        p('''v_max3_u32 v1, v32, v33, v34
          v_max3_u32 v1, v1, v35, v36
          v_max3_u32 v1, v1, v37, v38
          v_max_u32 v1, v1, v39
          v_cmp_eq_u32 vcc, -1, v1
          s_cmp_eq_u64 vcc, 0''')
        p(f's_cbranch_scc1 {Lx}')
        p(f's_sub_u32 s79, s79, 1\ns_cmp_lg_u32 s79, 0\ns_cbranch_scc1 {L}')
        p.label(Lx)
        tn('s_fy')
    else:
        if cfg.ncy >= 0: p(f'v_mov_b32 v1, s{sTAG}\nv_lshlrev_b32 v2, 7, v0')
        p('s_waitcnt vmcnt(0)')
        tn('s_yack')
        if cfg.ncy >= 0: p(f's_mov_b64 exec, {(1 << (1 << cfg.ncy)) - 1}\nbuffer_store_dword v1, v2, {srd(WS)}, s{sFYo} offen sc1\ns_mov_b64 exec, -1')
        else: flag_store(sFYo)
        lds_add(vCk, C_X, vOne)
        if cfg.spoll & 2: spoll(36, 16, sFYi)
        else: vpoll(16, sFYi)
        tn('s_fy')
        if cfg.ydma:
            p('s_mov_b32 m0, s14')
            for k in range(2): p(f'buffer_load_dwordx4 v{vYL}, {srd(WS)}, s{12 + k} offen offset:{1024*k} sc1 lds')
        else:
            for k in range(2): p(f'buffer_load_dwordx4 {vr(32 + 4*k, 4)}, v{vYL}, {srd(WS)}, s{12 + k} offen sc1')
        p('s_waitcnt vmcnt(0)')
        tn('s_yl')
    if not cfg.ydma:
        for k in range(2): p(f'ds_write_b128 v{vYW}, {vr(32 + 4*k, 4)} offset:{1024*k}')
    lds_add(vCk, C_Y, vOne)
    p('s_waitcnt lgkmcnt(0)')
    tn('s_yw')
    p('s_barrier')
    ts(8)
    finish()
    p.label('L_END')
    p('s_endpgm')
    return p.text()

HEADER = open('cdna_kernels/' + KNAME + '.s.ref').read().split('; Override launch')[0]

def build(cfg):
    k = dict(name=KNAME + '_kernel', grid=(256, 1, 1), block=(512, 1, 1), lds=LDS_SIZE, body=gen(cfg), vgpr=256, sgpr=102, accum=256)
    return build_file([k], header_comment=HEADER)

if __name__ == '__main__':
    cfg = Cfg()
    out = sys.argv[1]
    for a in sys.argv[2:]:
        k, v = a.split('='); setattr(cfg, k, type(getattr(Cfg, k))(int(v, 0)))
    open(out, 'w').write(build(cfg))
```

```python
import sys, copy
from asmlib import build_file, KNAME
from asm2 import Prog

WS_E = 0; WS_FA = 1024; WS_ST = 4096; WS_FH = 0xA00000; WS_FY = 0xA40000; WS_CSP = 32768
WS_XNT = 0x40000; WS_YT = 0x240000; WS_H = 0x440000; WS_DBG = 0x1000000
WS_SIZE = 0x2000000
BIG = 0x40000000
KS = 0; XR = 34816; GR = 83968; UR = 120864; TT = 157760; TCH = 2704; MISC = 163168; LDS_SIZE = 163840
CCH = 17408; CST = 4160
GR2 = GR + 24576; UR2 = UR + 24576; UP = GR2 + 3072; MB = UR2 + 3072; LNX = MISC + 128
C_W, C_R, C_W3, C_Y, C_F, C_D, C_L, C_S, C_G, C_T, C_E, F1, F2, C_X, C_W4 = 0, 8, 16, 24, 32, 40, 48, 52, 56, 72, 64, 80, 96, 112, 120
CSL = LNX
sW = 3
XD, WG, WU, WD, OUT, WS = 36, 40, 44, 48, 52, 56
sTAG, sRB, sCB, sTB, sRB2, sCB2, sROT = 60, 62, 63, 64, 65, 100, 101
def srd(b): return f's[{b}:{b + 3}]'
def vr(a, n): return f'v[{a}:{a + n - 1}]'
LOG2E = 0x3FB8AA3B; LOG2E_LO = 0x32A57060; LN2 = 0x3F317218; INV2PI = 0x3E22F983

class Cfg:
    ts = False
    hwin = 10
    adist = 2
    parfirst = 1
    r2c = 88; r2j = 176; r2x = 22
    xa = 8
    gfa = 0; gfb = 99; gf = 1; gf0 = 2
    d1 = 200
    c0 = 30; c1 = 60; c2 = 90; c3 = 120; c4 = 150; c5 = 180; c6 = 210; c7 = 240
    ipre = 0; ipos = 150; npf = 0; pf0 = 1; pfi = 5
    apos = 150
    sprio = 0xff
    gprio = 7
    gp2 = 0; gp3 = 2
    cprio = 0
    cs_at = 0
    bspan = 40
    cw_k = 0
    pearly = 0; hl = 0; hs = 0; na6 = 2; upos = 0
    i0 = 50
    cfirst = 2
    spoll = 3
    fsh = 2
    ystep = 37
    xstep = 10
    ypois = 0
    wbl2 = 0
    spin = 1 << 16
    tset = 0
    padph = 0; padw = 0; padcyc = 0; rt8 = 0; rt = 0
    nch = -1; ncy = -1
    tch = 0; tpos = 0
    rgrp = 0; omod = 0
    mf16 = 0; kw = 0; rho = 1; csp = 1; ggs = 10; ggr = 26; gga = 3; gk = 0; gk1 = 37; nbw = 6; gx = 0; yprio = -1
    dpre = 16; dper = 1; dst = 0; dm = 1; ydma = 1
    nb7 = 99; bc0 = 0; bcs = 2; mix = 99; gap0 = 26; cpf = 0; g2x = 0; g2o = 0; hat = 0; verbose = 0; nok = 0; dmaf = 0; nost = 0; wsoff = 0

TSETS = [
  (['g_lns', 'g_b0', 'g_b4', 'g_b8', 'g_hst', 'g_fh'], ['s_b0', 's_b4', 's_b7', 's_ce', 's_conv', 's_fy']),
  (['g_karg', 'g_ln', 'g_lnw', 'g_lnx', 'g_lns', 'g_b0'], ['s_karg', 's_dma0', 's_idx', 's_par', 's_w0', 's_l0']),
  (['g_b0', 'g_b1', 'g_b2', 'g_b3', 'g_b4', 'g_b5'], ['s_w1', 's_l1', 's_w2', 's_l2', 's_w3', 's_l3']),
  (['g_b8', 'g_hst', 'g_ack', 'g_cw', 'g_d', 'g_fh'], ['s_b7', 's_cs', 's_bi', 's_ce', 's_cw', 's_conv']),
  (['g_b4', 'g_b5', 'g_b6', 'g_b7', 'g_b8', 'g_h0'], ['s_w4', 's_w5', 's_w6', 's_fa', 's_w7', 's_l7']),
  (['g_fh', 'g_h0', 'g_n16', 'g_n27', 'g_y', 'g_g2'], ['s_conv', 's_yst', 's_yack', 's_fy', 's_yl', 's_yw']),
  (['g_b8', 'g_corr', 'g_hst', 'g_cw', 'g_pre', 'g_ack'], ['s_w4', 's_l4', 's_w5', 's_l5', 's_w6', 's_l6']),
  (['g_b8', 'g_hst', 'g_c', 'g_ack', 'g_cw', 'g_d'], ['s_dump', 's_cd', 's_t', 's_ct', 's_exp', 's_ce']),
  ([], []),
  (['g_fh', 'g_h0', 'g_s5', 'g_s10', 'g_s20', 'g_s30'], ['s_conv', 's_f2', 's_yst', 's_yack', 's_fy', 's_yl']),
]
def gen(cfg):
    p = Prog()
    def ts(i, real=False):
        if cfg.ts: p(f'{"s_memrealtime" if (real or (cfg.padph and not cfg.padcyc) or (cfg.rt and i not in (1,))) else "s_memtime"} s[{80 + 2 * i}:{81 + 2 * i}]')
    def tn(name):
        for l in TSETS[cfg.tset]:
            if name in l: ts(2 + l.index(name))
            if cfg.ts and name + '#' in l: i = 2 + l.index(name + '#'); p(f's_memtime s[{80 + 2 * i}:{81 + 2 * i}]')
    def one_lane(f):
        p('s_mov_b64 exec, 1'); r = f(); p('s_mov_b64 exec, -1'); return r
    def lds_spin(addr_v, off, target, tmpv):
        L = p.newlabel('SPIN'); Lx = p.newlabel('SPINX')
        p(f's_mov_b32 s79, {cfg.spin * 8}')
        p.label(L)
        p(f'ds_read_b32 v{tmpv}, v{addr_v} offset:{off}')
        p(f'v_readfirstlane_b32 s78, v{tmpv}')
        p(f's_cmp_ge_u32 s78, {target}')
        p(f's_cbranch_scc1 {Lx}')
        p('s_sub_u32 s79, s79, 1')
        p('s_cmp_lg_u32 s79, 0')
        p(f's_cbranch_scc1 {L}')
        p.label(Lx)
    def lds_pre(addr_v, off, tmpv): p(f'ds_read_b32 v{tmpv}, v{addr_v} offset:{off}')
    def lds_post(addr_v, off, target, tmpv):
        Lx = p.newlabel('POK')
        p(f'v_readfirstlane_b32 s78, v{tmpv}\ns_cmp_ge_u32 s78, {target}\ns_cbranch_scc1 {Lx}')
        p.cond_begin(); lds_spin(addr_v, off, target, tmpv); p.cond_end()
        p.label(Lx)
    def lds_add(addr_v, off, onev): one_lane(lambda: p(f'ds_add_u32 v{addr_v}, v{onev} offset:{off}'))
    def emit(x):
        if callable(x): x()
        else: p(x)

    p('s_cmp_ge_u32 s2, 256\ns_cbranch_scc1 L_END')
    p('s_load_dwordx16 s[4:19], s[0:1], 0\ns_load_dwordx16 s[20:35], s[0:1], 64')
    ts(0, True); ts(1)
    p('v_lshrrev_b32 v1, 6, v0')
    p('v_lshlrev_b32 v2, 4, v0')
    p(f'v_readfirstlane_b32 s{sW}, v1')
    p(f'v_cmp_gt_u32 vcc, {(LNX - TT) // 16}, v0')
    p(f'v_add_u32 v2, {TT}, v2')
    p('v_and_b32 v0, 63, v0')
    p('v_mov_b64 v[4:5], 0\nv_mov_b64 v[6:7], 0')
    p('s_mov_b64 exec, vcc')
    p('ds_write_b128 v2, v[4:7]')
    p('s_mov_b64 exec, -1')
    p(f'''s_and_b32 s66, s2, 7
      s_lshr_b32 s67, s2, 3
      s_and_b32 s68, s66, 3
      s_lshr_b32 s69, s66, 2
      s_and_b32 s70, s67, 3
      s_lshl_b32 s71, s68, 2
      s_add_u32 s{sRB}, s71, s70
      s_lshl_b32 s{sRB2}, s68, 3
      s_lshl_b32 s72, s69, 2
      s_add_u32 s{sRB2}, s{sRB2}, s72
      s_add_u32 s{sRB2}, s{sRB2}, s70
      s_lshr_b32 s{sCB2}, s67, 2
      s_mul_i32 s{sCB}, s69, 7
      s_add_u32 s{sCB}, s{sCB}, s{sCB2}
      s_and_b32 s70, s67, 1
      s_add_u32 s71, s71, s70
      s_lshl_b32 s69, s69, 1
      s_add_u32 s71, s71, s69
      s_bfe_u32 s70, s67, 0x10001
      s_add_u32 s70, s70, 14
      s_cmp_lt_u32 s67, 28
      s_cselect_b32 s{sRB}, s{sRB}, s71
      s_cselect_b32 s{sCB}, s{sCB}, s70
      s_lshl_b32 s{sTB}, s{sRB}, 4
      s_add_u32 s{sTB}, s{sTB}, s{sCB}''')
    p(f's_cmp_ge_u32 s{sW}, 4')
    p('s_cbranch_scc1 L_S')
    st0 = (copy.deepcopy(p.vmq), copy.deepcopy(p.dsq))

    def srds(role):
        if cfg.wsoff: p(f's_add_u32 s34, s34, {cfg.wsoff}\ns_addc_u32 s35, s35, 0')
        p(f's_load_dword s{sTAG}, s[34:35], {WS_E}')
        if role == 'S':
            p(f's_cmp_eq_u32 s{sCB}, 15')
            p(f'''s_mov_b32 s{XD}, s4\ns_mov_b32 s{XD+1}, s5\ns_cselect_b32 s{XD+2}, 0, 0x200000\ns_mov_b32 s{XD+3}, 0x20000
              s_mov_b32 s{WG}, s24\ns_mov_b32 s{WG+1}, s25\ns_cselect_b32 s{WG+2}, 0, {512*2752}\ns_mov_b32 s{WG+3}, 0x20000
              s_mov_b32 s{WU}, s26\ns_mov_b32 s{WU+1}, s27\ns_mov_b32 s{WU+2}, s{WG+2}\ns_mov_b32 s{WU+3}, 0x20000''')
    def srds2(role):
        p(f's_mov_b32 s{WS}, s34\ns_mov_b32 s{WS+1}, s35\ns_mov_b32 s{WS+2}, {WS_SIZE}\ns_mov_b32 s{WS+3}, 0x20000')
        p(f's_mov_b32 s{WD}, s28\ns_mov_b32 s{WD+1}, s29\ns_mov_b32 s{WD+2}, {1376*1024}\ns_mov_b32 s{WD+3}, 0x20000')
    def mktag():
        p('s_waitcnt lgkmcnt(0)')
        p(f's_mul_i32 s{sTAG}, s{sTAG}, 0x9E3779B1\ns_add_u32 s{sTAG}, s{sTAG}, 0x7F4A7C15\ns_mov_b32 s{sTAG + 1}, s{sTAG}')
    def rot_setup():
        if cfg.rgrp:
            return f'''s_and_b32 s{sROT}, s{sCB2}, {cfg.rgrp - 1}
          s_mul_i32 s{sROT}, s{sROT}, {43*16 // cfg.rgrp}
          s_bfe_u32 s72, s2, 0x20003
          s_mul_i32 s72, s72, {cfg.r2j}
          s_add_u32 s{sROT}, s{sROT}, s72
          s_and_b32 s72, s2, 7
          s_mul_i32 s72, s72, {cfg.r2x}
          s_add_u32 s{sROT}, s{sROT}, s72
          s_lshr_b32 s{sROT}, s{sROT}, 4
          s_cmp_ge_u32 s{sROT}, 43
          s_cselect_b32 s72, 43, 0
          s_sub_u32 s{sROT}, s{sROT}, s72'''
        return f'''s_mul_i32 s{sROT}, s{sCB2}, {cfg.r2c}
          s_bfe_u32 s72, s2, 0x20003
          s_mul_i32 s72, s72, {cfg.r2j}
          s_add_u32 s{sROT}, s{sROT}, s72
          s_and_b32 s72, s2, 7
          s_mul_i32 s72, s72, {cfg.r2x}
          s_add_u32 s{sROT}, s{sROT}, s72
          s_lshr_b32 s{sROT}, s{sROT}, 4
          s_cmp_ge_u32 s{sROT}, 43
          s_cselect_b32 s72, 43, 0
          s_sub_u32 s{sROT}, s{sROT}, s72'''
    assert (7*cfg.r2c + 3*cfg.r2j + 7*cfg.r2x) // 16 < 86
    def spoll(base, n, soff, issued=False):
        L = p.newlabel('SP'); Lr = p.newlabel('SPR'); Lx = p.newlabel('SPX'); Li = p.newlabel('SPI')
        p(f's_mov_b32 s79, {cfg.spin}')
        if issued: p(f's_branch {Li}')
        p.label(L)
        p(f's_load_dwordx{n} s[{base}:{base + n - 1}], s[34:35], s{soff} glc')
        p.label(Li)
        p('s_waitcnt lgkmcnt(0)')
        for i in range(0, n, 2):
            p(f's_cmp_eq_u64 s[{base + i}:{base + i + 1}], s[{sTAG}:{sTAG + 1}]')
            p(f's_cbranch_scc0 {Lr}' if i < n - 2 else f's_cbranch_scc1 {Lx}')
        p.label(Lr)
        p(f's_sub_u32 s79, s79, 1\ns_cmp_lg_u32 s79, 0\ns_cbranch_scc1 {L}')
        p.label(Lx)
    def vpoll(n, soff):
        L = p.newlabel('VP'); Lx = p.newlabel('VPX')
        p(f'v_and_b32 v1, {n - 1}, v0\nv_lshlrev_b32 v1, {cfg.fsh}, v1\ns_mov_b32 s79, {cfg.spin}')
        p.label(L)
        p(f'buffer_load_dword v2, v1, {srd(WS)}, s{soff} offen sc1')
        p(f'v_cmp_ne_u32 vcc, s{sTAG}, v2\ns_cmp_eq_u64 vcc, 0')
        p(f's_cbranch_scc1 {Lx}')
        p(f's_sub_u32 s79, s79, 1\ns_cmp_lg_u32 s79, 0\ns_cbranch_scc1 {L}')
        p.label(Lx)
    def flag_store(soff):
        p(f'v_mov_b32 v1, s{sTAG}\nv_mov_b32 v2, 0')
        one_lane(lambda: p(f'buffer_store_dword v1, v2, {srd(WS)}, s{soff} offen sc1'))
    def finish():
        if cfg.ts:
            p('s_waitcnt vmcnt(0)')
            ts(9)
            if cfg.rt8: ts(8, True)
            if cfg.rt: p('s_memtime s[66:67]\ns_waitcnt lgkmcnt(0)\ns_sub_u32 s67, s66, s82')
            if cfg.rt and cfg.tset == 8: p('s_sub_u32 s86, s86, s82\ns_sub_u32 s90, s90, s82\ns_sub_u32 s94, s94, s82')
            if cfg.rt: p('s_mov_b32 s82, s67')
            p('s_waitcnt lgkmcnt(0)')
            if cfg.padph:
                L = p.newlabel('PAD'); Lx = p.newlabel('PADX')
                p(f's_cmp_eq_u32 s{sW}, {cfg.padw}\ns_cbranch_scc0 {Lx}')
                if cfg.padcyc: p(f's_sub_u32 s66, s{80 + 2*cfg.padph}, s82\ns_lshr_b32 s66, s66, 2')
                else: p(f's_sub_u32 s66, s{80 + 2*cfg.padph}, s80\ns_lshl_b32 s66, s66, 2')
                p(f's_min_u32 s66, s66, 20000\ns_add_u32 s66, s66, 3000')
                p.label(L)
                p(f's_memrealtime s[68:69]\ns_waitcnt lgkmcnt(0)\ns_sub_u32 s68, s68, s80\ns_cmp_lt_u32 s68, s66\ns_cbranch_scc1 {L}')
                p.label(Lx)
                p('s_endpgm')
                return
            for i in range(10): p(f'v_writelane_b32 v1, s{80 + 2*i}, {i}')
            p(f's_lshl_b32 s66, s2, 3\ns_add_u32 s66, s66, s{sW}\ns_lshl_b32 s66, s66, 6\ns_add_u32 s66, s66, {WS_DBG}')
            p('v_lshlrev_b32 v2, 2, v0')
            p('s_mov_b64 exec, 0x3ff')
            p(f'buffer_store_dword v1, v2, {srd(WS)}, s66 offen')
        p('s_endpgm')
    def piece_loc(n):
        if n >= 27: n -= 27
        groups = [(0, 4, XR + 32768, 4096), (4, 1, UR2 + 4096, 1024), (5, 1, UR2 + 8192, 1024), (6, 4, XR, 4096), (10, 3, GR, 3072),
                  (13, 3, UR, 3072), (16, 4, XR + 16384, 4096), (20, 3, GR + 12288, 3072), (23, 3, UR + 12288, 3072), (26, 1, UR2, 1024)]
        for (n0, cnt, base, stride) in groups:
            if n0 <= n < n0 + cnt: return base + 1024*(n - n0), stride

    vA4, vA3, vA1, vYA, vOut = 8, 10, 12, 14, 15
    vXa, vWg, vWu, vW1, vCS1, vCS2, vH01, vH2, vHl, vCk, vM, vWd, vMB = 16, 20, 21, 22, 23, 24, 25, 26, 27, 28, 29, 30, 31
    FR = [120, 140]
    ACC = 160
    XL, XC, MU, CSA, ONE = 32, 40, 56, 68, 116
    vSt, vXn, vLw, vSo = 60, 61, 62, 63
    LR, LD, PK = 68, 72, 76
    sHc, sHs, sHe, sFo, sFi, sXn, sSt = 6, 7, 8, 9, 10, 12, 14
    sX4, sX3, sX1, sWc, sWs, sWe, sW26 = 36, 37, 38, 39, 40, 41, 42
    xs = {2: 1, 4: 2, 8: 3}[cfg.xa]
    p(f'''v_lshrrev_b32 v6, 4, v0
      v_and_b32 v7, 15, v0
      v_lshlrev_b32 v1, 4, v7
      v_lshl_add_u32 v1, v6, 11, v1
      s_lshl_b32 s66, s{sTB}, 13
      s_lshl_b32 s67, s{sW}, 8
      s_add_u32 s66, s66, s67
      v_add_u32 v64, s66, v1
      v_lshlrev_b32 v{vHl}, 4, v0''')
    p(f's_and_b32 s74, s{sW}, 1\ns_lshr_b32 s75, s{sW}, 1')
    p(f'''v_and_b32 v1, 31, v0
      v_lshrrev_b32 v2, 5, v0
      v_bfe_u32 v3, v0, 1, 3
      v_xor_b32 v3, v3, v2
      s_lshl_b32 s66, s74, 13
      s_add_u32 s66, s66, {XR}
      v_lshl_add_u32 v4, v1, 7, s66''')
    for ks in range(4):
        p(f'v_xor_b32 v5, {2*ks}, v3\nv_lshl_add_u32 v{vXa + ks}, v5, 4, v4')
    p(f'''v_bfe_u32 v3, v0, 2, 2
      v_lshl_add_u32 v3, v2, 3, v3
      v_mul_u32_u24 v3, 192, v3
      v_and_b32 v4, 3, v0
      v_lshl_add_u32 v3, v4, 3, v3
      s_mul_i32 s66, s75, 96
      v_add_u32 v3, s66, v3
      v_bfe_u32 v4, v0, 4, 1
      v_lshl_add_u32 v5, v4, 5, v3
      v_add_u32 v{vWg}, {GR}, v5
      v_add_u32 v{vWu}, {UR}, v5
      v_mul_u32_u24 v4, {UR - GR}, v4
      v_add_u32 v3, {GR + 64}, v3
      v_add_u32 v{vW1}, v3, v4''')
    gP, gLAM, gQ, gT, gBX, gBG = 160, 164, 166, 176, 206, 207
    ghq = lambda j: 180 + j
    gA, gO, gz = 208, 200, 204
    if cfg.gk == 2:
        gP, gLAM, gQ, gT, gBX, gA, gO, gz = 32, 38, 40, 50, 52, 35, 86, 90
        ghq = lambda j: 68 + j
    if cfg.gk:
        p(f'''s_lshr_b32 s66, s2, 3
          s_lshl_b32 s66, s66, 1
          s_add_u32 s66, s66, s75
          s_lshl_b32 s66, s66, 3
          s_and_b32 s67, s2, 7
          s_add_u32 s66, s66, s67
          s_lshl_b32 s67, s66, 8
          s_lshl_b32 s68, s74, 7
          s_add_u32 s67, s67, s68
          v_lshl_add_u32 v208, v0, 1, s67
          s_lshl_b32 s66, s66, 1
          v_mov_b32 v209, s66''')
    p('s_waitcnt lgkmcnt(0)')
    tn('g_karg')
    p(f'''global_load_dwordx4 {vr(XL, 4)}, v64, s[4:5]
      global_load_dwordx4 {vr(XL + 4, 4)}, v64, s[4:5] offset:1024''')
    gw = []
    if cfg.gk:
        A = lambda x: gw.append(x.replace('v208', f'v{gA}').replace('v209', f'v{gA + 1}').replace('v210', f'v{gA + 2}'))
        if cfg.gk == 1:
            p(f'global_load_ushort v{gP + 2}, v209, s[18:19]\nglobal_load_ushort v{gP}, v208, s[6:7]\nglobal_load_ushort v{gP + 1}, v208, s[8:9]')
            for i in (2, 0, 1): A(f'v_lshlrev_b32 v{gP + i}, 16, v{gP + i}')
        else:
            p('global_load_ushort v66, v209, s[18:19]')
            p('global_load_short_d16 v64, v208, s[6:7]')
            p.auto = False
            p('global_load_short_d16_hi v64, v208, s[8:9]')
            p.auto = True
            A(f'v_lshlrev_b32 v{gP + 2}, 16, v66'); A(f'v_lshlrev_b32 v{gP}, 16, v64'); A(f'v_and_b32 v{gP + 1}, 0xffff0000, v64')
        ld = gP + 2
        A(f's_mov_b32 s69, {LOG2E}\nv_mul_f32 v208, s69, v{ld}'); A(f'v_fma_f32 v209, v{ld}, s69, -v208')
        A(f'v_fmac_f32 v209, {LOG2E_LO}, v{ld}'); A('v_exp_f32 v208, v208'); A(f'v_mul_f32 v209, {LN2}, v209'); A('v_fmac_f32 v208, v208, v209')
        A('v_cvt_pk_bf16_f32 v208, v208, v208'); A('v_and_b32 v208, 0xffff0000, v208')
        for i in range(2): A(f'v_mul_f32 v{gP + i}, v{gP + i}, v208')
        A(f'v_mul_f32 v{gLAM}, s69, v{gP}'); A(f'v_mul_f32 v{gLAM + 1}, {INV2PI}, v{gP + 1}')
        A(f'v_mul_f32 v208, 0x41000000, v{gLAM}'); A(f'v_mul_f32 v209, 0x41000000, v{gLAM + 1}'); A('v_exp_f32 v208, v208'); A('v_fract_f32 v209, v209')
        if cfg.gk == 1: A(f's_lshl_b32 s69, s{sW}, 12\ns_add_u32 s69, s69, {XR + 32768}\nv_lshl_add_u32 v{gBX}, v0, 2, s69')
        else: A(f's_mul_i32 s69, s{sW}, 8704\ns_add_u32 s69, s69, {KS}\nv_lshl_add_u32 v{gBX}, v0, 2, s69')
        A('v_cos_f32 v210, v209'); A(f'v_sin_f32 v{gQ + 1}, v209')
        if cfg.gk == 1: A(f's_mul_i32 s69, s{sW}, 3072\ns_add_u32 s69, s69, {GR2}\nv_lshl_add_u32 v{gBG}, v0, 2, s69')
        A(f'v_mul_f32 v{gQ}, v208, v210'); A(f'v_mul_f32 v{gQ + 1}, v208, v{gQ + 1}')
        def gput(row, r):
            if row < 15 or cfg.gk == 2: A(f'ds_write_b32 v{gBX}, v{r} offset:{272*row}')
            elif row < 25: A(f'ds_write_b32 v{gBG}, v{r} offset:{240 + 272*(row - 15)}')
            else: A(f'ds_write_b32 v{gBG}, v{r} offset:{UR2 - GR2 + 112 + 272*(row - 25)}')
        A('v_mov_b32 v210, 0x3c00')
        for k in range(4):
            x = gQ + 2*k
            A(f'v_pk_mul_f32 {vr(gT, 2)}, {vr(x, 2)}, {vr(x, 2)} op_sel:[0,0] op_sel_hi:[1,0]')
            A(f'v_cvt_pk_f16_f32 v{ghq(1 << k)}, v{x}, v{x + 1}')
            A(f'v_pk_fma_f32 {vr(x + 2, 2)}, {vr(x, 2)}, {vr(x, 2)}, {vr(gT, 2)} op_sel:[1,1,0] op_sel_hi:[0,1,1] neg_lo:[1,0,0]')
            if k == 0: gput(0, 210)
            gput(1 << k, ghq(1 << k))
        A(f'v_cvt_pk_f16_f32 v{ghq(16)}, v{gQ + 8}, v{gQ + 9}')
        pend = (16, ghq(16)); ov = 0
        for j in [3, 5, 6, 7] + list(range(9, 16)) + list(range(17, 32)):
            hb = 1 << (j.bit_length() - 1)
            if j < 16: d = ghq(j)
            else: d = gO + ov % 4; ov += 1
            t = gz + j % 2
            A(f'v_pk_mul_f16 v{t}, v{ghq(j - hb)}, v{ghq(hb)} op_sel:[0,0] op_sel_hi:[1,0]')
            A(f'v_pk_fma_f16 v{d}, v{ghq(j - hb)}, v{ghq(hb)}, v{t} op_sel:[1,1,0] op_sel_hi:[0,1,1] neg_lo:[1,0,0]')
            gput(*pend); pend = (j, d)
        gput(*pend)
        if cfg.verbose: print('gw', len(gw))
    if cfg.cpf:
        p('s_getpc_b64 s[68:69]')
        p.label('L_PC')
        p(f'''s_lshr_b32 s66, s2, 3
          s_lshl_b32 s66, s66, 2
          s_add_u32 s66, s66, s{sW}
          s_lshl_b32 s66, s66, 8
          v_lshl_add_u32 v65, v0, 7, s66
          v_min_u32 v65, L_END-L_PC, v65
          s_mov_b64 exec, 3
          global_load_dword v{67 if cfg.gk == 2 else 66}, v65, s[68:69]
          s_mov_b64 exec, -1''')
    def touch():
        p.auto = False
        if cfg.tch & 4: p('v_lshlrev_b32 v65, 21, v0\ns_mov_b64 exec, 0x3e\nglobal_load_dword v67, v65, s[34:35]')
        if cfg.tch & 8:
            p(f'''s_mul_i32 s66, s2, {43*128}
              s_mul_i32 s67, s{sW}, {11*128}
              s_add_u32 s66, s66, s67
              v_lshl_add_u32 v65, v0, 7, s66
              s_cmp_eq_u32 s{sW}, 3
              s_cselect_b32 s67, 10, 11
              s_bfm_b64 exec, s67, 0
              global_load_dword v67, v65, s[28:29]''')
        if cfg.tch & 16:
            p(f'''s_lshl_b32 s66, s2, 2
              s_add_u32 s66, s66, s{sW}
              s_and_b32 s67, s66, 1
              s_lshr_b32 s66, s66, 1
              s_lshl_b32 s66, s66, 7
              s_mul_i32 s67, s67, {WS_FY - WS_FH}
              s_add_u32 s66, s66, s67
              s_add_u32 s66, s66, {WS_FH}
              v_mov_b32 v65, s66
              s_mov_b64 exec, 1
              global_load_dword v67, v65, s[34:35]''')
            assert cfg.nch <= 3 and cfg.ncy <= 3
        p('s_mov_b64 exec, 1')
        if cfg.tch & 1: p(f'global_load_dword v67, v{vHl}, s[28:29]')
        if cfg.tch & 2: p(f'global_load_dword v67, v{vHl}, s[30:31]')
        p('s_mov_b64 exec, -1')
        p.auto = True
    if cfg.tch and cfg.tpos == 0: touch()
    srds('G')
    p(f's_mov_b32 s{WS}, s34\ns_mov_b32 s{WS+1}, s35\ns_mov_b32 s{WS+2}, {WS_SIZE}\ns_mov_b32 s{WS+3}, 0x20000')
    p('s_barrier')
    p(f'''v_and_b32 v3, 3, v0
      v_lshlrev_b32 v3, 4, v3
      v_lshl_add_u32 v3, v6, 6, v3
      v_add_u32 v{vSt}, {LNX}, v3
      s_lshl_b32 s66, s{sW}, 4
      s_add_u32 s66, s66, {LNX}
      v_lshl_add_u32 v{vLw}, v6, 6, s66
      v_lshrrev_b32 v3, {xs}, v7
      v_lshlrev_b32 v3, {15 + xs}, v3
      v_lshl_add_u32 v3, v6, {13 + xs}, v3
      v_and_b32 v4, {cfg.xa - 1}, v7
      v_lshl_add_u32 v{vXn}, v4, 4, v3
      s_lshl_b32 s{sXn}, s{sW}, 19
      s_lshl_b32 s66, s{sTB}, {4 + xs}
      s_add_u32 s{sXn}, s{sXn}, s66
      s_add_u32 s{sXn}, s{sXn}, {WS_XNT}
      s_add_u32 s{sXn + 1}, s{sXn}, {4096*cfg.xa}
      s_lshl_b32 s{sSt}, s{sTB}, 6
      s_add_u32 s{sSt}, s{sSt}, {WS_ST}
      s_cmp_eq_u32 s{sW}, 0
      s_cselect_b32 s66, 0, {BIG}
      v_lshl_add_u32 v{vSo}, v6, 4, s66
      s_mul_i32 s66, s75, 96
      s_add_u32 s66, s66, {CSL}
      v_mul_u32_u24 v3, 192, v2
      v_lshl_add_u32 v3, v1, 1, v3
      v_add_u32 v{vCS1}, s66, v3
      v_bfe_u32 v3, v0, 4, 1
      v_mul_u32_u24 v3, 192, v3
      v_lshl_add_u32 v3, v7, 1, v3
      s_add_u32 s66, s66, 64
      v_add_u32 v{vCS2}, s66, v3
      v_mov_b32 v{vM}, {MISC}
      v_mov_b32 v7, 1
      s_mov_b32 s77, 0x3f803f80''')
    for r in range(4): p(f'v_mov_b32 v{ONE + r}, s77')
    if cfg.nch < 0:
        hflag_adr = f'''s_lshl_b32 s{sFo}, s{sRB}, 1
      s_add_u32 s{sFo}, s{sFo}, s74
      s_lshl_b32 s{sFo}, s{sFo}, 5
      s_lshl_b32 s66, s{sCB}, 1
      s_add_u32 s{sFo}, s{sFo}, s66
      s_add_u32 s{sFo}, s{sFo}, s75
      s_lshl_b32 s{sFo}, s{sFo}, {cfg.fsh}
      s_add_u32 s{sFo}, s{sFo}, {WS_FH}
      s_lshl_b32 s{sFi}, s{sRB2}, 5
      s_mul_i32 s66, s75, 14
      s_add_u32 s{sFi}, s{sFi}, s66
      s_lshl_b32 s{sFi}, s{sFi}, {cfg.fsh}
      s_add_u32 s{sFi}, s{sFi}, {WS_FH}'''
    else:
        hflag_adr = f'''s_lshl_b32 s{sFo}, s{sRB}, 1
      s_add_u32 s{sFo}, s{sFo}, s74
      s_lshl_b32 s{sFo}, s{sFo}, {8 + cfg.nch}
      s_add_u32 s{sFo}, s{sFo}, {WS_FH}
      s_lshl_b32 s11, s{sCB}, 1
      s_add_u32 s11, s11, s75
      s_lshl_b32 s{sFi}, s{sRB2}, 1
      s_add_u32 s{sFi}, s{sFi}, s75
      s_lshl_b32 s{sFi}, s{sFi}, {cfg.nch}
      s_lshl_b32 s66, s{sCB2}, 1
      s_add_u32 s66, s66, s74
      s_and_b32 s66, s66, {(1 << cfg.nch) - 1}
      s_add_u32 s{sFi}, s{sFi}, s66
      s_lshl_b32 s{sFi}, s{sFi}, 7
      s_add_u32 s{sFi}, s{sFi}, {WS_FH}'''
    fill = f'''s_lshl_b32 s66, s74, 9
      s_add_u32 s66, s66, {MB}
      v_lshl_add_u32 v{vMB}, v1, 3, s66
      s_mul_i32 s66, s{sCB}, 6
      s_mul_i32 s67, s75, 3
      s_add_u32 s66, s66, s67
      s_cmp_le_u32 s66, 84 @ s_cselect_b32 s67, 0, {BIG}
      v_add_u32 v{vH01}, s67, v{vHl}
      s_cmp_le_u32 s66, 83 @ s_cselect_b32 s67, 0, {BIG}
      v_add_u32 v{vH2}, s67, v{vHl}
      s_lshl_b32 s67, s{sRB}, 2
      s_lshl_b32 s68, s74, 1
      s_add_u32 s67, s67, s68
      s_mul_i32 s67, s67, 86
      s_add_u32 s66, s66, s67
      s_lshl_b32 s66, s66, 10
      s_add_u32 s70, s66, {WS_H}
      s_add_u32 s71, s70, {86*1024}
      v_bfe_u32 v3, v0, 2, 2
      v_lshl_add_u32 v3, v2, 2, v3
      v_bfe_u32 v4, v3, 1, 1
      v_lshlrev_b32 v4, 6, v4
      v_lshl_add_u32 v3, v3, 7, v4
      v_bfe_u32 v4, v0, 4, 1
      v_lshl_add_u32 v3, v4, 5, v3
      v_and_b32 v4, 3, v0
      v_lshl_add_u32 v3, v4, 3, v3
      s_lshl_b32 s66, s74, 6
      v_xor_b32 v4, s66, v3
      s_mul_i32 s66, s75, {CCH}
      s_add_u32 s66, s66, {KS + 8192}
      v_add_u32 v{vYA}, s66, v4
      s_lshl_b32 s66, s75, 6
      v_xor_b32 v3, s66, v3
      v_xor_b32 v4, 64, v3
      s_lshl_b32 s66, s75, 13
      s_add_u32 s66, s66, {XR}
      s_mul_i32 s67, s75, 6144
      s_add_u32 s67, s67, {GR}
      s_lshl_b32 s68, s75, 11
      s_add_u32 s68, s68, {UR2}
      v_add_u32 v{vA4}, s66, v3
      v_add_u32 v{vA4 + 1}, s66, v4
      v_add_u32 v{vA3}, s67, v3
      v_add_u32 v{vA3 + 1}, s67, v4
      v_add_u32 v{vA1}, s68, v3
      v_add_u32 v{vA1 + 1}, s68, v4
      s_lshl_b32 s66, s{sRB2}, 16
      s_lshl_b32 s67, s74, 15
      s_add_u32 s66, s66, s67
      s_lshl_b32 s67, s{sCB2}, 7
      s_add_u32 s66, s66, s67
      s_lshl_b32 s67, s75, 6
      s_add_u32 s66, s66, s67
      v_lshlrev_b32 v3, 10, v1
      v_lshl_add_u32 v3, v2, 4, v3
      v_add_u32 v{vOut}, s66, v3
      s_mov_b32 s15, s66
      s_lshl_b32 s66, s75, 2
      s_add_u32 s66, s66, {MISC}
      v_mov_b32 v{vCk}, s66
      v_lshrrev_b32 v3, 3, v0
      v_and_b32 v4, 7, v0
      v_bfe_u32 v5, v0, 4, 1
      v_lshlrev_b32 v5, 2, v5
      v_xor_b32 v4, v4, v5
      v_lshlrev_b32 v4, 4, v4
      v_lshl_add_u32 v{vWd}, v3, 10, v4
      {rot_setup()}
      s_lshl_b32 s{sHs}, s{sRB2}, 1
      s_add_u32 s{sHs}, s{sHs}, s74
      s_mul_i32 s{sHs}, s{sHs}, 86
      s_mul_i32 s66, s75, 43
      s_add_u32 s{sHs}, s{sHs}, s66
      s_lshl_b32 s{sHs}, s{sHs}, 10
      s_add_u32 s{sHs}, s{sHs}, {WS_H}
      s_add_u32 s{sHe}, s{sHs}, {43*1024}
      s_lshl_b32 s66, s{sROT}, 10
      s_add_u32 s{sHc}, s{sHs}, s66
      {hflag_adr}
      s_lshl_b32 s{sX4}, s{sW}, 12
      s_mul_i32 s{sX3}, s{sW}, 3072
      s_lshl_b32 s{sX1}, s{sW}, 10
      s_mul_i32 s{sWs}, s75, {43*16384}
      s_lshl_b32 s66, s74, 13
      s_add_u32 s{sWs}, s{sWs}, s66
      s_lshl_b32 s66, s{sCB2}, 7
      s_add_u32 s{sWs}, s{sWs}, s66
      s_add_u32 s{sWe}, s{sWs}, {43*16384}
      s_add_u32 s66, s{sROT}, 16
      s_cmp_ge_u32 s66, 43 @ s_cselect_b32 s67, 43, 0
      s_sub_u32 s66, s66, s67
      s_lshl_b32 s66, s66, 14
      s_add_u32 s{sWc}, s{sWs}, s66
      s_mov_b32 s{WD}, s28
      s_mov_b32 s{WD+1}, s29
      s_mov_b32 s{WD+2}, {1376*1024}
      s_mov_b32 s{WD+3}, 0x20000
      s_mov_b32 s{OUT}, s30
      s_mov_b32 s{OUT+1}, s31
      s_mov_b32 s{OUT+2}, 0x200000
      s_mov_b32 s{OUT+3}, 0x20000'''
    fill = [x.strip().replace(' @ ', '\n') for x in fill.split('\n')]
    nv = max(i for i, x in enumerate(fill) if x.startswith('v_')) + 1
    for _ in range(nv + cfg.gfa): p(fill.pop(0))
    tn('g_adr')
    DP = ('quad_perm:[1,0,3,2]', 'quad_perm:[2,3,0,1]', 'row_half_mirror', 'row_mirror')
    for r in range(2): p(f'v_dot2_f32_bf16 v{1 + r}, v{XL + 4*r}, s77, 0')
    tn('g_ln')
    for j in range(1, 4):
        for r in range(2): p(f'v_dot2_f32_bf16 v{1 + r}, v{XL + 4*r + j}, s77, v{1 + r}')
    un = []
    for r in range(2):
        for j in range(4):
            un += [f'v_lshlrev_b32 v{XC + 8*r + 2*j}, 16, v{XL + 4*r + j}', f'v_and_b32 v{XC + 8*r + 2*j + 1}, 0xffff0000, v{XL + 4*r + j}']
    for _ in range(3): p(un.pop(0))
    for m in DP:
        for r in range(2): p(f'v_add_f32_dpp v{1 + r}, v{1 + r}, v{1 + r} {m} row_mask:0xf bank_mask:0xf')
        for _ in range(2): p(un.pop(0))
    while un: p(un.pop(0))
    p(f'v_mul_f32 v{MU}, 0x3c000000, v1\nv_mul_f32 v{MU + 2}, 0x3c000000, v2')
    for j in range(4):
        for r in range(2):
            x = XC + 8*r + 2*j
            p(f'v_pk_add_f32 {vr(x, 2)}, {vr(x, 2)}, {vr(MU + 2*r, 2)} op_sel_hi:[1,0] neg_lo:[0,1] neg_hi:[0,1]')
    for j in range(4):
        for r in range(2):
            x = XC + 8*r + 2*j
            if j == 0: p(f'v_pk_mul_f32 {vr(2 + 2*r, 2)}, {vr(x, 2)}, {vr(x, 2)}')
            else: p(f'v_pk_fma_f32 {vr(2 + 2*r, 2)}, {vr(x, 2)}, {vr(x, 2)}, {vr(2 + 2*r, 2)}')
    for r in range(2): p(f'v_add_f32 v{MU + 2*r + 1}, v{2 + 2*r}, v{3 + 2*r}')
    for m in DP:
        for r in range(2): p(f'v_add_f32_dpp v{MU + 2*r + 1}, v{MU + 2*r + 1}, v{MU + 2*r + 1} {m} row_mask:0xf bank_mask:0xf')
    p(f's_mov_b32 exec_lo, 0x10001\ns_mov_b32 exec_hi, 0x10001\nds_write_b128 v{vLw}, {vr(MU, 4)}')
    p(f's_mov_b64 exec, 1\nds_add_u32 v{vM}, v7 offset:{C_L}\ns_mov_b64 exec, -1')
    tn('g_lnw')
    for _ in range(cfg.gk1 if cfg.gk == 1 else 0):
        if gw: p(gw.pop(0))
    lds_spin(vM, C_L, 4, 1)
    tn('g_lnx')
    R2 = (0, 1)
    p(f'ds_read_b128 {vr(XL, 4)}, v{vSt}')
    for r in R2: p(f'v_mov_b32 v{LR + 2*r}, 0x3727c5ac')
    for r in R2: p(f'v_add_f32_dpp v{36 + r}, v{XL + 2*r}, v{XL + 2*r} quad_perm:[1,0,3,2] row_mask:0xf bank_mask:0xf')
    for r in R2: p(f'v_add_f32_dpp v{36 + r}, v{36 + r}, v{36 + r} quad_perm:[2,3,0,1] row_mask:0xf bank_mask:0xf')
    for r in R2: p(f'v_mul_f32 v{36 + r}, 0x3e800000, v{36 + r}')
    for r in R2: p(f'v_sub_f32 v{38 + r}, v{XL + 2*r}, v{36 + r}')
    for r in R2: p(f'v_mul_f32 v{38 + r}, v{38 + r}, v{38 + r}')
    for r in R2: p(f'v_fmac_f32 v{XL + 2*r + 1}, 0x43000000, v{38 + r}')
    for r in R2: p(f'v_sub_f32 v{LD + 2*r}, v{MU + 2*r}, v{36 + r}')
    for r in R2: p(f'v_add_f32_dpp v{38 + r}, v{XL + 2*r + 1}, v{XL + 2*r + 1} quad_perm:[1,0,3,2] row_mask:0xf bank_mask:0xf')
    for r in R2: p(f'v_cvt_pk_bf16_f32 v{MU + 2*r}, -v{36 + r}, -v{36 + r}')
    for r in R2: p(f'v_add_f32_dpp v{38 + r}, v{38 + r}, v{38 + r} quad_perm:[2,3,0,1] row_mask:0xf bank_mask:0xf')
    for r in R2: p(f'v_fmac_f32 v{LR + 2*r}, 0x3b000000, v{38 + r}')
    for r in R2: p(f'v_rsq_f32 v{LR + 2*r}, v{LR + 2*r}')
    for r in R2: p(f'v_mul_f32 v{LD + 2*r}, v{LD + 2*r}, v{LR + 2*r}')
    for j in range(4):
        for r in R2:
            x = XC + 8*r + 2*j
            p(f'v_pk_fma_f32 {vr(x, 2)}, {vr(x, 2)}, {vr(LR + 2*r, 2)}, {vr(LD + 2*r, 2)} op_sel_hi:[1,0,0]')
    pos = lambda i: 4*(i & 1) + 2*(i >> 2) + ((i >> 1) & 1)
    for z in range(2):
        for i in range(z, 8, 2): p(f'v_cvt_pk_bf16_f32 v{PK + pos(i)}, v{XC + i}, v{XC + 8 + i}')
    for r in R2: p(f'v_mul_f32 v{MU + 2*r + 1}, v{LR + 2*r}, v{LR + 2*r}')
    for k in range(2):
        for z in range(2): p(f'v_permlane32_swap_b32 v{PK + 4*z + k}, v{PK + 4*z + k + 2}')
    for z in range(2):
        for k in range(2): p(f'v_permlane16_swap_b32 v{PK + 4*z + 2*k}, v{PK + 4*z + 2*k + 1}')
    for z in range(2):
        if not cfg.nost & 1: p(f'buffer_store_dwordx4 {vr(PK + 4*z, 4)}, v{vXn}, {srd(WS)}, s{sXn + z} offen sc1')
    p(f's_mov_b32 exec_lo, 0x10001\ns_mov_b32 exec_hi, 0x10001\nbuffer_store_dwordx4 {vr(MU, 4)}, v{vSo}, {srd(WS)}, s{sSt} offen sc1\ns_mov_b64 exec, -1')
    tn('g_lns')
    if cfg.tch and cfg.tpos == 1: touch()
    while gw and cfg.gk == 1: p(gw.pop(0))
    tn('g_k')
    for _ in range(cfg.gfb):
        if fill: p(fill.pop(0))
    mktag()
    p('s_barrier')
    tn('g_b0')
    def reads(g):
        s, ks = g >> 2, g & 3; sl = s % 3; b = FR[g & 1]
        wo = sl * 12288 + ks * 16 * 192
        xr = lambda tt: f'ds_read_b128 {vr(b + 12 + 4*tt, 4)}, v{vXa + ks} offset:{sl*16384 + tt*4096}'
        if g == 32:
            xr = lambda tt: '\n'.join(f'ds_read2_b32 {vr(b + 12 + 4*tt + 2*k, 2)}, v{vMB} offset0:{64*tt} offset1:{64*tt}' for k in range(2))
        wr = lambda T, j: f'ds_read_b64_tr_b16 {vr(b + 4*T + 2*j, 2)}, v{(vWg, vW1, vWu)[T]} offset:{wo + j*768}'
        if g == 32: return [xr(0), wr(0, 0), wr(0, 1), wr(2, 0), wr(2, 1), wr(1, 0), wr(1, 1), xr(1)]
        return [xr(0), wr(0, 0), wr(0, 1), xr(1), wr(1, 0), wr(1, 1), wr(2, 0), wr(2, 1)]
    extra = {}
    def add(g, m, item): extra.setdefault((g, m), []).append(item)
    add(11, 1, 's_waitcnt vmcnt(0)')
    if cfg.tch and cfg.tpos >= 2: add(cfg.tpos, 2, touch)
    add(31, 0, lambda: lds_pre(vM, C_S, 1))
    add(31, 2, lambda: (lds_post(vM, C_S, 4, 1), tn('g_b8')))
    for g in range(32):
        nxt = reads(g + 1)
        if (g & 3) == 3:
            dist = {2: nxt[0:2], 3: nxt[2:4], 4: nxt[4:6], 5: nxt[6:8]}
            if g < 31: add(g, 2, 'BARRIER')
        else:
            dist = {0: nxt[0:2], 1: nxt[2:3], 2: nxt[3:5], 3: nxt[5:6], 4: nxt[6:7], 5: nxt[7:8]}
        for m, l in dist.items():
            for x in l: add(g, m, x)
    csm = lambda g, T: f'v_mfma_f32_32x32x16_bf16 {vr(CSA + 16*T, 16)}, {vr(ONE, 4)}, {vr(FR[g & 1] + 4*T, 4)}, {"0" if g & 1 == 0 else vr(CSA + 16*T, 16)}'
    if cfg.rho == 1:
        for g in range(2):
            for T in range(3): add(g, 2*T + 1, ('MFMA', csm(g, T)))
    else:
        def csc(g):
            L = p.newlabel('CS')
            p(f's_bfe_u32 s66, s{sRB}, {0x10000*(cfg.rho.bit_length() - 1) + 1}\ns_cmp_eq_u32 s66, {g >> 2}\ns_cbranch_scc0 {L}')
            p.cond_begin()
            for T in range(3): p(csm(g, T))
            p.cond_end()
            p.label(L)
        for j in range(cfg.rho):
            for g in (4*j, 4*j + 1): add(g, 5, ('MFMA', lambda g=g: csc(g)))
    gc = 4*(cfg.rho - 1)
    add(gc + 2, 3, f'v_permlane32_swap_b32 v{CSA}, v{CSA + 32}')
    add(gc + 2, 4, f'v_cvt_pk_bf16_f32 v{CSA}, v{CSA}, v{CSA + 16}')
    add(gc + 2, 5, f'ds_write_b16 v{vCS1}, v{CSA}')
    add(gc + 3, 0, f'ds_write_b16_d16_hi v{vCS2}, v{CSA}')
    for x in reads(0): p(x)
    nb = 0
    gacc = [0, 0]
    assert cfg.gk != 2 or (cfg.ggs >= 4 and not fill)
    for g in range(32):
        b = FR[g & 1]
        for m in range(6):
            T, tt = m >> 1, m & 1
            a = ACC + 16 * (2*T + tt)
            c = '0' if g == 0 else vr(a, 16)
            if cfg.mf16:
                for z in range(2):
                    a4 = a + 8*(g & 1) + 4*z
                    p(f'v_mfma_f32_16x16x32_bf16 {vr(a4, 4)}, {vr(b + 4*T, 4)}, {vr(b + 12 + 4*(tt ^ z), 4)}, {"0" if g < 2 else vr(a4, 4)}')
            else: p(f'v_mfma_f32_32x32x16_bf16 {vr(a, 16)}, {vr(b + 4*T, 4)}, {vr(b + 12 + 4*tt, 4)}, {c}')
            late = []
            ex = extra.get((g, m), [])
            for x in ex:
                if x == 'BARRIER':
                    p('s_waitcnt lgkmcnt(0)\ns_barrier'); nb += 1
                    if nb == cfg.gprio: p('s_setprio 2')
                    tn(f'g_b{nb}')
                elif isinstance(x, tuple): late.append(x[1])
                else: emit(x)
            if g >= cfg.gf0 and 'BARRIER' not in ex:
                for _ in range(cfg.gf):
                    if fill: p(fill.pop(0))
            if gw and g >= cfg.ggs and 'BARRIER' not in ex:
                gacc[0] += cfg.ggr
                while gw and gacc[0] >= 10:
                    if gw[0].startswith('ds_write') and nb < cfg.gga: gacc[0] = 0; break
                    gacc[0] -= 10; p(gw.pop(0))
                    if not gw:
                        gacc[1] = nb + 1
                        if cfg.verbose: print('gw ends at', g, m)
            for x in late: emit(x)
        if g == 29: assert not fill
    for tt in range(2):
        for T in (0, 2, 1):
            a = ACC + 16 * (2*T + tt)
            p(f'v_mfma_f32_32x32x16_bf16 {vr(a, 16)}, {vr(FR[0] + 4*T, 4)}, {vr(FR[0] + 12 + 4*tt, 4)}, {vr(a, 16)}')
    lds_add(vM, C_G, 7)
    tn('g_corr')
    hmod = '' if cfg.wbl2 else [' sc1', ' sc0 sc1', ' nt sc1', ' nt sc0 sc1'][cfg.hs]
    for tt in range(2):
        for q in range(3):
            if q < 2: ga, ua = ACC + 16*tt + 8*q, ACC + 16*(4 + tt) + 8*q
            else: ga, ua = ACC + 16*(2 + tt), ACC + 16*(2 + tt) + 8
            for e in range(8): p(f'v_mul_f32 v{ga + e}, v{ga + e}, v{ua + e}')
            for j in range(4): p(f'v_cvt_pk_bf16_f32 v{ga + j}, v{ga + 2*j}, v{ga + 2*j + 1}')
            hst = p(f'buffer_store_dwordx4 {vr(ga, 4)}, v{vH2 if q == 2 else vH01}, {srd(WS)}, s{70 + tt} offen offset:{1024*q}{hmod}')
    if cfg.wbl2:
        p('s_waitcnt vmcnt(0)')
        hst = p('buffer_wbl2 sc1')
    tn('g_hst')
    if cfg.gp2 != 2: p(f's_setprio {cfg.gp2}')
    HW = cfg.hwin; HB = 176; AC2 = 224; RF = 32; NRF = 16; RING = cfg.adist + 1
    assert HW <= 12 and RING <= 3
    def afr(n): return RF + 8 * (n if n < NRF else (n - NRF) % RING)
    def aread(n, dt, s):
        base, stride = piece_loc(n)
        reg, rb_ = {4096: (vA4, XR), 3072: (vA3, GR), 1024: (vA1, UR2)}[stride]
        p(f'ds_read_b64_tr_b16 {vr(afr(n) + 4*dt + 2*s, 2)}, v{reg + dt} offset:{base - rb_ + stride*s}')
    gwh = {}
    def g_wd(n):
        base, stride = piece_loc(n)
        p(f's_add_u32 m0, s{ {4096: sX4, 3072: sX3, 1024: sX1}[stride] }, {base}')
        gwh[n] = p(f'buffer_load_dwordx4 v{vWd}, {srd(WD)}, s{sWc} offen lds')
        adv = f's_add_u32 s{sWc}, s{sWc}, 16384\ns_cmp_eq_u32 s{sWc}, s{sWe}\ns_cselect_b32 s{sWc}, s{sWs}, s{sWc}'
        if n < 42: p(adv)
    def grpC():
        lds_spin(vM, C_G, 4, 1)
        for n in range(16, 27): g_wd(n)
        tn('g_c')
    def ackflag():
        if cfg.nch >= 0:
            p(f'''v_lshrrev_b32 v1, {cfg.nch}, v0
              v_mul_u32_u24 v1, 14, v1
              v_sub_u32 v1, s11, v1
              v_cmp_gt_u32 vcc, 16, v1
              v_lshlrev_b32 v2, 7, v0
              v_lshl_add_u32 v2, v1, 2, v2
              v_mov_b32 v1, s{sTAG}
              s_and_b32 vcc_lo, vcc_lo, {(1 << (2 << cfg.nch)) - 1}
              s_mov_b32 vcc_hi, 0''')
        p.wait_vm(hst)
        tn('g_ack')
        if cfg.nch >= 0: p(f's_mov_b64 exec, vcc\nbuffer_store_dword v1, v2, {srd(WS)}, s{sFo} offen sc1\ns_mov_b64 exec, -1')
        else: flag_store(sFo)
        p(f'v_lshrrev_b32 v1, 10, v{vOut}\nv_lshlrev_b32 v1, 3, v1\ns_movk_i32 s66, {WS_ST + 4}')
        p(f'buffer_load_dword v160, v1, {srd(WS)}, s66 offen sc1')
    def preread():
        lds_spin(vCk, C_W, 2, 1)
        tn('g_cw')
        for n in range(NRF):
            for dt in range(2):
                for s_ in range(2): aread(n, dt, s_)
        lds_add(vCk, C_R, 7)
        tn('g_pre')
    for x in {0: (ackflag, grpC, preread), 1: (grpC, ackflag, preread), 2: (grpC, preread, ackflag), 3: (preread, ackflag, grpC), 4: (preread, grpC, ackflag)}[cfg.cfirst]: x()
    if cfg.gx:
        p(f'''v_and_b32 v1, 3, v0
          v_lshrrev_b32 v2, 4, v0
          v_xor_b32 v1, v1, v2
          v_lshlrev_b32 v1, 4, v1
          v_lshrrev_b32 v2, 2, v0
          v_lshl_add_u32 v2, v2, 10, v1
          s_mov_b32 s44, s4
          s_mov_b32 s45, s5
          s_mov_b32 s46, 0x200000
          s_mov_b32 s47, 0x20000
          s_add_u32 s66, s15, {16384 - 1024}''')
        assert cfg.dpre <= 14 and not cfg.hat
    lds_spin(vCk, C_R, 2, 1)
    if cfg.gx: p(f's_add_u32 m0, s{sX3}, {UR + 1024}\nbuffer_load_dwordx4 v2, {srd(44)}, s15 offen lds\nbuffer_load_dwordx4 v2, {srd(44)}, s66 offen offset:1024 lds')
    early = cfg.spoll & 1 and cfg.pearly
    for n in range(27, 27 + cfg.dpre + 1):
        if early and n == 27 + cfg.pearly: p(f's_load_dwordx16 s[16:31], s[34:35], s{sFi} glc')
        if n < 27 + cfg.dpre: g_wd(n)
    tn('g_d')
    if cfg.spoll & 1: spoll(16, 16, sFi, early)
    else: vpoll(16, sFi)
    tn('g_fh')
    if cfg.gp3 != cfg.gp2: p(f's_setprio {cfg.gp3}')
    def hload(n):
        if cfg.g2x == 1 and n >= HW: return
        hm = [" sc1", "", " nt", " sc0 sc1", " nt sc1"][cfg.hl]
        if cfg.hat: p(f'buffer_load_dwordx4 {vr(HB + 4*(n % HW), 4)}, off, {srd(44)}, s{sHc}{hm}')
        else: p(f'buffer_load_dwordx4 {vr(HB + 4*(n % HW), 4)}, v{vHl}, {srd(WS)}, s{sHc} offen{hm}')
        if n < 42 and cfg.g2x != 2: p(f's_add_u32 s{sHc}, s{sHc}, 1024\ns_cmp_eq_u32 s{sHc}, s{sHe}\ns_cselect_b32 s{sHc}, s{sHs}, s{sHc}')
    if cfg.hat: p(f's_mov_b32 s44, s34\ns_or_b32 s45, s35, 0x100000\ns_mov_b32 s46, {WS_SIZE}\ns_mov_b32 s47, 0x800000')
    for n in range(HW): hload(n)
    fX, fR, fB, fY, fP, vXt = 56, 160, 72, 88, 96, 161
    g2 = {}
    def add2(n, m, x): g2.setdefault((n, m), []).append(x)
    xa_ = [f's_add_u32 s66, s{sX3}, {UR + 1024}' if cfg.gx else f's_mul_i32 s66, s75, {CCH}\ns_lshl_b32 s67, s74, 11\ns_add_u32 s66, s66, s67\ns_add_u32 s66, s66, {KS + 12288}',
           'v_and_b32 v1, 31, v0', 'v_bfe_u32 v2, v0, 2, 2', 'v_lshl_add_u32 v1, v1, 6, s66', 'v_lshl_add_u32 v1, v2, 4, v1',
           'v_lshrrev_b32 v2, 5, v0', f'v_lshl_add_u32 v{vXt}, v2, 3, v1'] + [f'v_xor_b32 v{vXt + j}, {16*j}, v{vXt}' for j in (1, 2, 3)]
    xa_ += [f's_lshl_b32 s66, s{sW}, 12\ns_add_u32 s66, s66, {XR + 16384}\nv_add_u32 v5, s66, v{vHl}',
            f's_xor_b32 s66, s{sW}, 2\ns_lshl_b32 s66, s66, 12\ns_add_u32 s66, s66, {XR + 16384}\nv_add_u32 v6, s66, v{vHl}']
    for k, x in enumerate(xa_): add2(1 + k // 2, k & 1, x)
    assert cfg.xstep >= 9
    if not cfg.gx: add2(cfg.xstep - 1, 0, lambda: lds_pre(vCk, C_X, 4)); add2(cfg.xstep, 0, lambda: lds_post(vCk, C_X, 2, 4))
    xrh = [None]
    def xread(j): xrh[0] = p(f'ds_read_b64 {vr(fX + 2*j, 2)}, v{vXt + j}')
    for j in range(4): add2(cfg.xstep, 1, lambda j=j: xread(j))
    xw = []
    for j in range(8): xw += [f'v_lshlrev_b32 v{fB + 2*j}, 16, v{fX + j}', f'v_and_b32 v{fB + 2*j + 1}, 0xffff0000, v{fX + j}']
    xs0 = cfg.xstep + 2
    for k, x in enumerate(xw): add2(xs0 + k // 4, (k >> 1) & 1, x)
    assert xs0 + len(xw) // 4 <= cfg.ystep
    n2 = NRF - cfg.adist
    pre2 = {}
    if cfg.dpre < 16:
        for k, n in enumerate(range(27 + cfg.dpre, 43)):
            nl = cfg.dst + k // cfg.dper
            if cfg.gx and n >= 41:
                nl = max(nl, cfg.xstep + 2)
                pre2.setdefault((nl, cfg.dm), []).append(lambda: p.wait_ds(xrh[0]))
            pre2.setdefault((nl, cfg.dm), []).append(lambda n=n: g_wd(n))
        dsig = nl + HW + (0 if (cfg.dm == 1 or cfg.g2o != 1) else -1)
        assert dsig <= 27 - cfg.adist - 3, dsig
        add2(dsig, 0, lambda: (p.wait_vm(gwh[42]), lds_add(vCk, C_W4, 7)))
        add2(27 - cfg.adist - 2, 0, lambda: lds_pre(vCk, C_W4, 3)); add2(27 - cfg.adist - 1, 1, lambda: lds_post(vCk, C_W4, 2, 3))
    add2(0, 0, lambda: lds_add(vCk, C_W3, 7))
    add2(n2 - 2, 0, lambda: lds_pre(vCk, C_W3, 3)); add2(n2 - 1, 1, lambda: lds_post(vCk, C_W3, 2, 3))
    add2(24, 1, lambda: (lds_add(vCk, C_F, 7), tn('g_n27')))
    add2(cfg.ystep - 1, 0, lambda: lds_pre(vCk, C_Y, 3)); add2(cfg.ystep, 0, lambda: (lds_post(vCk, C_Y, 2, 3), tn('g_y')))
    for Q in range(4): add2(cfg.ystep, 1, f'ds_read_b64_tr_b16 {vr(fY + 2*Q, 2)}, v{vYA} offset:{1024*Q}')
    yw = []
    for j in range(8):
        yw += [f'v_lshlrev_b32 v1, 16, v{fY + j}', f'v_and_b32 v2, 0xffff0000, v{fY + j}',
               f'v_add_f32 v{fB + 2*j}, v{fB + 2*j}, v1', f'v_add_f32 v{fB + 2*j + 1}, v{fB + 2*j + 1}, v2']
    ng = 2*(42 - cfg.ystep) - 2
    per = -(-len(yw) // ng)
    for k, x in enumerate(yw): gi = 2*(cfg.ystep + 1) + 1 + k // per; add2(gi >> 1, gi & 1, x)
    add2(40, 0, lambda: lds_pre(vCk, C_F, 4)); add2(41, 1, lambda: lds_post(vCk, C_F, 2, 4))
    for n in range(43):
        for m in range(2):
            dt = m if n < 42 else 1 - m
            a = AC2 + 16 * dt
            c = '0' if n == 0 else vr(a, 16)
            p(f'v_mfma_f32_32x32x16_bf16 {vr(a, 16)}, {vr(afr(n) + 4*dt, 4)}, {vr(HB + 4*(n % HW), 4)}, {c}')
            if n == 0 and m == 0: tn('g_h0')
            if n == 16 and m == 0: tn('g_n16')
            if m == 0: tn(f'g_s{n}')
            for x in pre2.get((n, m), []): emit(x)
            if cfg.g2o == 0:
                if NRF <= n + cfg.adist <= 42:
                    for s_ in range(2): aread(n + cfg.adist, m, s_)
                if m == 1 and n + HW < 43: hload(n + HW)
            elif cfg.g2o == 1:
                if m == 0 and n >= 1 and n - 1 + HW < 43: hload(n - 1 + HW)
                if m == 1 and NRF <= n + cfg.adist <= 42:
                    for dd in range(2):
                        for s_ in range(2): aread(n + cfg.adist, dd, s_)
            elif cfg.g2o == 2:
                if m == 1 and n + HW < 43: hload(n + HW)
                if m == 0 and NRF <= n + cfg.adist <= 42:
                    for dd in range(2):
                        for s_ in range(2): aread(n + cfg.adist, dd, s_)
            elif cfg.g2o == 3:
                if m == 1 and n + HW < 43: hload(n + HW)
                if NRF <= n + cfg.adist <= 42:
                    for s_ in range(2): aread(n + cfg.adist, m, s_)
            for x in g2.get((n, m), []): emit(x)
    tn('g_g2')
    for Q in range(4): p(f'ds_write_b128 v5, {vr(AC2 + 16 + 4*Q, 4)} offset:{1024*Q}')
    for e in range(16): p(f'v_fmac_f32 v{fB + e}, v{AC2 + e}, v{fR}')
    p('s_waitcnt lgkmcnt(0)\ns_barrier')
    ts(8)
    for Q in range(4): p(f'ds_read_b128 {vr(fP + 4*Q, 4)}, v6 offset:{1024*Q}')
    for h in range(2):
        for e in range(8*h, 8*h + 8): p(f'v_fmac_f32 v{fB + e}, v{fP + e}, v{fR}')
        for j in range(4*h, 4*h + 4): p(f'v_cvt_pk_bf16_f32 v{fX + j}, v{fB + 2*j}, v{fB + 2*j + 1}')
        p(f'v_permlane32_swap_b32 v{fX + 4*h}, v{fX + 4*h + 2}\nv_permlane32_swap_b32 v{fX + 4*h + 1}, v{fX + 4*h + 3}')
        p(f'buffer_store_dwordx4 {vr(fX + 4*h, 4)}, v{vOut}, {srd(OUT)}, 0 offen offset:{32*h}{["", " nt", " sc1", " sc0 sc1", " nt sc1"][cfg.omod]}')
    finish()

    p.label('L_S')
    p.vmq, p.dsq = st0
    prio = [0]
    def setprio(x):
        if prio[0] != x: p(f's_setprio {x}'); prio[0] = x
    setprio((cfg.sprio >> 8) & 1)
    vXo, vWo, vWd, vIdx, vL16, vPar = 10, 14, 17, 20, 31, 32
    LAM, Wv, P1, P2, P4, Q1, Q2, Q4, Q8, Q16, E1, E2, E4, E8, T0, T1 = range(40, 72, 2)
    hW, hP1, hP2, hP4, hE1, hE2, hE4, hE8 = range(72, 80)
    hq = lambda j: 79 + j
    vSR, vDW, vDR = 109, 110, 111
    AFr, BFr, DK = 112, 144, 176
    vTA, vCA, vUB, vXB, vYS, vYL, vYW, vCk, vF, vUo, vPoll, vM, vOne, vCSr, vXS = 224, 228, 229, 233, 234, 235, 236, 237, 238, 239, 240, 244, 245, 248, 226
    sX4, sX3, sX1, sWc, sWs, sWe, sYB, sCS, sFA, sFYo, sFYi = 6, 7, 8, 9, 10, 11, 22, 30, 31, 32, 33
    p(f'''s_sub_u32 s74, s{sW}, 4
      s_lshr_b32 s75, s74, 1
      s_and_b32 s77, s74, 1
      s_lshr_b32 s66, s2, 3
      s_lshl_b32 s66, s66, 1
      s_add_u32 s66, s66, s75
      s_lshl_b32 s66, s66, 3
      s_and_b32 s67, s2, 7
      s_add_u32 s73, s66, s67
      s_lshl_b32 s67, s73, 8
      s_lshl_b32 s68, s77, 7
      s_add_u32 s67, s67, s68
      v_lshl_add_u32 v18, v0, 1, s67
      s_lshl_b32 s66, s73, 1
      v_mov_b32 v19, s66''')
    def par_loads():
        p(f'global_load_ushort v{vPar + 6}, v19, s[18:19]')
        for i in range(6): p(f'global_load_ushort v{vPar + i}, v18, s[{6 + 2*i}:{7 + 2*i}]')
        p(f'global_load_ushort v{vPar + 7}, v19, s[20:21]')
    p(f'''s_and_b32 s66, s{sRB}, 1
      s_lshl_b32 s67, s66, 2
      v_and_b32 v1, 7, v0
      v_lshrrev_b32 v2, 4, v0
      v_xor_b32 v1, v1, v2
      v_xor_b32 v1, s67, v1
      v_lshrrev_b32 v2, 3, v0
      s_lshl_b32 s68, s74, 15
      {f's_lshl_b32 s69, s{sRB}, 17' if cfg.kw else ''}
      {f's_add_u32 s68, s68, s69' if cfg.kw else ''}
      v_lshl_add_u32 v2, v2, 10, s68
      v_lshl_add_u32 v{vXo}, v1, 4, v2
      v_xor_b32 v1, 4, v1
      v_lshl_add_u32 v2, v1, 4, v2
      v_add_u32 v{vXo + 1}, {7168}, v2
      v_add_u32 v{vXo + 2}, {2*7168}, v{vXo}
      v_add_u32 v{vXo + 3}, {3*7168}, v2''')
    wcalc = lambda i: f'''v_add_u32 v1, {64*i}, v0
          v_mul_u32_u24 v2, 0x5556, v1
          v_lshrrev_b32 v2, 18, v2
          v_mul_u32_u24 v3, 12, v2
          v_sub_u32 v3, v1, v3
          v_add_u32 v2, s33, v2
          v_xor_b32 v2, s32, v2
          {'v_lshl_add_u32 v3, v3, 4, s70' if cfg.kw else 'v_lshlrev_b32 v3, 4, v3'}
          v_mad_u32_u24 v2, v2, s31, v3
          v_subrev_u32 v{vWo + i}, {1024*i}, v2'''
    p(f'''s_lshl_b32 s66, s74, 12
      s_add_u32 s66, s66, {XR}
      s_mul_i32 s68, s74, 3072
      s_add_u32 s67, s68, {GR}
      s_add_u32 s68, s68, {UR}
      {'' if cfg.kw else f's_lshl_b32 s69, s{sRB}, 17'}
      s_mul_i32 s70, s{sCB}, 192
      s_lshr_b32 s71, s{sRB}, 1
      {f's_and_b32 s71, s71, {8 - cfg.rho}' if cfg.rho > 1 else ''}
      {'s_lshl_b32 s76, s71, 7' if cfg.kw else ''}
      v_lshlrev_b32 v{vL16}, 4, v0''')
    if cfg.ypois: p('v_mov_b64 v[4:5], -1\nv_mov_b64 v[6:7], -1')
    p('s_waitcnt lgkmcnt(0)')
    tn('s_karg')
    p('s_barrier')
    if cfg.parfirst: par_loads()
    srds('S')
    m0 = [None]
    def setm0(key, text):
        if m0[0] != key: p(text); m0[0] = key
    slabh = {}
    def dma_items(s):
        sl = s % 3
        it = []
        def x(i):
            if i == 0 and s == 0 and cfg.kw: assert cfg.parfirst; p('s_mul_i32 s23, s76, 1376')
            if i == 0 and not cfg.kw:
                p(f's_add_u32 s78, s71, {s}\ns_and_b32 s78, s78, 7\ns_lshl_b32 s76, s78, 7\ns_add_u32 s76, s76, s69')
                p(f's_mul_i32 s23, s78, {64*2752}\ns_add_u32 s23, s23, s70')
            setm0(('x', s), f's_add_u32 m0, s66, {sl*16384}')
            p(f'buffer_load_dwordx4 v{vXo + i}, {srd(XD)}, s76 offen offset:{1024*i} lds')
            if cfg.kw and i == 3:
                setm0(('w', s, 0), f's_add_u32 m0, s67, {sl*12288}')
                if s < 7: p('s_add_u32 s76, s76, 128\ns_and_b32 s76, s76, 0x3ff')
        def w(k, i):
            setm0(('w', s, k), f's_add_u32 m0, s{67 + k}, {sl*12288}')
            slabh[s] = p(f'buffer_load_dwordx4 v{vWo + i}, {srd((WG, WU)[k])}, s23 offen offset:{1024*i} lds')
            if cfg.kw and i == 2:
                if k == 0: setm0(('w', s, 1), f's_add_u32 m0, s68, {sl*12288}')
                elif s < 7:
                    setm0(('x', s + 1), f's_add_u32 m0, s66, {(s + 1) % 3*16384}')
                    p('s_mul_i32 s23, s76, 1376')
        for i in range(4): it.append(lambda i=i: x(i))
        for k in range(2):
            for i in range(3): it.append(lambda k=k, i=i: w(k, i))
        return it
    def seg(work, dma=()):
        work = list(work); dma = list(dma)
        gap = max(1, -(-len(work) // len(dma))) if dma else len(work)
        if cfg.dmaf and dma: gap = min(gap, cfg.dmaf - 1)
        while work or dma:
            if dma: emit(dma.pop(0))
            for _ in range(gap if dma else len(work)):
                if work: emit(work.pop(0))
    d0 = dma_items(0)
    p(f's_and_b32 s32, s{sRB}, 1\ns_lshl_b32 s32, s32, 5\ns_lshl_b32 s33, s74, 4\ns_movk_i32 s31, 2752')
    for i in range(4):
        emit(d0.pop(0))
        if i < 3: p(wcalc(i))
    if not cfg.parfirst: par_loads()
    srds2('S')
    p(f's_lshl_b32 s{sYB}, s73, 12\ns_add_u32 s{sYB}, s{sYB}, {WS_YT}')
    d1 = dma_items(1)
    if cfg.ypois:
        p(f's_lshl_b32 s72, s77, 11\ns_add_u32 s72, s72, s{sYB}')
        d1.insert(9, f'buffer_store_dwordx4 v[4:7], v{vL16}, {srd(WS)}, s72 offen sc1\nbuffer_store_dwordx4 v[4:7], v{vL16}, {srd(WS)}, s72 offen offset:1024 sc1')
    sT0 = 17
    vTX, vTY = vTA, vTA + 1
    w_idx = []
    A = w_idx.append
    A('v_and_b32 v1, 31, v0'); A('v_lshrrev_b32 v2, 5, v0')
    A(f's_xor_b32 s24, s74, 1\ns_mul_i32 s24, s24, 8704\ns_add_u32 s24, s24, {KS}'); A(f'v_add_u32 v{vDR}, s24, v{vL16}')
    A(f'''s_mul_i32 s{sT0}, s75, {TCH}
      s_add_u32 s{sT0}, s{sT0}, {TT + 16}
      s_mul_i32 s18, s77, 62
      s_add_u32 s18, s18, 128
      s_lshl_b32 s19, s77, 3
      s_add_u32 s19, s19, s{sT0}
      s_add_u32 s19, s19, 1024''')
    A('v_sub_u32 v8, 2, v2'); A('v_lshlrev_b32 v3, v8, v1'); A('v_mad_u32_u24 v3, v2, s18, v3'); A(f'v_lshl_add_u32 v{vTX}, v3, 2, s19')
    A(f'''s_mul_i32 s18, s77, 124
      s_add_u32 s18, s18, 4
      s_lshl_b32 s19, s77, 11
      s_add_u32 s19, s19, s{sT0}
      s_mul_i32 s20, s77, 3
      s_sub_u32 s20, 3, s20''')
    A('v_lshlrev_b32 v3, s20, v1'); A('v_mad_u32_u24 v3, v2, s18, v3'); A(f'v_lshl_add_u32 v{vTY}, v3, 2, s19')
    w_idxB = w_idx
    w_idx = []
    A = w_idx.append
    A(f's_mul_i32 s25, s74, 8704'); A(f's_add_u32 s25, s25, {KS}')
    A('v_and_b32 v1, 31, v0'); A('v_lshrrev_b32 v2, 5, v0'); A('v_mul_u32_u24 v3, 272, v1'); A('v_lshl_add_u32 v3, v2, 4, v3')
    A(f'v_add_u32 v{vSR}, s25, v3'); A(f'v_add_u32 v{vDW}, s25, v{vL16}')
    vSB = 9
    if cfg.kw:
        assert cfg.gk != 1
        A('v_lshl_add_u32 v9, v0, 2, s25')
    if cfg.gk == 1:
        A(f's_lshl_b32 s25, s74, 12\ns_add_u32 s25, s25, {XR + 32768}\ns_mul_i32 s24, s74, 3072\ns_add_u32 s24, s24, {GR2 + 240 - 15*272}')
        A('v_mov_b32 v2, s25'); A('v_mov_b32 v8, s24'); A('v_cmp_lt_u32 vcc, 14, v1'); A('v_cndmask_b32 v2, v2, v8, vcc')
        A(f'v_add_u32 v8, {UR2 - GR2 + 112 - 240 - 10*272}, v8'); A('v_cmp_lt_u32 vcc, 24, v1'); A('v_cndmask_b32 v2, v2, v8, vcc')
        A(f'v_add_u32 v{vSB}, v2, v3'); A(f's_mul_i32 s25, s74, 8704\ns_add_u32 s25, s25, {KS}')
    A(f'v_mov_b32 v{vM}, {MISC}'); A(f'v_mov_b32 v{vOne}, 1')
    A(f's_lshl_b32 s24, s75, 2\ns_add_u32 s24, s24, {MISC}'); A(f'v_mov_b32 v{vCk}, s24')
    A(f's_mul_i32 s24, s74, 96\ns_add_u32 s24, s24, {CSL}'); A(f'v_add_u32 v{vCSr}, s24, v{vL16}')
    A(f'''s_mul_i32 s{sCS}, s{sCB}, 6144
      s_mul_i32 s24, s{sRB}, 192
      s_add_u32 s{sCS}, s{sCS}, s24
      s_mul_i32 s24, s75, 3072
      s_add_u32 s{sCS}, s{sCS}, s24
      s_mul_i32 s24, s77, 96
      s_add_u32 s{sCS}, s{sCS}, s24
      s_add_u32 s{sCS}, s{sCS}, {WS_CSP}
      s_lshl_b32 s{sFA}, s{sTB}, 2
      s_add_u32 s{sFA}, s{sFA}, {WS_FA}
      s_cmp_eq_u32 s74, 0
      s_cselect_b32 s{sFA}, s{sFA}, {BIG}''')
    A(lambda: tn('s_idx'))

    def cmul(o, d, x, y, t):
        o.append(f'v_pk_mul_f32 {vr(t, 2)}, {vr(x, 2)}, {vr(y, 2)} op_sel:[0,0] op_sel_hi:[1,0]')
        o.append(f'v_pk_fma_f32 {vr(d, 2)}, {vr(x, 2)}, {vr(y, 2)}, {vr(t, 2)} op_sel:[1,1,0] op_sel_hi:[0,1,1] neg_lo:[1,0,0]')
    tv = [0]
    def hmul(o, d, x, y):
        t = 107 + tv[0] % 2; tv[0] += 1
        o.append(f'v_pk_mul_f16 v{t}, v{x}, v{y} op_sel:[0,0] op_sel_hi:[1,0]')
        o.append(f'v_pk_fma_f16 v{d}, v{x}, v{y}, v{t} op_sel:[1,1,0] op_sel_hi:[0,1,1] neg_lo:[1,0,0]')
    def put(o, row, r):
        if cfg.kw: o.append(f'ds_write_b32 v9, v{r} offset:{272*row}')
        else: o.append(lambda: (setm0('ks', 's_mov_b32 m0, s25'), p(f'ds_write_addtid_b32 v{r} offset:{272*row}')))
    w_set = []
    A = w_set.append
    for i in (6, 0, 1, 2, 3, 4, 5, 7): A(f'v_lshlrev_b32 v{vPar + i}, 16, v{vPar + i}')
    A(lambda: tn('s_par'))
    ld = vPar + 6
    A(f's_mov_b32 s24, {LOG2E}'); A(f'v_mul_f32 v1, s24, v{ld}'); A(f'v_fma_f32 v2, v{ld}, s24, -v1')
    A(f'v_fmac_f32 v2, {LOG2E_LO}, v{ld}'); A('v_exp_f32 v1, v1'); A(f'v_mul_f32 v2, {LN2}, v2'); A('v_fmac_f32 v1, v1, v2')
    A('v_cvt_pk_bf16_f32 v1, v1, v1'); A('v_and_b32 v1, 0xffff0000, v1')
    for i in range(4): A(f'v_mul_f32 v{vPar + i}, v{vPar + i}, v1')
    cmul(w_set, Wv, vPar + 4, vPar + 2, T0)
    A(f'v_mul_f32 v{LAM}, s24, v{vPar}'); A(f'v_mul_f32 v{LAM + 1}, {INV2PI}, v{vPar + 1}')
    A(f'v_max_f32 v8, |v{Wv}|, |v{Wv + 1}|')
    mx = [f'v_max_u32_dpp v8, v8, v8 {m} row_mask:0xf bank_mask:0xf' for m in DP]
    for (dst, n) in (((P1, 1), (E1, 256)) if cfg.gk else ((P1, 1), (Q1, 8), (E1, 256))):
        if n == 1: A(f'v_exp_f32 v1, v{LAM}'); A(f'v_fract_f32 v2, v{LAM + 1}')
        else:
            lit = {8: 0x41000000, 256: 0x43800000}[n]
            A(f'v_mul_f32 v1, {lit}, v{LAM}'); A(f'v_mul_f32 v2, {lit}, v{LAM + 1}'); A('v_exp_f32 v1, v1'); A('v_fract_f32 v2, v2')
        if mx: A(mx.pop(0))
        A('v_cos_f32 v3, v2'); A(f'v_sin_f32 v{dst + 1}, v2')
        if mx: A(mx.pop(0))
        A(f'v_mul_f32 v{dst}, v1, v3'); A(f'v_mul_f32 v{dst + 1}, v1, v{dst + 1}')
    for k in range(4): A(f'v_readlane_b32 s{26 + k}, v8, {16*k}')
    cmul(w_set, P2, P1, P1, T0); cmul(w_set, E2, E1, E1, T1)
    A(f's_max_u32 s26, s26, s27\ns_max_u32 s28, s28, s29\ns_max_u32 s26, s26, s28\ns_lshr_b32 s26, s26, 23\ns_sub_u32 s26, 266, s26\ns_min_u32 s26, s26, 253')
    A(f's_sub_u32 s27, 254, s26\ns_lshl_b32 s27, s27, 23\ns_lshl_b32 s26, s26, 23')
    cmul(w_set, P4, P2, P2, T0); cmul(w_set, E4, E2, E2, T1)
    A(f'v_mul_f32 v{Wv}, s26, v{Wv}'); A(f'v_mul_f32 v{Wv + 1}, s26, v{Wv + 1}')
    if not cfg.gk: cmul(w_set, Q2, Q1, Q1, T0)
    cmul(w_set, E8, E4, E4, T1)
    for (h, f) in ((hW, Wv), (hP1, P1), (hE1, E1), (hP2, P2)): A(f'v_cvt_pk_f16_f32 v{h}, v{f}, -v{f + 1}')
    if not cfg.gk: cmul(w_set, Q4, Q2, Q2, T0)
    for (h, f) in ((hE2, E2), (hP4, P4)): A(f'v_cvt_pk_f16_f32 v{h}, v{f}, -v{f + 1}')
    if not cfg.gk: cmul(w_set, Q8, Q4, Q4, T0)
    for (h, f) in ((hE4, E4), (hE8, E8)): A(f'v_cvt_pk_f16_f32 v{h}, v{f}, -v{f + 1}')
    if not cfg.gk:
        cmul(w_set, Q16, Q8, Q8, T0)
        for (j, f) in ((1, Q1), (2, Q2), (4, Q4), (8, Q8), (16, Q16)): A(f'v_cvt_pk_f16_f32 v{hq(j)}, v{f}, v{f + 1}')
    w_k = []
    keep = {0: hW, 1: 96, 2: 97, 3: 98, 8: 99, 9: 100, 12: 101, 14: 102}
    ov = [0]
    rows = [(1, 0, hP1), (8, 0, hE1), (2, 0, hP2), (12, 0, hE2), (3, 1, hP2), (9, 8, hP2), (14, 8, hE2), (4, 0, hP4), (5, 1, hP4), (6, 2, hP4),
            (7, 3, hP4), (10, 8, hP4), (11, 9, hP4), (13, 12, hP4), (15, 14, hP4), (16, 0, hE4), (17, 8, hE4), (18, 12, hE4), (19, 14, hE4), (20, 0, hE8)]
    put(w_k, 0, hW)
    pend = None
    for (row, src, fac) in rows:
        if row in keep: d = keep[row]
        else: d = 103 + ov[0] % 4; ov[0] += 1
        hmul(w_k, d, keep[src], fac)
        if pend: put(w_k, *pend)
        pend = (row, d)
    put(w_k, *pend)
    for ks in range(8): w_k.append(f'ds_read_b128 {vr(AFr + 4*ks, 4)}, v{vSR} offset:{32*ks}')
    if not cfg.gk:
        w_k.append('v_mov_b32 v1, 0x3c00'); put(w_k, 0, 1)
        for j in (1, 2, 4, 8, 16): put(w_k, j, hq(j))
        pend = None
        for j in [3, 5, 6, 7] + list(range(9, 16)) + list(range(17, 32)):
            hb = 1 << (j.bit_length() - 1)
            if j < 16: d = hq(j)
            else: d = 103 + ov[0] % 4; ov[0] += 1
            hmul(w_k, d, hq(j - hb), hq(hb))
            if pend: put(w_k, *pend)
            pend = (j, d)
        put(w_k, *pend)
        for ks in range(8): w_k.append(f'ds_read_b128 {vr(BFr + 4*ks, 4)}, v{vSR} offset:{32*ks}')
    if cfg.gk == 2:
        for ks in range(8): w_k.append(f'ds_read_b128 {vr(BFr + 4*ks, 4)}, v{vSR} offset:{32*ks}')
    for ks in range(8):
        w_k.append(f'v_mfma_f32_32x32x16_f16 {vr(DK, 16)}, {vr(AFr + 4*ks, 4)}, {vr(BFr + 4*ks, 4)}, {"0" if ks == 0 else vr(DK, 16)}')
    def two_way(f0, f1):
        L1 = p.newlabel('HF'); L2 = p.newlabel('HFX')
        p(f's_cmp_eq_u32 s77, 0\ns_cbranch_scc0 {L1}')
        p.cond_begin(); f0(); p(f's_branch {L2}'); p.cond_end()
        p.label(L1)
        p.cond_begin(); f1(); p.cond_end()
        p.label(L2)
    def xadr0():
        p(f'''s_sub_u32 s18, s{sT0}, 12
          s_add_u32 s19, s18, 512
          v_lshl_add_u32 v1, v0, 5, s18
          v_lshl_add_u32 v2, v0, 4, s19
          v_min_u32 v21, v1, v2
          v_lshrrev_b32 v1, 5, v0
          v_add_u32 v2, 31, v0
          v_mad_i32_i24 v22, v1, -4, v21
          v_lshrrev_b32 v2, 6, v2
          v_mad_i32_i24 v23, v1, -8, v21
          v_lshl_add_u32 v20, v2, 2, v21
          v_mad_i32_i24 v24, v1, -12, v21
          v_lshrrev_b32 v1, 1, v0
          v_mul_u32_u24 v1, {CST - 32}, v1
          v_add_u32 v25, v1, v{vXB}
          v_mov_b64 v[4:5], 0
          v_mov_b64 v[6:7], 0''')
    def xadr1():
        p(f'''s_add_u32 s18, s{sT0}, 1528
          s_add_u32 s19, s{sT0}, 2044
          v_min_u32 v1, 1, v0
          v_lshl_add_u32 v20, v0, 3, s18
          v_lshl_add_u32 v22, v0, 2, s19
          v_and_b32 v2, 1, v0
          v_lshl_add_u32 v21, v1, 2, v20
          v_lshl_add_u32 v24, v1, 2, v22
          v_lshl_add_u32 v23, v2, 2, v22''')
    def exp0():
        p('''ds_read2_b32 v[80:81], v20 offset0:0 offset1:1
          ds_read_b32 v82, v20 offset:8
          ds_read_b32 v83, v21 offset:12
          ds_read2_b32 v[84:85], v22 offset0:4 offset1:5
          ds_read_b32 v86, v22 offset:24
          ds_read_b32 v87, v23 offset:28
          ds_read2_b32 v[88:89], v24 offset0:8 offset1:9
          ds_read_b32 v90, v24 offset:40''')
        p('s_mov_b64 exec, 0xff\nds_write_b128 v25, v[4:7]\ns_mov_b64 exec, -1')
        for g in (3, 2, 1, 0):
            d = 104 + 4*g
            for j in range(4): p(f'v_cvt_pk_bf16_f32 v{d + j}, v{83 - g + 2*j}, v{84 - g + 2*j}')
            p(f'ds_write_b128 v{vXB}, {vr(d, 4)} offset:{32 + CST*g}')
    def exp1():
        p('''ds_read2_b32 v[82:83], v20 offset0:2 offset1:3
          ds_read_b32 v84, v20 offset:16
          ds_read2_b32 v[86:87], v22 offset0:1 offset1:2
          ds_read_b32 v88, v23 offset:4
          ds_read2_b32 v[90:91], v22 offset0:65 offset1:66
          ds_read_b32 v92, v23 offset:260
          ds_read2_b32 v[80:81], v21 offset0:0 offset1:1
          ds_read_b32 v89, v24''')
        a_, b_, c_, d_, e_ = 80, 81, 82, 83, 84
        seqB = {-3: a_, -2: b_, -1: c_, 0: c_, 1: c_, 2: c_, 3: d_, 4: d_, 5: d_, 6: e_, 7: e_}
        def seqC(j, j1, X, a): return {-3: a, -2: j, -1: j, 0: j, 1: j, 2: j, 3: j, 4: X, 5: j1, 6: j1, 7: j1}
        passes = [(seqB, 104, 1024), (seqC(86, 87, 88, 89), 108, 2048), (seqC(90, 91, 92, 90), 112, 3072)]
        cur = {}
        for g in range(4):
            for (sq, q, off) in passes:
                for j in range(4):
                    pr = (sq[2*j - g], sq[2*j + 1 - g])
                    if cur.get(q + j) != pr: p(f'v_cvt_pk_bf16_f32 v{q + j}, v{pr[0]}, v{pr[1]}'); cur[q + j] = pr
                p(f'ds_write_b128 v{vXB}, {vr(q, 4)} offset:{32 + off + CST*g}')
    def dump(r):
        for i in range(6): p(f'v_mul_f32 v{80 + i}, s27, v{r + i}')
        p(f'ds_write_b128 v{vDW}, v[80:83]\nds_write_b64 v{vDW}, v[84:85] offset:1024')
    w_k.append(lambda: two_way(lambda: (xadr0(), dump(DK + 6)), lambda: (xadr1(), dump(DK))))
    w_T = [f'ds_read_b128 v[80:83], v{vDR}', f'ds_read_b64 v[84:85], v{vDR} offset:1024']
    def t0():
        for i in range(6): p(f'v_fma_f32 v{80 + i}, v{DK + i}, s27, v{80 + i}')
        one_lane(lambda: p(f'v_add_f32 v80, v80, v{vPar + 7}'))
        p(f'ds_write_b128 v{vTY}, v[80:83]\nds_write_b64 v{vTX}, v[84:85]')
    def t1():
        for i in range(6): p(f'v_fma_f32 v{80 + i}, v{DK + 6 + i}, s27, v{80 + i}')
        p(f'ds_write_b64 v{vTX}, v[80:81]\nds_write_b32 v{vTY}, v82')
        p(f's_mov_b32 exec_hi, 0\nds_write2_b32 v{vTY}, v83, v84 offset0:32 offset1:64\nds_write_b32 v{vTY}, v85 offset:384\ns_mov_b64 exec, -1')
    def bar(s, h):
        tn(f's_w{s}')
        p.wait_vm(h); tn(f's_l{s}'); p('s_waitcnt lgkmcnt(0)\ns_barrier')
        tn(f's_b{s}')
    sKC, sXT = 21, 18
    w_mid = []
    A = w_mid.append
    A('v_lshrrev_b32 v1, 4, v0'); A('v_and_b32 v2, 15, v0'); A('v_bfe_u32 v3, v0, 2, 2'); A('v_and_b32 v8, 3, v0')
    A(f'v_mul_u32_u24 v3, {CST}, v3'); A('v_lshl_add_u32 v3, v8, 3, v3'); A('v_mad_i32_i24 v3, v1, -16, v3')
    A(f's_mul_i32 s{sKC}, s75, {CCH}\ns_add_u32 s{sKC}, s{sKC}, {KS}\ns_lshl_b32 s72, s77, 8\ns_add_u32 s72, s72, s{sKC}\ns_add_u32 s72, s72, 56')
    A(f'v_add_u32 v{vCA}, s72, v3')
    A(f'v_add_u32 v{vXB}, s{sKC}, v{vL16}')
    A('v_lshl_add_u32 v3, v2, 1, v1')
    A(f's_lshl_b32 s72, s77, 4\ns_sub_u32 s72, 30, s72\ns_lshl_b32 s28, s75, 9\ns_add_u32 s28, s28, {UP}')
    A(f'v_add_u32 v{vUB + 3}, s72, v3')
    def ub(rr):
        o = [f'v_subrev_u32 v{vUB + 3}, 4, v{vUB + 3}'] if rr else []
        return o + [f'v_and_b32 v8, 32, v{vUB + 3}', f'v_add_u32 v8, v8, v{vUB + 3}', f'v_lshl_add_u32 v{vUB + rr}, v8, 4, s28']
    w_mid += ub(0) + ub(1)
    w_gap = ub(2) + ub(3)
    A = w_gap.append
    A(f's_lshl_b32 s72, s74, 2\ns_add_u32 s72, s72, {MISC}'); A(f'v_mov_b32 v{vF}, s72'); A(f'v_xor_b32 v7, 4, v{vF}')
    A('v_lshrrev_b32 v1, 4, v0'); A('v_and_b32 v2, 15, v0')
    A('v_and_b32 v3, 1, v1'); A('v_lshlrev_b32 v3, 9, v3'); A('v_lshl_add_u32 v3, v2, 5, v3'); A('v_lshrrev_b32 v8, 1, v1')
    A(f'v_lshl_add_u32 v{vYS}, v8, 4, v3')
    if not cfg.gx:
        A('v_and_b32 v3, 3, v0'); A('v_xor_b32 v3, v3, v1'); A('v_lshlrev_b32 v3, 4, v3'); A('v_lshrrev_b32 v8, 2, v0'); A(f'v_lshl_add_u32 v{vXS}, v8, 10, v3')
    if cfg.ydma:
        A('v_lshrrev_b32 v3, 3, v0'); A(f'v_and_b32 v8, 0x7f, v{vWd}'); A(f'v_lshl_add_u32 v{vYL}, v3, 12, v8')
        A(f's_lshl_b32 s72, s77, 11\ns_add_u32 s72, s72, s{sKC}\ns_add_u32 s19, s72, 12288\ns_add_u32 s14, s72, 8192')
    else:
        A('v_lshrrev_b32 v3, 3, v0'); A('v_and_b32 v8, 7, v0'); A(f'v_lshlrev_b32 v8, 4, v8'); A(f'v_lshl_add_u32 v{vYL}, v3, 12, v8')
        A(f'v_and_b32 v8, 0x7f, v{vWd}'); A('v_lshl_add_u32 v8, v3, 7, v8')
        A(f's_lshl_b32 s72, s77, 11\ns_add_u32 s72, s72, s{sKC}\ns_add_u32 s19, s72, 12288\ns_add_u32 s72, s72, 8192')
        A(f'v_add_u32 v{vYW}, s72, v8')
    if not cfg.gx:
        A(f's_lshl_b32 s{sXT}, s{sRB2}, 16\ns_lshl_b32 s72, s77, 15\ns_add_u32 s{sXT}, s{sXT}, s72')
        A(f's_lshl_b32 s72, s{sCB2}, 7\ns_add_u32 s{sXT}, s{sXT}, s72\ns_lshl_b32 s72, s75, 6')
        A(f's_add_u32 s{sXT}, s{sXT}, s72\ns_add_u32 s20, s{sXT}, {16384 - 1024}\ns_mov_b32 s{XD + 2}, 0x200000')
    A(f's_lshl_b32 s12, s{sCB2}, 18\ns_lshl_b32 s13, s74, 16\ns_add_u32 s12, s12, s13')
    A(f's_lshl_b32 s13, s{sRB2}, 7\ns_add_u32 s12, s12, s13\ns_add_u32 s12, s12, {WS_YT}\ns_add_u32 s13, s12, {32768 - 1024*cfg.ydma}')
    if not cfg.ypois:
        fl = f'''s_lshr_b32 s{sFYo}, s2, 3
          s_lshl_b32 s{sFYo}, s{sFYo}, 1
          s_add_u32 s{sFYo}, s{sFYo}, s77
          s_lshl_b32 s{sFYo}, s{sFYo}, 1
          s_add_u32 s{sFYo}, s{sFYo}, s75
          s_lshl_b32 s{sFYo}, s{sFYo}, 3
          s_and_b32 s24, s2, 7
          s_add_u32 s{sFYo}, s{sFYo}, s24
          s_lshl_b32 s{sFYo}, s{sFYo}, {cfg.fsh}
          s_add_u32 s{sFYo}, s{sFYo}, {WS_FY}
          s_lshl_b32 s{sFYi}, s{sCB2}, 2
          s_add_u32 s{sFYi}, s{sFYi}, s74
          s_lshl_b32 s{sFYi}, s{sFYi}, 1
          s_lshr_b32 s24, s{sRB2}, 4
          s_add_u32 s{sFYi}, s{sFYi}, s24
          s_lshl_b32 s{sFYi}, s{sFYi}, {4 + cfg.fsh}
          s_add_u32 s{sFYi}, s{sFYi}, {WS_FY}'''.split('\n')
        if cfg.ncy >= 0:
            fl = f'''s_lshr_b32 s{sFYo}, s2, 3
          s_lshl_b32 s{sFYo}, s{sFYo}, 1
          s_add_u32 s{sFYo}, s{sFYo}, s77
          s_lshl_b32 s{sFYo}, s{sFYo}, {2 + cfg.ncy}
          s_add_u32 s{sFYo}, s{sFYo}, s75
          s_lshl_b32 s{sFYo}, s{sFYo}, 3
          s_and_b32 s24, s2, 7
          s_add_u32 s{sFYo}, s{sFYo}, s24
          s_lshl_b32 s{sFYo}, s{sFYo}, 2
          s_add_u32 s{sFYo}, s{sFYo}, {WS_FY}
          s_lshl_b32 s{sFYi}, s{sCB2}, 2
          s_add_u32 s{sFYi}, s{sFYi}, s74
          s_lshl_b32 s{sFYi}, s{sFYi}, 1
          s_lshr_b32 s24, s{sRB2}, 4
          s_add_u32 s{sFYi}, s{sFYi}, s24
          s_lshl_b32 s{sFYi}, s{sFYi}, {cfg.ncy}
          s_and_b32 s24, s{sRB2}, {(1 << cfg.ncy) - 1}
          s_add_u32 s{sFYi}, s{sFYi}, s24
          s_lshl_b32 s{sFYi}, s{sFYi}, 7
          s_add_u32 s{sFYi}, s{sFYi}, {WS_FY}'''.split('\n')
        for i in range(0, len(fl), 3): A('\n'.join(fl[i:i + 3]))
    w_adr = []
    A = w_adr.append
    A('v_lshrrev_b32 v3, 3, v0'); A('v_and_b32 v8, 7, v0')
    A('v_bfe_u32 v18, v0, 4, 1'); A('v_lshlrev_b32 v18, 2, v18'); A('v_xor_b32 v8, v8, v18'); A('v_lshlrev_b32 v8, 4, v8')
    A(f'v_lshl_add_u32 v{vWd}, v3, 10, v8')
    A('v_and_b32 v3, 31, v0'); A('v_lshrrev_b32 v8, 5, v0'); A('v_lshlrev_b32 v8, 4, v8'); A(f'v_lshl_add_u32 v{vUo}, v3, {4 + xs}, v8')
    A(rot_setup())
    A(f'''s_lshl_b32 s{sX4}, s74, 12
      s_mul_i32 s{sX3}, s74, 3072
      s_lshl_b32 s{sX1}, s74, 10
      s_mul_i32 s{sWs}, s75, {43*16384}
      s_lshl_b32 s72, s77, 13
      s_add_u32 s{sWs}, s{sWs}, s72
      s_lshl_b32 s72, s{sCB2}, 7
      s_add_u32 s{sWs}, s{sWs}, s72
      s_add_u32 s{sWe}, s{sWs}, {43*16384}
      s_lshl_b32 s72, s{sROT}, 14
      s_add_u32 s{sWc}, s{sWs}, s72''')
    wdh = {}
    def wd_dma(n):
        base, stride = piece_loc(n)
        setm0(('wd', n), f's_add_u32 m0, s{ {4096: sX4, 3072: sX3, 1024: sX1}[stride] }, {base}')
        wdh[n] = p(f'buffer_load_dwordx4 v{vWd}, {srd(WD)}, s{sWc} offen lds')
        if n < 42: p(f's_add_u32 s{sWc}, s{sWc}, 16384\ns_cmp_eq_u32 s{sWc}, s{sWe}\ns_cselect_b32 s{sWc}, s{sWs}, s{sWc}')
    k = len(w_adr)
    npre = 0
    nm = len(w_k) - 9
    blk = w_idxB + w_mid
    ipos = min(cfg.ipos, nm)
    assert cfg.apos <= ipos
    tail = w_k[nm:]
    nmix = min(cfg.mix, len(blk)); mixb = blk[len(blk) - nmix:]; blk = blk[:len(blk) - nmix]
    t2 = []
    for i in range(8):
        t2.append(tail[i]); q = -(-len(mixb) // (8 - i)); t2 += mixb[:q]; mixb = mixb[q:]
    Wl = w_k[:cfg.apos] + w_adr + w_k[cfg.apos:ipos] + blk + w_k[ipos:nm] + t2 + [tail[8], lambda: tn('s_dump'), ('P', C_D)]
    iadr = cfg.apos + k
    Wl += [('C', C_D), lambda: tn('s_cd')] + w_T + [lambda: (two_way(t0, t1), tn('s_t')), ('P', C_T), ('C', C_T), lambda: (tn('s_ct'), two_way(exp0, exp1), tn('s_exp')), ('P', C_E)]
    if cfg.nok: Wl = w_adr + [('P', C_E)]; iadr = 0
    cuts = [0, cfg.c0, cfg.c1, cfg.c2, cfg.c3, cfg.c4, cfg.c5, cfg.c6, cfg.c7, len(Wl)]
    if cfg.nok: cuts = [0, 0, 0, 0, 20, 40, 60, k, k, len(Wl)]
    assert cuts == sorted(cuts) and iadr <= cfg.c6 and cuts[-2] < len(Wl), (iadr, len(Wl))
    if cfg.verbose: print('len Wl', len(Wl), 'adr', k, 'w_k', len(w_k), 'idx', len(w_idx), len(w_idxB), 'set', len(w_set))
    if cfg.verbose: print('sync', [(i, x) for i, x in enumerate(Wl) if isinstance(x, tuple)])
    stg = lambda i: max(j for j in range(9) if cuts[j] <= i)
    if cfg.gk == 2:
        ia = max(i for i, x in enumerate(Wl) if isinstance(x, str) and x.startswith(f'ds_read_b128 {vr(AFr + 28, 4)}'))
        ib = min(i for i, x in enumerate(Wl) if isinstance(x, str) and x.startswith(f'ds_read_b128 {vr(BFr, 4)}'))
        if cfg.verbose: print('AFr last', ia, 'BFr first', ib, 'G done before B', gacc[1])
        assert stg(ia) <= cfg.gga and stg(ib) - 1 >= gacc[1], (ia, ib, gacc)
    ppos = {x[1]: i for i, x in enumerate(Wl) if isinstance(x, tuple) and x[0] == 'P'}
    cpos = {x[1]: i for i, x in enumerate(Wl) if isinstance(x, tuple) and x[0] == 'C'}
    def sync_item(x):
        kind, c = x
        reg, tgt = (vCk, 2) if c in (C_D, C_T) else (vM, 4)
        need = c not in cpos or stg(ppos[c]) == stg(cpos[c])
        if not need: return lambda: None
        if kind == 'P': return lambda: lds_add(reg, c, vOne)
        return lambda: lds_spin(reg, c, tgt, 1)
    Wl = [sync_item(x) if isinstance(x, tuple) else x for x in Wl]
    stage = {j - 1: Wl[cuts[j]:cuts[j + 1]] for j in range(9)}
    pro = w_idx + ([] if cfg.nok == 1 else w_set) + stage[-1]
    seg(pro[:cfg.i0], d0)
    tn('s_dma0')
    seg(pro[cfg.i0:cfg.d1]); seg(pro[cfg.d1:], d1)
    csh = [None]
    for sb in range(6):
        if sb == 1: mktag()
        if cfg.rho > 1 and sb == cfg.rho + 1: p.wait_vm(csh[0])
        bar(sb, slabh[sb])
        setprio((cfg.sprio >> sb) & 1)
        dm = dma_items(sb + 2)
        if sb == 0 and cfg.gk == 1:
            for ks in range(8): hb_ = p(f'ds_read_b128 {vr(BFr + 4*ks, 4)}, v{vSB} offset:{32*ks}')
            for _ in range(cfg.nbw):
                if stage[0]: emit(stage[0].pop(0))
            p.wait_ds(hb_)
        if sb == cfg.rho:
            p(f'ds_read_b128 {vr(vCSr, 4)}, v{vCSr}')
            def cst():
                p('s_mov_b64 exec, 63')
                csh[0] = p(f'buffer_store_dwordx4 {vr(vCSr, 4)}, v{vL16}, {srd(WS)}, s{sCS} offen sc1')
                p('s_mov_b64 exec, -1')
            dm.insert(2 if cfg.rho == 1 else cfg.csp, cst)
        if sb == max(3, cfg.rho + 1):
            p(f'v_mov_b32 v{vCSr}, s{sTAG}\nv_mov_b32 v{vCSr + 1}, s{sFA}')
            one_lane(lambda: p(f'buffer_store_dword v{vCSr}, v{vCSr + 1}, {srd(WS)}, 0 offen sc1'))
        if cfg.npf and cfg.pf0 <= sb < cfg.pf0 + cfg.npf:
            q = sb - cfg.pf0; nl = -(-86 // cfg.npf)
            def pfx(q=q, nl=nl):
                if q == 0: p(f's_lshr_b32 s12, s2, 3\ns_lshl_b32 s12, s12, 2\ns_add_u32 s12, s12, s74\ns_mul_i32 s12, s12, {86*128}\nv_lshlrev_b32 v252, 7, v0')
                else: p(f's_add_u32 s12, s12, {nl*128}')
                p(f's_bfm_b64 exec, {nl}, 0\nbuffer_load_dword v{253 + q % 3}, v252, {srd(WD)}, s12 offen\ns_mov_b64 exec, -1')
            dm.insert(cfg.pfi, pfx)
        if sb == 5: p(f'buffer_load_dwordx4 {vr(vPoll, 4)}, v{vL16}, {srd(WS)}, 0 offen offset:{WS_FA} sc1')
        seg(stage[sb], dm)
    bar(6, slabh[6])
    setprio((cfg.sprio >> 6) & 1)
    def fa_check():
        for j in range(4): p(f'v_xor_b32 v{vPoll + j}, s{sTAG}, v{vPoll + j}')
        p(f'v_or3_b32 v{vPoll}, v{vPoll}, v{vPoll + 1}, v{vPoll + 2}\nv_or_b32 v{vPoll}, v{vPoll}, v{vPoll + 3}\nv_cmp_ne_u32 vcc, 0, v{vPoll}\ns_cmp_eq_u64 vcc, 0')
    Lx = p.newlabel('FAX'); L = p.newlabel('FA')
    fa_check()
    p(f's_cbranch_scc1 {Lx}')
    p.cond_begin()
    p(f's_mov_b32 s79, {cfg.spin}')
    p.label(L)
    p(f'buffer_load_dwordx4 {vr(vPoll, 4)}, v{vL16}, {srd(WS)}, 0 offen offset:{WS_FA} sc1')
    fa_check()
    p(f's_cbranch_scc1 {Lx}')
    p(f's_sub_u32 s79, s79, 1\ns_cmp_lg_u32 s79, 0\ns_cbranch_scc1 {L}')
    p.cond_end()
    p.label(Lx)
    tn('s_fa')
    p(f'''s_mul_i32 s15, s{sCB}, 6144
      s_add_u32 s15, s15, s{sX1}
      s_add_u32 s15, s15, {WS_CSP}
      s_add_u32 s16, s{sX1}, {GR2}
      s_cmp_lt_u32 s74, 3
      s_cselect_b32 m0, s16, {UR2}
      s_add_u32 s16, s15, 4096''')
    p(f'buffer_load_dwordx4 v{vL16}, {srd(WS)}, s15 offen sc1 lds')
    p(f'''s_lshl_b32 s15, s{sRB}, 10
      s_add_u32 s15, s15, {WS_ST}
      s_cmp_lt_u32 s74, 2
      s_cselect_b32 s15, s16, s15
      s_min_u32 s16, s{sX1}, 2048
      s_add_u32 m0, s16, {UR2 + 1024}''')
    sth = p(f'buffer_load_dwordx4 v{vL16}, {srd(WS)}, s15 offen sc1 lds')
    uh = [None]
    def u_dma(k):
        if k == 0:
            p(f'''s_lshr_b32 s13, s2, {2 + xs}
              s_lshl_b32 s13, s13, 3
              s_and_b32 s14, s2, 7
              s_add_u32 s13, s13, s14
              s_lshl_b32 s13, s13, {12 + xs}
              s_bfe_u32 s14, s2, {0x10000*(xs - 1) + 3}
              s_lshl_b32 s14, s14, 5
              s_add_u32 s13, s13, s14
              s_lshl_b32 s14, s74, {10 + xs}
              s_add_u32 s13, s13, s14
              s_lshl_b32 s14, s74, 11
              s_add_u32 s13, s13, {WS_XNT}''')
        elif cfg.xa > 2: p(f's_add_u32 s13, s13, {512*cfg.xa - 1024}')
        setm0('u', f's_add_u32 m0, s14, {UP + 1024}')
        uh[0] = p(f'buffer_load_dwordx4 v{vUo}, {srd(WS)}, s13 offen offset:{1024*k} sc1 lds')
    m0[0] = None
    L = p.newlabel('EP')
    p(f's_or_b32 s15, s2, s74\ns_cmp_eq_u32 s15, 0\ns_cbranch_scc0 {L}')
    p.cond_begin()
    p(f'v_mov_b32 v194, s{sTAG}\nv_mov_b32 v195, {WS_E}')
    one_lane(lambda: p(f'buffer_store_dword v194, v195, {srd(WS)}, 0 offen sc1'))
    p.cond_end()
    p.label(L)
    zp = [f's_lshr_b32 s15, s{sX1}, 2\ns_add_u32 s15, s15, {UP}\nv_add_u32 v192, s15, v{vL16}', 'v_mov_b64 v[196:197], 0', 'v_mov_b64 v[198:199], 0',
          's_mov_b64 exec, 0xffff\nds_write_b128 v192, v[196:199]\ns_mov_b64 exec, -1']
    dq = [(lambda n=n: wd_dma(n)) for n in range(16)]
    dq[cfg.upos:cfg.upos] = [lambda: u_dma(0), lambda: u_dma(1)]
    assert cfg.na6 <= 6 + (2 if cfg.upos <= 6 else 0)
    seg(zp + stage[6], dq[:cfg.na6])
    bar(7, slabh[7])
    setprio((cfg.sprio >> 7) & 1)
    w7 = list(stage[7])
    w7.insert(min(cfg.cs_at, len(w7) - 1), lambda: (p.wait_vm(sth), lds_add(vM, C_S, vOne), tn('s_cs')))
    w7.insert(len(w7) - 1, lambda: p.wait_vm(uh[0]))
    cwsig = lambda: (p.wait_vm(wdh[15]), lds_add(vCk, C_W, vOne), tn('s_cw'))
    if cfg.cw_k < 0:
        assert -cfg.cw_k >= cfg.bspan
        w7.insert(min(-cfg.cw_k, len(w7)), cwsig)
    assert cfg.bspan <= len(w7) - 2
    dq7 = dq[cfg.na6:]; dqc = dq7[cfg.nb7:]; dq7 = dq7[:cfg.nb7]
    seg(w7[:cfg.bspan], dq7)
    tn('s_bi')
    seg(w7[cfg.bspan:])
    setprio(cfg.cprio)
    lds_spin(vM, C_E, 4, 1)
    tn('s_ce')
    CAf, CBf, CD = [32, 64], [96, 128], 192
    def cfrags(rr):
        o = []; st_ = rr & 1
        for k in range(8):
            o.append(f'ds_read_b128 {vr(CBf[st_] + 4*k, 4)}, v{vUB + rr} offset:{1024*k}')
            for s in range(2):
                o.append(f'ds_read_b64_tr_b16 {vr(CAf[st_] + 4*k + 2*s, 2)}, v{vCA} offset:{512*k + 64*rr + 8*(1 - s)}')
        return o
    cev = {}
    def addc(k, x): cev.setdefault(min(k, 144), []).append(x)
    for i, x in enumerate(dqc): addc(cfg.bc0 + cfg.bcs*i, x)
    if cfg.cw_k >= 0:
        assert cfg.cw_k > cfg.bc0 + cfg.bcs*len(dqc)
        addc(cfg.cw_k, cwsig)
    addc(3*36 + 28, lambda: one_lane(lambda: p(f'ds_write_b32 v{vF}, v{vOne} offset:{F1}')))
    for x in cfrags(0): p(x)
    kk = 0
    for rr in range(4):
        nxt = cfrags(rr + 1) if rr < 3 else []
        st_ = rr & 1
        pairs = sorted(((a, b) for a in range(8) for b in range(8 - a)), key=lambda ab: (max(ab), ab[0]))
        seen = set()
        for k, (a, b) in enumerate(pairs):
            c = a + b; d = CD + 4*c
            cc = '0' if (rr == 0 and c not in seen) else vr(d, 4)
            seen.add(c)
            p(f'v_mfma_f32_16x16x32_bf16 {vr(d, 4)}, {vr(CAf[st_] + 4*a, 4)}, {vr(CBf[st_] + 4*b, 4)}, {cc}')
            if nxt and k >= 2: p(nxt.pop(0))
            elif w_gap and kk >= cfg.gap0: p(w_gap.pop(0))
            for x in cev.get(kk, []): emit(x)
            kk += 1
        assert not nxt
    assert not w_gap
    tn('s_conv')
    if cfg.yprio >= 0: setprio(cfg.yprio)
    lds_spin(7, F1, 1, 6)
    xdma = lambda: p(f's_mov_b32 m0, s19\nbuffer_load_dwordx4 v{vXS}, {srd(XD)}, s{sXT} offen lds\nbuffer_load_dwordx4 v{vXS}, {srd(XD)}, s20 offen offset:1024 lds')
    if cfg.ydma and not cfg.gx: xdma()
    Lb = p.newlabel('XB'); Le = p.newlabel('XE')
    p(f's_cmp_eq_u32 s77, 0\ns_cbranch_scc0 {Lb}')
    for hf in range(2):
        if hf == 1: p.label(Lb)
        p.cond_begin()
        snd, kp = (4, 0) if hf == 0 else (0, 4)
        for k in range(4): p(f'ds_write_b128 v{vXB}, {vr(CD + 4*(snd + k), 4)} offset:{4096*hf + 1024*k}')
        one_lane(lambda: p(f'ds_write_b32 v{vF}, v{vOne} offset:{F2}'))
        lds_spin(7, F2, 1, 6)
        tn('s_f2')
        for k in range(4): p(f'ds_read_b128 {vr(32 + 4*k, 4)}, v{vXB} offset:{4096*(1 - hf) + 1024*k}')
        for k in range(4):
            for j in range(4): p(f'v_add_f32 v{32 + 4*k + j}, v{32 + 4*k + j}, v{CD + 4*(kp + k) + j}')
            for j in range(2): p(f'v_cvt_pk_bf16_f32 v{48 + 2*k + j}, v{32 + 4*k + 2*j}, v{32 + 4*k + 2*j + 1}')
            if cfg.ypois:
                for j in range(2): p(f'v_min_u32 v{48 + 2*k + j}, -2, v{48 + 2*k + j}')
            if k & 1:
                r = 48 + 2*(k - 1)
                p(f'v_permlane16_swap_b32 v{r}, v{r + 2}\nv_permlane16_swap_b32 v{r + 1}, v{r + 3}')
                p(f'buffer_store_dwordx4 {vr(r, 4)}, v{vYS}, {srd(WS)}, s{sYB} offen offset:{512*(kp + k - 1)} sc1')
        if hf == 0: p(f's_branch {Le}')
        p.cond_end()
    p.label(Le)
    tn('s_yst')
    for x in cev.get(144, []): emit(x)
    if not cfg.ydma and not cfg.gx: xdma()
    assert not (cfg.ydma and cfg.ypois)
    if cfg.ypois:
        p('s_waitcnt vmcnt(0)')
        tn('s_yack')
        lds_add(vCk, C_X, vOne)
        L = p.newlabel('YP'); Lx = p.newlabel('YPX')
        p(f's_mov_b32 s79, {cfg.spin}')
        p.label(L)
        for k in range(2): p(f'buffer_load_dwordx4 {vr(32 + 4*k, 4)}, v{vYL}, {srd(WS)}, s{12 + k} offen sc1')
        p('''v_max3_u32 v1, v32, v33, v34
          v_max3_u32 v1, v1, v35, v36
          v_max3_u32 v1, v1, v37, v38
          v_max_u32 v1, v1, v39
          v_cmp_eq_u32 vcc, -1, v1
          s_cmp_eq_u64 vcc, 0''')
        p(f's_cbranch_scc1 {Lx}')
        p(f's_sub_u32 s79, s79, 1\ns_cmp_lg_u32 s79, 0\ns_cbranch_scc1 {L}')
        p.label(Lx)
        tn('s_fy')
    else:
        if cfg.ncy >= 0: p(f'v_mov_b32 v1, s{sTAG}\nv_lshlrev_b32 v2, 7, v0')
        p('s_waitcnt vmcnt(0)')
        tn('s_yack')
        if cfg.ncy >= 0: p(f's_mov_b64 exec, {(1 << (1 << cfg.ncy)) - 1}\nbuffer_store_dword v1, v2, {srd(WS)}, s{sFYo} offen sc1\ns_mov_b64 exec, -1')
        else: flag_store(sFYo)
        if not cfg.gx: lds_add(vCk, C_X, vOne)
        if cfg.spoll & 2: spoll(36, 16, sFYi)
        else: vpoll(16, sFYi)
        tn('s_fy')
        if cfg.ydma:
            p('s_mov_b32 m0, s14')
            for k in range(2): p(f'buffer_load_dwordx4 v{vYL}, {srd(WS)}, s{12 + k} offen offset:{1024*k} sc1 lds')
        else:
            for k in range(2): p(f'buffer_load_dwordx4 {vr(32 + 4*k, 4)}, v{vYL}, {srd(WS)}, s{12 + k} offen sc1')
        p('s_waitcnt vmcnt(0)')
        tn('s_yl')
    if not cfg.ydma:
        for k in range(2): p(f'ds_write_b128 v{vYW}, {vr(32 + 4*k, 4)} offset:{1024*k}')
    lds_add(vCk, C_Y, vOne)
    p('s_waitcnt lgkmcnt(0)')
    tn('s_yw')
    p('s_barrier')
    ts(8)
    finish()
    p.label('L_END')
    p('s_endpgm')
    return p.text()

HEADER = open('cdna_kernels/' + KNAME + '.s.ref').read().split('; Override launch')[0]

def build(cfg):
    k = dict(name=KNAME + '_kernel', grid=(256, 1, 1), block=(512, 1, 1), lds=LDS_SIZE, body=gen(cfg), vgpr=256, sgpr=102, accum=256)
    return build_file([k], header_comment=HEADER)

if __name__ == '__main__':
    cfg = Cfg()
    out = sys.argv[1]
    for a in sys.argv[2:]:
        k, v = a.split('='); setattr(cfg, k, type(getattr(Cfg, k))(int(v, 0)))
    open(out, 'w').write(build(cfg))
```

```python
import sys, copy
from asmlib import build_file, KNAME
from asm2 import Prog

WS_E = 0; WS_FA = 1024; WS_ST = 4096; WS_FH = 0xA00000; WS_FY = 0xA40000; WS_CSP = 32768; WS_FA2 = 0xA80000
WS_XNT = 0x40000; WS_YT = 0x240000; WS_H = 0x440000; WS_DBG = 0x1000000
WS_SIZE = 0x2000000
BIG = 0x40000000
KS = 0; XR = 34816; GR = 83968; UR = 120864; TT = 157760; TCH = 2704; MISC = 163168; LDS_SIZE = 163840
CCH = 17408; CST = 4160
GR2 = GR + 24576; UR2 = UR + 24576; UP = GR2 + 3072; MB = UR2 + 3072; LNX = MISC + 128
C_W, C_R, C_W3, C_Y, C_F, C_D, C_L, C_S, C_G, C_T, C_E, F1, F2, C_X, C_W4 = 0, 8, 16, 24, 32, 40, 48, 52, 56, 72, 64, 80, 96, 112, 120
CSL = LNX
sW = 3
XD, WG, WU, WD, OUT, WS = 36, 40, 44, 48, 52, 56
sTAG, sRB, sCB, sTB, sRB2, sCB2, sROT = 60, 62, 63, 64, 65, 100, 101
def srd(b): return f's[{b}:{b + 3}]'
def vr(a, n): return f'v[{a}:{a + n - 1}]'
LOG2E = 0x3FB8AA3B; LOG2E_LO = 0x32A57060; LN2 = 0x3F317218; INV2PI = 0x3E22F983

class Cfg:
    ts = False
    hwin = 10
    adist = 2
    parfirst = 1
    r2c = 88; r2j = 176; r2x = 22
    xa = 8
    gfa = 0; gfb = 99; gf = 1; gf0 = 2
    d1 = 200
    c0 = 30; c1 = 60; c2 = 90; c3 = 120; c4 = 150; c5 = 180; c6 = 210; c7 = 240
    ipre = 0; ipos = 150; npf = 0; pf0 = 1; pfi = 5
    apos = 150
    sprio = 0xff
    gprio = 7
    gp2 = 0; gp3 = 2
    cprio = 0
    cs_at = 0
    bspan = 40
    cw_k = 0
    pearly = 0; hl = 0; hs = 0; na6 = 2; upos = 0
    i0 = 50
    cfirst = 2
    spoll = 3
    fsh = 2
    ystep = 37
    xstep = 10
    ypois = 0
    wbl2 = 0
    spin = 1 << 16
    tset = 0
    padph = 0; padw = 0; padcyc = 0; rt8 = 0; rt = 0
    nch = -1; ncy = -1
    tch = 0; tpos = 0
    rgrp = 0; omod = 0
    gcs = 0; fab = 3; fpos = 0; nca = -1; fas = 4352; spos = 2; sskip = 2; mf16 = 0; kw = 0; rho = 1; csp = 1; ggs = 10; ggr = 26; gga = 3; gk = 0; gk1 = 37; nbw = 6; gx = 0; yprio = -1
    dpre = 16; dper = 1; dst = 0; dm = 1; ydma = 1
    nb7 = 99; bc0 = 0; bcs = 2; mix = 99; gap0 = 26; cpf = 0; g2x = 0; g2o = 0; hat = 0; verbose = 0; nok = 0; dmaf = 0; nost = 0; wsoff = 0

TSETS = [
  (['g_lns', 'g_b0', 'g_b4', 'g_b8', 'g_hst', 'g_fh'], ['s_b0', 's_b4', 's_b7', 's_ce', 's_conv', 's_fy']),
  (['g_karg', 'g_ln', 'g_lnw', 'g_lnx', 'g_lns', 'g_b0'], ['s_karg', 's_dma0', 's_idx', 's_par', 's_w0', 's_l0']),
  (['g_b0', 'g_b1', 'g_b2', 'g_b3', 'g_b4', 'g_b5'], ['s_w1', 's_l1', 's_w2', 's_l2', 's_w3', 's_l3']),
  (['g_b8', 'g_hst', 'g_ack', 'g_cw', 'g_d', 'g_fh'], ['s_b7', 's_cs', 's_bi', 's_ce', 's_cw', 's_conv']),
  (['g_b4', 'g_b5', 'g_b6', 'g_b7', 'g_b8', 'g_h0'], ['s_w4', 's_w5', 's_w6', 's_fa', 's_w7', 's_l7']),
  (['g_fh', 'g_h0', 'g_n16', 'g_n27', 'g_y', 'g_g2'], ['s_conv', 's_yst', 's_yack', 's_fy', 's_yl', 's_yw']),
  (['g_b8', 'g_corr', 'g_hst', 'g_cw', 'g_pre', 'g_ack'], ['s_w4', 's_l4', 's_w5', 's_l5', 's_w6', 's_l6']),
  (['g_b8', 'g_hst', 'g_c', 'g_ack', 'g_cw', 'g_d'], ['s_dump', 's_cd', 's_t', 's_ct', 's_exp', 's_ce']),
  ([], []),
  (['g_fh', 'g_h0', 'g_s5', 'g_s10', 'g_s20', 'g_s30'], ['s_conv', 's_f2', 's_yst', 's_yack', 's_fy', 's_yl']),
]
def gen(cfg):
    p = Prog()
    def ts(i, real=False):
        if cfg.ts: p(f'{"s_memrealtime" if (real or (cfg.padph and not cfg.padcyc) or (cfg.rt and i not in (1,))) else "s_memtime"} s[{80 + 2 * i}:{81 + 2 * i}]')
    def tn(name):
        for l in TSETS[cfg.tset]:
            if name in l: ts(2 + l.index(name))
            if cfg.ts and name + '#' in l: i = 2 + l.index(name + '#'); p(f's_memtime s[{80 + 2 * i}:{81 + 2 * i}]')
    def one_lane(f):
        p('s_mov_b64 exec, 1'); r = f(); p('s_mov_b64 exec, -1'); return r
    def lds_spin(addr_v, off, target, tmpv):
        L = p.newlabel('SPIN'); Lx = p.newlabel('SPINX')
        p(f's_mov_b32 s79, {cfg.spin * 8}')
        p.label(L)
        p(f'ds_read_b32 v{tmpv}, v{addr_v} offset:{off}')
        p(f'v_readfirstlane_b32 s78, v{tmpv}')
        p(f's_cmp_ge_u32 s78, {target}')
        p(f's_cbranch_scc1 {Lx}')
        p('s_sub_u32 s79, s79, 1')
        p('s_cmp_lg_u32 s79, 0')
        p(f's_cbranch_scc1 {L}')
        p.label(Lx)
    def lds_pre(addr_v, off, tmpv): p(f'ds_read_b32 v{tmpv}, v{addr_v} offset:{off}')
    def lds_post(addr_v, off, target, tmpv):
        Lx = p.newlabel('POK')
        p(f'v_readfirstlane_b32 s78, v{tmpv}\ns_cmp_ge_u32 s78, {target}\ns_cbranch_scc1 {Lx}')
        p.cond_begin(); lds_spin(addr_v, off, target, tmpv); p.cond_end()
        p.label(Lx)
    def lds_add(addr_v, off, onev): one_lane(lambda: p(f'ds_add_u32 v{addr_v}, v{onev} offset:{off}'))
    def emit(x):
        if callable(x): x()
        else: p(x)

    p('s_cmp_ge_u32 s2, 256\ns_cbranch_scc1 L_END')
    p('s_load_dwordx16 s[4:19], s[0:1], 0\ns_load_dwordx16 s[20:35], s[0:1], 64')
    ts(0, True); ts(1)
    p('v_lshrrev_b32 v1, 6, v0')
    p('v_lshlrev_b32 v2, 4, v0')
    p(f'v_readfirstlane_b32 s{sW}, v1')
    p(f'v_cmp_gt_u32 vcc, {(LNX - TT) // 16}, v0')
    p(f'v_add_u32 v2, {TT}, v2')
    p('v_and_b32 v0, 63, v0')
    p('v_mov_b64 v[4:5], 0\nv_mov_b64 v[6:7], 0')
    p('s_mov_b64 exec, vcc')
    p('ds_write_b128 v2, v[4:7]')
    p('s_mov_b64 exec, -1')
    p(f'''s_and_b32 s66, s2, 7
      s_lshr_b32 s67, s2, 3
      s_and_b32 s68, s66, 3
      s_lshr_b32 s69, s66, 2
      s_and_b32 s70, s67, 3
      s_lshl_b32 s71, s68, 2
      s_add_u32 s{sRB}, s71, s70
      s_lshl_b32 s{sRB2}, s68, 3
      s_lshl_b32 s72, s69, 2
      s_add_u32 s{sRB2}, s{sRB2}, s72
      s_add_u32 s{sRB2}, s{sRB2}, s70
      s_lshr_b32 s{sCB2}, s67, 2
      s_mul_i32 s{sCB}, s69, 7
      s_add_u32 s{sCB}, s{sCB}, s{sCB2}
      s_and_b32 s70, s67, 1
      s_add_u32 s71, s71, s70
      s_lshl_b32 s69, s69, 1
      s_add_u32 s71, s71, s69
      s_bfe_u32 s70, s67, 0x10001
      s_add_u32 s70, s70, 14
      s_cmp_lt_u32 s67, 28
      s_cselect_b32 s{sRB}, s{sRB}, s71
      s_cselect_b32 s{sCB}, s{sCB}, s70
      s_lshl_b32 s{sTB}, s{sRB}, 4
      s_add_u32 s{sTB}, s{sTB}, s{sCB}''')
    p(f's_cmp_ge_u32 s{sW}, 4')
    p('s_cbranch_scc1 L_S')
    st0 = (copy.deepcopy(p.vmq), copy.deepcopy(p.dsq))

    def srds(role):
        if cfg.wsoff: p(f's_add_u32 s34, s34, {cfg.wsoff}\ns_addc_u32 s35, s35, 0')
        p(f's_load_dword s{sTAG}, s[34:35], {WS_E}')
        if role == 'S':
            p(f's_cmp_eq_u32 s{sCB}, 15')
            p(f'''s_mov_b32 s{XD}, s4\ns_mov_b32 s{XD+1}, s5\ns_cselect_b32 s{XD+2}, 0, 0x200000\ns_mov_b32 s{XD+3}, 0x20000
              s_mov_b32 s{WG}, s24\ns_mov_b32 s{WG+1}, s25\ns_cselect_b32 s{WG+2}, 0, {512*2752}\ns_mov_b32 s{WG+3}, 0x20000
              s_mov_b32 s{WU}, s26\ns_mov_b32 s{WU+1}, s27\ns_mov_b32 s{WU+2}, s{WG+2}\ns_mov_b32 s{WU+3}, 0x20000''')
    def srds2(role):
        p(f's_mov_b32 s{WS}, s34\ns_mov_b32 s{WS+1}, s35\ns_mov_b32 s{WS+2}, {WS_SIZE}\ns_mov_b32 s{WS+3}, 0x20000')
        p(f's_mov_b32 s{WD}, s28\ns_mov_b32 s{WD+1}, s29\ns_mov_b32 s{WD+2}, {1376*1024}\ns_mov_b32 s{WD+3}, 0x20000')
    def mktag():
        p('s_waitcnt lgkmcnt(0)')
        p(f's_mul_i32 s{sTAG}, s{sTAG}, 0x9E3779B1\ns_add_u32 s{sTAG}, s{sTAG}, 0x7F4A7C15\ns_mov_b32 s{sTAG + 1}, s{sTAG}')
    def rot_setup():
        if cfg.rgrp:
            return f'''s_and_b32 s{sROT}, s{sCB2}, {cfg.rgrp - 1}
          s_mul_i32 s{sROT}, s{sROT}, {43*16 // cfg.rgrp}
          s_bfe_u32 s72, s2, 0x20003
          s_mul_i32 s72, s72, {cfg.r2j}
          s_add_u32 s{sROT}, s{sROT}, s72
          s_and_b32 s72, s2, 7
          s_mul_i32 s72, s72, {cfg.r2x}
          s_add_u32 s{sROT}, s{sROT}, s72
          s_lshr_b32 s{sROT}, s{sROT}, 4
          s_cmp_ge_u32 s{sROT}, 43
          s_cselect_b32 s72, 43, 0
          s_sub_u32 s{sROT}, s{sROT}, s72'''
        return f'''s_mul_i32 s{sROT}, s{sCB2}, {cfg.r2c}
          s_bfe_u32 s72, s2, 0x20003
          s_mul_i32 s72, s72, {cfg.r2j}
          s_add_u32 s{sROT}, s{sROT}, s72
          s_and_b32 s72, s2, 7
          s_mul_i32 s72, s72, {cfg.r2x}
          s_add_u32 s{sROT}, s{sROT}, s72
          s_lshr_b32 s{sROT}, s{sROT}, 4
          s_cmp_ge_u32 s{sROT}, 43
          s_cselect_b32 s72, 43, 0
          s_sub_u32 s{sROT}, s{sROT}, s72'''
    assert (7*cfg.r2c + 3*cfg.r2j + 7*cfg.r2x) // 16 < 86
    def spoll(base, n, soff, issued=False):
        L = p.newlabel('SP'); Lr = p.newlabel('SPR'); Lx = p.newlabel('SPX'); Li = p.newlabel('SPI')
        p(f's_mov_b32 s79, {cfg.spin}')
        if issued: p(f's_branch {Li}')
        p.label(L)
        p(f's_load_dwordx{n} s[{base}:{base + n - 1}], s[34:35], s{soff} glc')
        p.label(Li)
        p('s_waitcnt lgkmcnt(0)')
        for i in range(0, n, 2):
            p(f's_cmp_eq_u64 s[{base + i}:{base + i + 1}], s[{sTAG}:{sTAG + 1}]')
            p(f's_cbranch_scc0 {Lr}' if i < n - 2 else f's_cbranch_scc1 {Lx}')
        p.label(Lr)
        p(f's_sub_u32 s79, s79, 1\ns_cmp_lg_u32 s79, 0\ns_cbranch_scc1 {L}')
        p.label(Lx)
    def vpoll(n, soff):
        L = p.newlabel('VP'); Lx = p.newlabel('VPX')
        p(f'v_and_b32 v1, {n - 1}, v0\nv_lshlrev_b32 v1, {cfg.fsh}, v1\ns_mov_b32 s79, {cfg.spin}')
        p.label(L)
        p(f'buffer_load_dword v2, v1, {srd(WS)}, s{soff} offen sc1')
        p(f'v_cmp_ne_u32 vcc, s{sTAG}, v2\ns_cmp_eq_u64 vcc, 0')
        p(f's_cbranch_scc1 {Lx}')
        p(f's_sub_u32 s79, s79, 1\ns_cmp_lg_u32 s79, 0\ns_cbranch_scc1 {L}')
        p.label(Lx)
    def flag_store(soff):
        p(f'v_mov_b32 v1, s{sTAG}\nv_mov_b32 v2, 0')
        one_lane(lambda: p(f'buffer_store_dword v1, v2, {srd(WS)}, s{soff} offen sc1'))
    def finish():
        if cfg.ts:
            p('s_waitcnt vmcnt(0)')
            ts(9)
            if cfg.rt8: ts(8, True)
            if cfg.rt: p('s_memtime s[66:67]\ns_waitcnt lgkmcnt(0)\ns_sub_u32 s67, s66, s82')
            if cfg.rt and cfg.tset == 8: p('s_sub_u32 s86, s86, s82\ns_sub_u32 s90, s90, s82\ns_sub_u32 s94, s94, s82')
            if cfg.rt: p('s_mov_b32 s82, s67')
            p('s_waitcnt lgkmcnt(0)')
            if cfg.padph:
                L = p.newlabel('PAD'); Lx = p.newlabel('PADX')
                p(f's_cmp_eq_u32 s{sW}, {cfg.padw}\ns_cbranch_scc0 {Lx}')
                if cfg.padcyc: p(f's_sub_u32 s66, s{80 + 2*cfg.padph}, s82\ns_lshr_b32 s66, s66, 2')
                else: p(f's_sub_u32 s66, s{80 + 2*cfg.padph}, s80\ns_lshl_b32 s66, s66, 2')
                p(f's_min_u32 s66, s66, 20000\ns_add_u32 s66, s66, 3000')
                p.label(L)
                p(f's_memrealtime s[68:69]\ns_waitcnt lgkmcnt(0)\ns_sub_u32 s68, s68, s80\ns_cmp_lt_u32 s68, s66\ns_cbranch_scc1 {L}')
                p.label(Lx)
                p('s_endpgm')
                return
            for i in range(10): p(f'v_writelane_b32 v1, s{80 + 2*i}, {i}')
            p(f's_lshl_b32 s66, s2, 3\ns_add_u32 s66, s66, s{sW}\ns_lshl_b32 s66, s66, 6\ns_add_u32 s66, s66, {WS_DBG}')
            p('v_lshlrev_b32 v2, 2, v0')
            p('s_mov_b64 exec, 0x3ff')
            p(f'buffer_store_dword v1, v2, {srd(WS)}, s66 offen')
        p('s_endpgm')
    def piece_loc(n):
        if n >= 27: n -= 27
        groups = [(0, 4, XR + 32768, 4096), (4, 1, UR2 + 4096, 1024), (5, 1, UR2 + 8192, 1024), (6, 4, XR, 4096), (10, 3, GR, 3072),
                  (13, 3, UR, 3072), (16, 4, XR + 16384, 4096), (20, 3, GR + 12288, 3072), (23, 3, UR + 12288, 3072), (26, 1, UR2, 1024)]
        for (n0, cnt, base, stride) in groups:
            if n0 <= n < n0 + cnt: return base + 1024*(n - n0), stride

    vA4, vA3, vA1, vYA, vOut = 8, 10, 12, 14, 15
    vXa, vWg, vWu, vW1, vCS1, vCS2, vH01, vH2, vHl, vCk, vM, vWd, vMB = 16, 20, 21, 22, 23, 24, 25, 26, 27, 28, 29, 30, 31
    FR = [120, 140]
    ACC = 160
    XL, XC, MU, CSA, ONE = 32, 40, 56, 68, 116
    vSt, vXn, vLw, vSo = 60, 61, 62, 63
    LR, LD, PK = 68, 72, 76
    sHc, sHs, sHe, sFo, sFi, sXn, sSt = 6, 7, 8, 9, 10, 12, 14
    sX4, sX3, sX1, sWc, sWs, sWe, sW26 = 36, 37, 38, 39, 40, 41, 42
    xs = {2: 1, 4: 2, 8: 3}[cfg.xa]
    p(f'''v_lshrrev_b32 v6, 4, v0
      v_and_b32 v7, 15, v0
      v_lshlrev_b32 v1, 4, v7
      v_lshl_add_u32 v1, v6, 11, v1
      s_lshl_b32 s66, s{sTB}, 13
      s_lshl_b32 s67, s{sW}, 8
      s_add_u32 s66, s66, s67
      v_add_u32 v64, s66, v1
      v_lshlrev_b32 v{vHl}, 4, v0''')
    p(f's_and_b32 s74, s{sW}, 1\ns_lshr_b32 s75, s{sW}, 1')
    p(f'''v_and_b32 v1, 31, v0
      v_lshrrev_b32 v2, 5, v0
      v_bfe_u32 v3, v0, 1, 3
      v_xor_b32 v3, v3, v2
      s_lshl_b32 s66, s74, 13
      s_add_u32 s66, s66, {XR}
      v_lshl_add_u32 v4, v1, 7, s66''')
    for ks in range(4):
        p(f'v_xor_b32 v5, {2*ks}, v3\nv_lshl_add_u32 v{vXa + ks}, v5, 4, v4')
    p(f'''v_bfe_u32 v3, v0, 2, 2
      v_lshl_add_u32 v3, v2, 3, v3
      v_mul_u32_u24 v3, 192, v3
      v_and_b32 v4, 3, v0
      v_lshl_add_u32 v3, v4, 3, v3
      s_mul_i32 s66, s75, 96
      v_add_u32 v3, s66, v3
      v_bfe_u32 v4, v0, 4, 1
      v_lshl_add_u32 v5, v4, 5, v3
      v_add_u32 v{vWg}, {GR}, v5
      v_add_u32 v{vWu}, {UR}, v5
      v_mul_u32_u24 v4, {UR - GR}, v4
      v_add_u32 v3, {GR + 64}, v3
      v_add_u32 v{vW1}, v3, v4''')
    gP, gLAM, gQ, gT, gBX, gBG = 160, 164, 166, 176, 206, 207
    ghq = lambda j: 180 + j
    gA, gO, gz = 208, 200, 204
    if cfg.gk == 2:
        gP, gLAM, gQ, gT, gBX, gA, gO, gz = 32, 38, 40, 50, 52, 35, 86, 90
        ghq = lambda j: 68 + j
    if cfg.gk:
        p(f'''s_lshr_b32 s66, s2, 3
          s_lshl_b32 s66, s66, 1
          s_add_u32 s66, s66, s75
          s_lshl_b32 s66, s66, 3
          s_and_b32 s67, s2, 7
          s_add_u32 s66, s66, s67
          s_lshl_b32 s67, s66, 8
          s_lshl_b32 s68, s74, 7
          s_add_u32 s67, s67, s68
          v_lshl_add_u32 v208, v0, 1, s67
          s_lshl_b32 s66, s66, 1
          v_mov_b32 v209, s66''')
    p('s_waitcnt lgkmcnt(0)')
    tn('g_karg')
    p(f'''global_load_dwordx4 {vr(XL, 4)}, v64, s[4:5]
      global_load_dwordx4 {vr(XL + 4, 4)}, v64, s[4:5] offset:1024''')
    gw = []
    if cfg.gk:
        A = lambda x: gw.append(x.replace('v208', f'v{gA}').replace('v209', f'v{gA + 1}').replace('v210', f'v{gA + 2}'))
        if cfg.gk == 1:
            p(f'global_load_ushort v{gP + 2}, v209, s[18:19]\nglobal_load_ushort v{gP}, v208, s[6:7]\nglobal_load_ushort v{gP + 1}, v208, s[8:9]')
            for i in (2, 0, 1): A(f'v_lshlrev_b32 v{gP + i}, 16, v{gP + i}')
        else:
            p('global_load_ushort v66, v209, s[18:19]')
            p('global_load_short_d16 v64, v208, s[6:7]')
            p.auto = False
            p('global_load_short_d16_hi v64, v208, s[8:9]')
            p.auto = True
            A(f'v_lshlrev_b32 v{gP + 2}, 16, v66'); A(f'v_lshlrev_b32 v{gP}, 16, v64'); A(f'v_and_b32 v{gP + 1}, 0xffff0000, v64')
        ld = gP + 2
        A(f's_mov_b32 s69, {LOG2E}\nv_mul_f32 v208, s69, v{ld}'); A(f'v_fma_f32 v209, v{ld}, s69, -v208')
        A(f'v_fmac_f32 v209, {LOG2E_LO}, v{ld}'); A('v_exp_f32 v208, v208'); A(f'v_mul_f32 v209, {LN2}, v209'); A('v_fmac_f32 v208, v208, v209')
        A('v_cvt_pk_bf16_f32 v208, v208, v208'); A('v_and_b32 v208, 0xffff0000, v208')
        for i in range(2): A(f'v_mul_f32 v{gP + i}, v{gP + i}, v208')
        A(f'v_mul_f32 v{gLAM}, s69, v{gP}'); A(f'v_mul_f32 v{gLAM + 1}, {INV2PI}, v{gP + 1}')
        A(f'v_mul_f32 v208, 0x41000000, v{gLAM}'); A(f'v_mul_f32 v209, 0x41000000, v{gLAM + 1}'); A('v_exp_f32 v208, v208'); A('v_fract_f32 v209, v209')
        if cfg.gk == 1: A(f's_lshl_b32 s69, s{sW}, 12\ns_add_u32 s69, s69, {XR + 32768}\nv_lshl_add_u32 v{gBX}, v0, 2, s69')
        else: A(f's_mul_i32 s69, s{sW}, 8704\ns_add_u32 s69, s69, {KS}\nv_lshl_add_u32 v{gBX}, v0, 2, s69')
        A('v_cos_f32 v210, v209'); A(f'v_sin_f32 v{gQ + 1}, v209')
        if cfg.gk == 1: A(f's_mul_i32 s69, s{sW}, 3072\ns_add_u32 s69, s69, {GR2}\nv_lshl_add_u32 v{gBG}, v0, 2, s69')
        A(f'v_mul_f32 v{gQ}, v208, v210'); A(f'v_mul_f32 v{gQ + 1}, v208, v{gQ + 1}')
        def gput(row, r):
            if row < 15 or cfg.gk == 2: A(f'ds_write_b32 v{gBX}, v{r} offset:{272*row}')
            elif row < 25: A(f'ds_write_b32 v{gBG}, v{r} offset:{240 + 272*(row - 15)}')
            else: A(f'ds_write_b32 v{gBG}, v{r} offset:{UR2 - GR2 + 112 + 272*(row - 25)}')
        A('v_mov_b32 v210, 0x3c00')
        for k in range(4):
            x = gQ + 2*k
            A(f'v_pk_mul_f32 {vr(gT, 2)}, {vr(x, 2)}, {vr(x, 2)} op_sel:[0,0] op_sel_hi:[1,0]')
            A(f'v_cvt_pk_f16_f32 v{ghq(1 << k)}, v{x}, v{x + 1}')
            A(f'v_pk_fma_f32 {vr(x + 2, 2)}, {vr(x, 2)}, {vr(x, 2)}, {vr(gT, 2)} op_sel:[1,1,0] op_sel_hi:[0,1,1] neg_lo:[1,0,0]')
            if k == 0: gput(0, 210)
            gput(1 << k, ghq(1 << k))
        A(f'v_cvt_pk_f16_f32 v{ghq(16)}, v{gQ + 8}, v{gQ + 9}')
        pend = (16, ghq(16)); ov = 0
        for j in [3, 5, 6, 7] + list(range(9, 16)) + list(range(17, 32)):
            hb = 1 << (j.bit_length() - 1)
            if j < 16: d = ghq(j)
            else: d = gO + ov % 4; ov += 1
            t = gz + j % 2
            A(f'v_pk_mul_f16 v{t}, v{ghq(j - hb)}, v{ghq(hb)} op_sel:[0,0] op_sel_hi:[1,0]')
            A(f'v_pk_fma_f16 v{d}, v{ghq(j - hb)}, v{ghq(hb)}, v{t} op_sel:[1,1,0] op_sel_hi:[0,1,1] neg_lo:[1,0,0]')
            gput(*pend); pend = (j, d)
        gput(*pend)
        if cfg.verbose: print('gw', len(gw))
    if cfg.cpf:
        p('s_getpc_b64 s[68:69]')
        p.label('L_PC')
        p(f'''s_lshr_b32 s66, s2, 3
          s_lshl_b32 s66, s66, 2
          s_add_u32 s66, s66, s{sW}
          s_lshl_b32 s66, s66, 8
          v_lshl_add_u32 v65, v0, 7, s66
          v_min_u32 v65, L_END-L_PC, v65
          s_mov_b64 exec, 3
          global_load_dword v{67 if cfg.gk == 2 else 66}, v65, s[68:69]
          s_mov_b64 exec, -1''')
    def touch():
        p.auto = False
        if cfg.tch & 4: p('v_lshlrev_b32 v65, 21, v0\ns_mov_b64 exec, 0x3e\nglobal_load_dword v67, v65, s[34:35]')
        if cfg.tch & 8:
            p(f'''s_mul_i32 s66, s2, {43*128}
              s_mul_i32 s67, s{sW}, {11*128}
              s_add_u32 s66, s66, s67
              v_lshl_add_u32 v65, v0, 7, s66
              s_cmp_eq_u32 s{sW}, 3
              s_cselect_b32 s67, 10, 11
              s_bfm_b64 exec, s67, 0
              global_load_dword v67, v65, s[28:29]''')
        if cfg.tch & 16:
            p(f'''s_lshl_b32 s66, s2, 2
              s_add_u32 s66, s66, s{sW}
              s_and_b32 s67, s66, 1
              s_lshr_b32 s66, s66, 1
              s_lshl_b32 s66, s66, 7
              s_mul_i32 s67, s67, {WS_FY - WS_FH}
              s_add_u32 s66, s66, s67
              s_add_u32 s66, s66, {WS_FH}
              v_mov_b32 v65, s66
              s_mov_b64 exec, 1
              global_load_dword v67, v65, s[34:35]''')
            assert cfg.nch <= 3 and cfg.ncy <= 3
        p('s_mov_b64 exec, 1')
        if cfg.tch & 1: p(f'global_load_dword v67, v{vHl}, s[28:29]')
        if cfg.tch & 2: p(f'global_load_dword v67, v{vHl}, s[30:31]')
        p('s_mov_b64 exec, -1')
        p.auto = True
    if cfg.tch and cfg.tpos == 0: touch()
    srds('G')
    p(f's_mov_b32 s{WS}, s34\ns_mov_b32 s{WS+1}, s35\ns_mov_b32 s{WS+2}, {WS_SIZE}\ns_mov_b32 s{WS+3}, 0x20000')
    p('s_barrier')
    p(f'''v_and_b32 v3, 3, v0
      v_lshlrev_b32 v3, 4, v3
      v_lshl_add_u32 v3, v6, 6, v3
      v_add_u32 v{vSt}, {LNX}, v3
      s_lshl_b32 s66, s{sW}, 4
      s_add_u32 s66, s66, {LNX}
      v_lshl_add_u32 v{vLw}, v6, 6, s66
      v_lshrrev_b32 v3, {xs}, v7
      v_lshlrev_b32 v3, {15 + xs}, v3
      v_lshl_add_u32 v3, v6, {13 + xs}, v3
      v_and_b32 v4, {cfg.xa - 1}, v7
      v_lshl_add_u32 v{vXn}, v4, 4, v3
      s_lshl_b32 s{sXn}, s{sW}, 19
      s_lshl_b32 s66, s{sTB}, {4 + xs}
      s_add_u32 s{sXn}, s{sXn}, s66
      s_add_u32 s{sXn}, s{sXn}, {WS_XNT}
      s_add_u32 s{sXn + 1}, s{sXn}, {4096*cfg.xa}
      s_lshl_b32 s{sSt}, s{sTB}, 6
      s_add_u32 s{sSt}, s{sSt}, {WS_ST}
      s_cmp_eq_u32 s{sW}, 0
      s_cselect_b32 s66, 0, {BIG}
      v_lshl_add_u32 v{vSo}, v6, 4, s66
      s_mul_i32 s66, s75, 96
      {'' if cfg.gcs else f's_add_u32 s66, s66, {CSL}'}
      v_mul_u32_u24 v3, {3072 if cfg.gcs else 192}, v2
      v_lshl_add_u32 v3, v1, 1, v3
      v_add_u32 v{vCS1}, s66, v3
      v_bfe_u32 v3, v0, 4, 1
      v_mul_u32_u24 v3, {3072 if cfg.gcs else 192}, v3
      v_lshl_add_u32 v3, v7, 1, v3
      s_add_u32 s66, s66, 64
      v_add_u32 v{vCS2}, s66, v3
      v_mov_b32 v{vM}, {MISC}
      v_mov_b32 v7, 1
      s_mov_b32 s77, 0x3f803f80''')
    for r in range(4): p(f'v_mov_b32 v{ONE + r}, s77')
    if cfg.nch < 0:
        hflag_adr = f'''s_lshl_b32 s{sFo}, s{sRB}, 1
      s_add_u32 s{sFo}, s{sFo}, s74
      s_lshl_b32 s{sFo}, s{sFo}, 5
      s_lshl_b32 s66, s{sCB}, 1
      s_add_u32 s{sFo}, s{sFo}, s66
      s_add_u32 s{sFo}, s{sFo}, s75
      s_lshl_b32 s{sFo}, s{sFo}, {cfg.fsh}
      s_add_u32 s{sFo}, s{sFo}, {WS_FH}
      s_lshl_b32 s{sFi}, s{sRB2}, 5
      s_mul_i32 s66, s75, 14
      s_add_u32 s{sFi}, s{sFi}, s66
      s_lshl_b32 s{sFi}, s{sFi}, {cfg.fsh}
      s_add_u32 s{sFi}, s{sFi}, {WS_FH}'''
    else:
        hflag_adr = f'''s_lshl_b32 s{sFo}, s{sRB}, 1
      s_add_u32 s{sFo}, s{sFo}, s74
      s_lshl_b32 s{sFo}, s{sFo}, {8 + cfg.nch}
      s_add_u32 s{sFo}, s{sFo}, {WS_FH}
      s_lshl_b32 s11, s{sCB}, 1
      s_add_u32 s11, s11, s75
      s_lshl_b32 s{sFi}, s{sRB2}, 1
      s_add_u32 s{sFi}, s{sFi}, s75
      s_lshl_b32 s{sFi}, s{sFi}, {cfg.nch}
      s_lshl_b32 s66, s{sCB2}, 1
      s_add_u32 s66, s66, s74
      s_and_b32 s66, s66, {(1 << cfg.nch) - 1}
      s_add_u32 s{sFi}, s{sFi}, s66
      s_lshl_b32 s{sFi}, s{sFi}, 7
      s_add_u32 s{sFi}, s{sFi}, {WS_FH}'''
    fill = f'''s_lshl_b32 s66, s74, 9
      s_add_u32 s66, s66, {MB}
      v_lshl_add_u32 v{vMB}, v1, 3, s66
      s_mul_i32 s66, s{sCB}, 6
      s_mul_i32 s67, s75, 3
      s_add_u32 s66, s66, s67
      s_cmp_le_u32 s66, 84 @ s_cselect_b32 s67, 0, {BIG}
      v_add_u32 v{vH01}, s67, v{vHl}
      s_cmp_le_u32 s66, 83 @ s_cselect_b32 s67, 0, {BIG}
      v_add_u32 v{vH2}, s67, v{vHl}
      s_lshl_b32 s67, s{sRB}, 2
      s_lshl_b32 s68, s74, 1
      s_add_u32 s67, s67, s68
      s_mul_i32 s67, s67, 86
      s_add_u32 s66, s66, s67
      s_lshl_b32 s66, s66, 10
      s_add_u32 s70, s66, {WS_H}
      s_add_u32 s71, s70, {86*1024}
      v_bfe_u32 v3, v0, 2, 2
      v_lshl_add_u32 v3, v2, 2, v3
      v_bfe_u32 v4, v3, 1, 1
      v_lshlrev_b32 v4, 6, v4
      v_lshl_add_u32 v3, v3, 7, v4
      v_bfe_u32 v4, v0, 4, 1
      v_lshl_add_u32 v3, v4, 5, v3
      v_and_b32 v4, 3, v0
      v_lshl_add_u32 v3, v4, 3, v3
      s_lshl_b32 s66, s74, 6
      v_xor_b32 v4, s66, v3
      s_mul_i32 s66, s75, {CCH}
      s_add_u32 s66, s66, {KS + 8192}
      v_add_u32 v{vYA}, s66, v4
      s_lshl_b32 s66, s75, 6
      v_xor_b32 v3, s66, v3
      v_xor_b32 v4, 64, v3
      s_lshl_b32 s66, s75, 13
      s_add_u32 s66, s66, {XR}
      s_mul_i32 s67, s75, 6144
      s_add_u32 s67, s67, {GR}
      s_lshl_b32 s68, s75, 11
      s_add_u32 s68, s68, {UR2}
      v_add_u32 v{vA4}, s66, v3
      v_add_u32 v{vA4 + 1}, s66, v4
      v_add_u32 v{vA3}, s67, v3
      v_add_u32 v{vA3 + 1}, s67, v4
      v_add_u32 v{vA1}, s68, v3
      v_add_u32 v{vA1 + 1}, s68, v4
      s_lshl_b32 s66, s{sRB2}, 16
      s_lshl_b32 s67, s74, 15
      s_add_u32 s66, s66, s67
      s_lshl_b32 s67, s{sCB2}, 7
      s_add_u32 s66, s66, s67
      s_lshl_b32 s67, s75, 6
      s_add_u32 s66, s66, s67
      v_lshlrev_b32 v3, 10, v1
      v_lshl_add_u32 v3, v2, 4, v3
      v_add_u32 v{vOut}, s66, v3
      s_mov_b32 s15, s66
      s_lshl_b32 s66, s75, 2
      s_add_u32 s66, s66, {MISC}
      v_mov_b32 v{vCk}, s66
      v_lshrrev_b32 v3, 3, v0
      v_and_b32 v4, 7, v0
      v_bfe_u32 v5, v0, 4, 1
      v_lshlrev_b32 v5, 2, v5
      v_xor_b32 v4, v4, v5
      v_lshlrev_b32 v4, 4, v4
      v_lshl_add_u32 v{vWd}, v3, 10, v4
      {rot_setup()}
      s_lshl_b32 s{sHs}, s{sRB2}, 1
      s_add_u32 s{sHs}, s{sHs}, s74
      s_mul_i32 s{sHs}, s{sHs}, 86
      s_mul_i32 s66, s75, 43
      s_add_u32 s{sHs}, s{sHs}, s66
      s_lshl_b32 s{sHs}, s{sHs}, 10
      s_add_u32 s{sHs}, s{sHs}, {WS_H}
      s_add_u32 s{sHe}, s{sHs}, {43*1024}
      s_lshl_b32 s66, s{sROT}, 10
      s_add_u32 s{sHc}, s{sHs}, s66
      {hflag_adr}
      s_lshl_b32 s{sX4}, s{sW}, 12
      s_mul_i32 s{sX3}, s{sW}, 3072
      s_lshl_b32 s{sX1}, s{sW}, 10
      s_mul_i32 s{sWs}, s75, {43*16384}
      s_lshl_b32 s66, s74, 13
      s_add_u32 s{sWs}, s{sWs}, s66
      s_lshl_b32 s66, s{sCB2}, 7
      s_add_u32 s{sWs}, s{sWs}, s66
      s_add_u32 s{sWe}, s{sWs}, {43*16384}
      s_add_u32 s66, s{sROT}, 16
      s_cmp_ge_u32 s66, 43 @ s_cselect_b32 s67, 43, 0
      s_sub_u32 s66, s66, s67
      s_lshl_b32 s66, s66, 14
      s_add_u32 s{sWc}, s{sWs}, s66
      s_mov_b32 s{WD}, s28
      s_mov_b32 s{WD+1}, s29
      s_mov_b32 s{WD+2}, {1376*1024}
      s_mov_b32 s{WD+3}, 0x20000
      s_mov_b32 s{OUT}, s30
      s_mov_b32 s{OUT+1}, s31
      s_mov_b32 s{OUT+2}, 0x200000
      s_mov_b32 s{OUT+3}, 0x20000'''
    if cfg.gcs:
        assert not cfg.gx and not cfg.hat
        fill += f'''
          s_mul_i32 s44, s{sCB}, 6144
          s_mul_i32 s66, s{sRB}, 192
          s_add_u32 s44, s44, s66
          s_add_u32 s44, s44, {WS_CSP}
          s_cmp_eq_u32 s74, 0 @ s_cselect_b32 s44, s44, {BIG}'''
    fill = [x.strip().replace(' @ ', '\n') for x in fill.split('\n')]
    nv = max(i for i, x in enumerate(fill) if x.startswith('v_')) + 1
    for _ in range(nv + cfg.gfa): p(fill.pop(0))
    tn('g_adr')
    DP = ('quad_perm:[1,0,3,2]', 'quad_perm:[2,3,0,1]', 'row_half_mirror', 'row_mirror')
    for r in range(2): p(f'v_dot2_f32_bf16 v{1 + r}, v{XL + 4*r}, s77, 0')
    tn('g_ln')
    for j in range(1, 4):
        for r in range(2): p(f'v_dot2_f32_bf16 v{1 + r}, v{XL + 4*r + j}, s77, v{1 + r}')
    un = []
    for r in range(2):
        for j in range(4):
            un += [f'v_lshlrev_b32 v{XC + 8*r + 2*j}, 16, v{XL + 4*r + j}', f'v_and_b32 v{XC + 8*r + 2*j + 1}, 0xffff0000, v{XL + 4*r + j}']
    for _ in range(3): p(un.pop(0))
    for m in DP:
        for r in range(2): p(f'v_add_f32_dpp v{1 + r}, v{1 + r}, v{1 + r} {m} row_mask:0xf bank_mask:0xf')
        for _ in range(2): p(un.pop(0))
    while un: p(un.pop(0))
    p(f'v_mul_f32 v{MU}, 0x3c000000, v1\nv_mul_f32 v{MU + 2}, 0x3c000000, v2')
    for j in range(4):
        for r in range(2):
            x = XC + 8*r + 2*j
            p(f'v_pk_add_f32 {vr(x, 2)}, {vr(x, 2)}, {vr(MU + 2*r, 2)} op_sel_hi:[1,0] neg_lo:[0,1] neg_hi:[0,1]')
    for j in range(4):
        for r in range(2):
            x = XC + 8*r + 2*j
            if j == 0: p(f'v_pk_mul_f32 {vr(2 + 2*r, 2)}, {vr(x, 2)}, {vr(x, 2)}')
            else: p(f'v_pk_fma_f32 {vr(2 + 2*r, 2)}, {vr(x, 2)}, {vr(x, 2)}, {vr(2 + 2*r, 2)}')
    for r in range(2): p(f'v_add_f32 v{MU + 2*r + 1}, v{2 + 2*r}, v{3 + 2*r}')
    for m in DP:
        for r in range(2): p(f'v_add_f32_dpp v{MU + 2*r + 1}, v{MU + 2*r + 1}, v{MU + 2*r + 1} {m} row_mask:0xf bank_mask:0xf')
    p(f's_mov_b32 exec_lo, 0x10001\ns_mov_b32 exec_hi, 0x10001\nds_write_b128 v{vLw}, {vr(MU, 4)}')
    p(f's_mov_b64 exec, 1\nds_add_u32 v{vM}, v7 offset:{C_L}\ns_mov_b64 exec, -1')
    tn('g_lnw')
    for _ in range(cfg.gk1 if cfg.gk == 1 else 0):
        if gw: p(gw.pop(0))
    lds_spin(vM, C_L, 4, 1)
    tn('g_lnx')
    R2 = (0, 1)
    p(f'ds_read_b128 {vr(XL, 4)}, v{vSt}')
    for r in R2: p(f'v_mov_b32 v{LR + 2*r}, 0x3727c5ac')
    for r in R2: p(f'v_add_f32_dpp v{36 + r}, v{XL + 2*r}, v{XL + 2*r} quad_perm:[1,0,3,2] row_mask:0xf bank_mask:0xf')
    for r in R2: p(f'v_add_f32_dpp v{36 + r}, v{36 + r}, v{36 + r} quad_perm:[2,3,0,1] row_mask:0xf bank_mask:0xf')
    for r in R2: p(f'v_mul_f32 v{36 + r}, 0x3e800000, v{36 + r}')
    for r in R2: p(f'v_sub_f32 v{38 + r}, v{XL + 2*r}, v{36 + r}')
    for r in R2: p(f'v_mul_f32 v{38 + r}, v{38 + r}, v{38 + r}')
    for r in R2: p(f'v_fmac_f32 v{XL + 2*r + 1}, 0x43000000, v{38 + r}')
    for r in R2: p(f'v_sub_f32 v{LD + 2*r}, v{MU + 2*r}, v{36 + r}')
    for r in R2: p(f'v_add_f32_dpp v{38 + r}, v{XL + 2*r + 1}, v{XL + 2*r + 1} quad_perm:[1,0,3,2] row_mask:0xf bank_mask:0xf')
    for r in R2: p(f'v_cvt_pk_bf16_f32 v{MU + 2*r}, -v{36 + r}, -v{36 + r}')
    for r in R2: p(f'v_add_f32_dpp v{38 + r}, v{38 + r}, v{38 + r} quad_perm:[2,3,0,1] row_mask:0xf bank_mask:0xf')
    for r in R2: p(f'v_fmac_f32 v{LR + 2*r}, 0x3b000000, v{38 + r}')
    for r in R2: p(f'v_rsq_f32 v{LR + 2*r}, v{LR + 2*r}')
    for r in R2: p(f'v_mul_f32 v{LD + 2*r}, v{LD + 2*r}, v{LR + 2*r}')
    for j in range(4):
        for r in R2:
            x = XC + 8*r + 2*j
            p(f'v_pk_fma_f32 {vr(x, 2)}, {vr(x, 2)}, {vr(LR + 2*r, 2)}, {vr(LD + 2*r, 2)} op_sel_hi:[1,0,0]')
    pos = lambda i: 4*(i & 1) + 2*(i >> 2) + ((i >> 1) & 1)
    for z in range(2):
        for i in range(z, 8, 2): p(f'v_cvt_pk_bf16_f32 v{PK + pos(i)}, v{XC + i}, v{XC + 8 + i}')
    for r in R2: p(f'v_mul_f32 v{MU + 2*r + 1}, v{LR + 2*r}, v{LR + 2*r}')
    for k in range(2):
        for z in range(2): p(f'v_permlane32_swap_b32 v{PK + 4*z + k}, v{PK + 4*z + k + 2}')
    for z in range(2):
        for k in range(2): p(f'v_permlane16_swap_b32 v{PK + 4*z + 2*k}, v{PK + 4*z + 2*k + 1}')
    for z in range(2):
        if not cfg.nost & 1: p(f'buffer_store_dwordx4 {vr(PK + 4*z, 4)}, v{vXn}, {srd(WS)}, s{sXn + z} offen sc1')
    p(f's_mov_b32 exec_lo, 0x10001\ns_mov_b32 exec_hi, 0x10001\nbuffer_store_dwordx4 {vr(MU, 4)}, v{vSo}, {srd(WS)}, s{sSt} offen sc1\ns_mov_b64 exec, -1')
    tn('g_lns')
    if cfg.tch and cfg.tpos == 1: touch()
    while gw and cfg.gk == 1: p(gw.pop(0))
    tn('g_k')
    for _ in range(cfg.gfb):
        if fill: p(fill.pop(0))
    mktag()
    p('s_barrier')
    tn('g_b0')
    def reads(g):
        s, ks = g >> 2, g & 3; sl = s % 3; b = FR[g & 1]
        wo = sl * 12288 + ks * 16 * 192
        xr = lambda tt: f'ds_read_b128 {vr(b + 12 + 4*tt, 4)}, v{vXa + ks} offset:{sl*16384 + tt*4096}'
        if g == 32:
            xr = lambda tt: '\n'.join(f'ds_read2_b32 {vr(b + 12 + 4*tt + 2*k, 2)}, v{vMB} offset0:{64*tt} offset1:{64*tt}' for k in range(2))
        wr = lambda T, j: f'ds_read_b64_tr_b16 {vr(b + 4*T + 2*j, 2)}, v{(vWg, vW1, vWu)[T]} offset:{wo + j*768}'
        if g == 32: return [xr(0), wr(0, 0), wr(0, 1), wr(2, 0), wr(2, 1), wr(1, 0), wr(1, 1), xr(1)]
        return [xr(0), wr(0, 0), wr(0, 1), xr(1), wr(1, 0), wr(1, 1), wr(2, 0), wr(2, 1)]
    extra = {}
    def add(g, m, item): extra.setdefault((g, m), []).append(item)
    add(4*cfg.fab - 1, 1, 's_waitcnt vmcnt(0)')
    if cfg.tch & 31 and cfg.tpos >= 2: add(cfg.tpos, 2, touch)
    add(31, 0, lambda: lds_pre(vM, C_S, 1))
    add(31, 2, lambda: (lds_post(vM, C_S, 4, 1), tn('g_b8')))
    for g in range(32):
        nxt = reads(g + 1)
        if (g & 3) == 3:
            dist = {2: nxt[0:2], 3: nxt[2:4], 4: nxt[4:6], 5: nxt[6:8]}
            if g < 31: add(g, 2, 'BARRIER')
        else:
            dist = {0: nxt[0:2], 1: nxt[2:3], 2: nxt[3:5], 3: nxt[5:6], 4: nxt[6:7], 5: nxt[7:8]}
        for m, l in dist.items():
            for x in l: add(g, m, x)
    csm = lambda g, T: f'v_mfma_f32_32x32x16_bf16 {vr(CSA + 16*T, 16)}, {vr(ONE, 4)}, {vr(FR[g & 1] + 4*T, 4)}, {"0" if g & 1 == 0 else vr(CSA + 16*T, 16)}'
    if cfg.rho == 1:
        for g in range(2):
            for T in range(3): add(g, 2*T + 1, ('MFMA', csm(g, T)))
    else:
        def csc(g):
            L = p.newlabel('CS')
            p(f's_bfe_u32 s66, s{sRB}, {0x10000*(cfg.rho.bit_length() - 1) + 1}\ns_cmp_eq_u32 s66, {g >> 2}\ns_cbranch_scc0 {L}')
            p.cond_begin()
            for T in range(3): p(csm(g, T))
            p.cond_end()
            p.label(L)
        for j in range(cfg.rho):
            for g in (4*j, 4*j + 1): add(g, 5, ('MFMA', lambda g=g: csc(g)))
    gc = 4*(cfg.rho - 1)
    add(gc + 2, 3, f'v_permlane32_swap_b32 v{CSA}, v{CSA + 32}')
    add(gc + 2, 4, f'v_cvt_pk_bf16_f32 v{CSA}, v{CSA}, v{CSA + 16}')
    if cfg.gcs:
        add(gc + 2, 5, f'buffer_store_short v{CSA}, v{vCS1}, {srd(WS)}, s44 offen sc1')
        add(gc + 3, 0, f's_mov_b32 exec_hi, 0\nbuffer_store_short_d16_hi v{CSA}, v{vCS2}, {srd(WS)}, s44 offen sc1\ns_mov_b32 exec_hi, -1')
    else:
        add(gc + 2, 5, f'ds_write_b16 v{vCS1}, v{CSA}')
        add(gc + 3, 0, f'ds_write_b16_d16_hi v{vCS2}, v{CSA}')
    for x in reads(0): p(x)
    nb = 0
    gacc = [0, 0]
    assert cfg.gk != 2 or (cfg.ggs >= 4 and not fill)
    for g in range(32):
        b = FR[g & 1]
        for m in range(6):
            T, tt = m >> 1, m & 1
            a = ACC + 16 * (2*T + tt)
            c = '0' if g == 0 else vr(a, 16)
            if cfg.mf16:
                for z in range(2):
                    a4 = a + 8*(g & 1) + 4*z
                    p(f'v_mfma_f32_16x16x32_bf16 {vr(a4, 4)}, {vr(b + 4*T, 4)}, {vr(b + 12 + 4*(tt ^ z), 4)}, {"0" if g < 2 else vr(a4, 4)}')
            else: p(f'v_mfma_f32_32x32x16_bf16 {vr(a, 16)}, {vr(b + 4*T, 4)}, {vr(b + 12 + 4*tt, 4)}, {c}')
            late = []
            ex = extra.get((g, m), [])
            for x in ex:
                if x == 'BARRIER':
                    p('s_waitcnt lgkmcnt(0)\ns_barrier'); nb += 1
                    if nb == cfg.gprio: p('s_setprio 2')
                    tn(f'g_b{nb}')
                elif isinstance(x, tuple): late.append(x[1])
                else: emit(x)
            if g >= cfg.gf0 and 'BARRIER' not in ex:
                for _ in range(cfg.gf):
                    if fill: p(fill.pop(0))
            if gw and g >= cfg.ggs and 'BARRIER' not in ex:
                gacc[0] += cfg.ggr
                while gw and gacc[0] >= 10:
                    if gw[0].startswith('ds_write') and nb < cfg.gga: gacc[0] = 0; break
                    gacc[0] -= 10; p(gw.pop(0))
                    if not gw:
                        gacc[1] = nb + 1
                        if cfg.verbose: print('gw ends at', g, m)
            for x in late: emit(x)
        if g == 29: assert not fill
    for tt in range(2):
        for T in (0, 2, 1):
            a = ACC + 16 * (2*T + tt)
            p(f'v_mfma_f32_32x32x16_bf16 {vr(a, 16)}, {vr(FR[0] + 4*T, 4)}, {vr(FR[0] + 12 + 4*tt, 4)}, {vr(a, 16)}')
    lds_add(vM, C_G, 7)
    tn('g_corr')
    hmod = '' if cfg.wbl2 else [' sc1', ' sc0 sc1', ' nt sc1', ' nt sc0 sc1'][cfg.hs]
    for tt in range(2):
        for q in range(3):
            if q < 2: ga, ua = ACC + 16*tt + 8*q, ACC + 16*(4 + tt) + 8*q
            else: ga, ua = ACC + 16*(2 + tt), ACC + 16*(2 + tt) + 8
            for e in range(8): p(f'v_mul_f32 v{ga + e}, v{ga + e}, v{ua + e}')
            for j in range(4): p(f'v_cvt_pk_bf16_f32 v{ga + j}, v{ga + 2*j}, v{ga + 2*j + 1}')
            hst = p(f'buffer_store_dwordx4 {vr(ga, 4)}, v{vH2 if q == 2 else vH01}, {srd(WS)}, s{70 + tt} offen offset:{1024*q}{hmod}')
    if cfg.wbl2:
        p('s_waitcnt vmcnt(0)')
        hst = p('buffer_wbl2 sc1')
    tn('g_hst')
    if cfg.gp2 != 2: p(f's_setprio {cfg.gp2}')
    HW = cfg.hwin; HB = 176; AC2 = 224; RF = 32; NRF = 16; RING = cfg.adist + 1
    assert HW <= 12 and RING <= 3
    def afr(n): return RF + 8 * (n if n < NRF else (n - NRF) % RING)
    def aread(n, dt, s):
        base, stride = piece_loc(n)
        reg, rb_ = {4096: (vA4, XR), 3072: (vA3, GR), 1024: (vA1, UR2)}[stride]
        p(f'ds_read_b64_tr_b16 {vr(afr(n) + 4*dt + 2*s, 2)}, v{reg + dt} offset:{base - rb_ + stride*s}')
    gwh = {}
    def g_wd(n):
        base, stride = piece_loc(n)
        p(f's_add_u32 m0, s{ {4096: sX4, 3072: sX3, 1024: sX1}[stride] }, {base}')
        gwh[n] = p(f'buffer_load_dwordx4 v{vWd}, {srd(WD)}, s{sWc} offen lds')
        adv = f's_add_u32 s{sWc}, s{sWc}, 16384\ns_cmp_eq_u32 s{sWc}, s{sWe}\ns_cselect_b32 s{sWc}, s{sWs}, s{sWc}'
        if n < 42: p(adv)
    def grpC():
        lds_spin(vM, C_G, 4, 1)
        for n in range(16, 27): g_wd(n)
        tn('g_c')
    def ackflag():
        if cfg.nch >= 0:
            p(f'''v_lshrrev_b32 v1, {cfg.nch}, v0
              v_mul_u32_u24 v1, 14, v1
              v_sub_u32 v1, s11, v1
              v_cmp_gt_u32 vcc, 16, v1
              v_lshlrev_b32 v2, 7, v0
              v_lshl_add_u32 v2, v1, 2, v2
              v_mov_b32 v1, s{sTAG}
              s_and_b32 vcc_lo, vcc_lo, {(1 << (2 << cfg.nch)) - 1}
              s_mov_b32 vcc_hi, 0''')
        p.wait_vm(hst)
        tn('g_ack')
        if cfg.nch >= 0: p(f's_mov_b64 exec, vcc\nbuffer_store_dword v1, v2, {srd(WS)}, s{sFo} offen sc1\ns_mov_b64 exec, -1')
        else: flag_store(sFo)
        p(f'v_lshrrev_b32 v1, 10, v{vOut}\nv_lshlrev_b32 v1, 3, v1\ns_movk_i32 s66, {WS_ST + 4}')
        p(f'buffer_load_dword v160, v1, {srd(WS)}, s66 offen sc1')
    def preread():
        lds_spin(vCk, C_W, 2, 1)
        tn('g_cw')
        for n in range(NRF):
            for dt in range(2):
                for s_ in range(2): aread(n, dt, s_)
        lds_add(vCk, C_R, 7)
        tn('g_pre')
    for x in {0: (ackflag, grpC, preread), 1: (grpC, ackflag, preread), 2: (grpC, preread, ackflag), 3: (preread, ackflag, grpC), 4: (preread, grpC, ackflag)}[cfg.cfirst]: x()
    if cfg.gx:
        p(f'''v_and_b32 v1, 3, v0
          v_lshrrev_b32 v2, 4, v0
          v_xor_b32 v1, v1, v2
          v_lshlrev_b32 v1, 4, v1
          v_lshrrev_b32 v2, 2, v0
          v_lshl_add_u32 v2, v2, 10, v1
          s_mov_b32 s44, s4
          s_mov_b32 s45, s5
          s_mov_b32 s46, 0x200000
          s_mov_b32 s47, 0x20000
          s_add_u32 s66, s15, {16384 - 1024}''')
        assert cfg.dpre <= 14 and not cfg.hat
    lds_spin(vCk, C_R, 2, 1)
    if cfg.gx: p(f's_add_u32 m0, s{sX3}, {UR + 1024}\nbuffer_load_dwordx4 v2, {srd(44)}, s15 offen lds\nbuffer_load_dwordx4 v2, {srd(44)}, s66 offen offset:1024 lds')
    early = cfg.spoll & 1 and cfg.pearly
    for n in range(27, 27 + cfg.dpre + 1):
        if early and n == 27 + cfg.pearly: p(f's_load_dwordx16 s[16:31], s[34:35], s{sFi} glc')
        if n < 27 + cfg.dpre: g_wd(n)
    tn('g_d')
    if cfg.spoll & 1: spoll(16, 16, sFi, early)
    else: vpoll(16, sFi)
    tn('g_fh')
    if cfg.gp3 != cfg.gp2: p(f's_setprio {cfg.gp3}')
    def hload(n):
        if cfg.g2x == 1 and n >= HW: return
        hm = [" sc1", "", " nt", " sc0 sc1", " nt sc1"][cfg.hl]
        if cfg.hat: p(f'buffer_load_dwordx4 {vr(HB + 4*(n % HW), 4)}, off, {srd(44)}, s{sHc}{hm}')
        else: p(f'buffer_load_dwordx4 {vr(HB + 4*(n % HW), 4)}, v{vHl}, {srd(WS)}, s{sHc} offen{hm}')
        if n < 42 and cfg.g2x != 2: p(f's_add_u32 s{sHc}, s{sHc}, 1024\ns_cmp_eq_u32 s{sHc}, s{sHe}\ns_cselect_b32 s{sHc}, s{sHs}, s{sHc}')
    if cfg.hat: p(f's_mov_b32 s44, s34\ns_or_b32 s45, s35, 0x100000\ns_mov_b32 s46, {WS_SIZE}\ns_mov_b32 s47, 0x800000')
    for n in range(HW): hload(n)
    fX, fR, fB, fY, fP, vXt = 56, 160, 72, 88, 96, 161
    g2 = {}
    def add2(n, m, x): g2.setdefault((n, m), []).append(x)
    xa_ = [f's_add_u32 s66, s{sX3}, {UR + 1024}' if cfg.gx else f's_mul_i32 s66, s75, {CCH}\ns_lshl_b32 s67, s74, 11\ns_add_u32 s66, s66, s67\ns_add_u32 s66, s66, {KS + 12288}',
           'v_and_b32 v1, 31, v0', 'v_bfe_u32 v2, v0, 2, 2', 'v_lshl_add_u32 v1, v1, 6, s66', 'v_lshl_add_u32 v1, v2, 4, v1',
           'v_lshrrev_b32 v2, 5, v0', f'v_lshl_add_u32 v{vXt}, v2, 3, v1'] + [f'v_xor_b32 v{vXt + j}, {16*j}, v{vXt}' for j in (1, 2, 3)]
    xa_ += [f's_lshl_b32 s66, s{sW}, 12\ns_add_u32 s66, s66, {XR + 16384}\nv_add_u32 v5, s66, v{vHl}',
            f's_xor_b32 s66, s{sW}, 2\ns_lshl_b32 s66, s66, 12\ns_add_u32 s66, s66, {XR + 16384}\nv_add_u32 v6, s66, v{vHl}']
    for k, x in enumerate(xa_): add2(1 + k // 2, k & 1, x)
    assert cfg.xstep >= 9
    if not cfg.gx: add2(cfg.xstep - 1, 0, lambda: lds_pre(vCk, C_X, 4)); add2(cfg.xstep, 0, lambda: lds_post(vCk, C_X, 2, 4))
    xrh = [None]
    def xread(j): xrh[0] = p(f'ds_read_b64 {vr(fX + 2*j, 2)}, v{vXt + j}')
    for j in range(4): add2(cfg.xstep, 1, lambda j=j: xread(j))
    xw = []
    for j in range(8): xw += [f'v_lshlrev_b32 v{fB + 2*j}, 16, v{fX + j}', f'v_and_b32 v{fB + 2*j + 1}, 0xffff0000, v{fX + j}']
    xs0 = cfg.xstep + 2
    for k, x in enumerate(xw): add2(xs0 + k // 4, (k >> 1) & 1, x)
    assert xs0 + len(xw) // 4 <= cfg.ystep
    n2 = NRF - cfg.adist
    pre2 = {}
    if cfg.dpre < 16:
        for k, n in enumerate(range(27 + cfg.dpre, 43)):
            nl = cfg.dst + k // cfg.dper
            if cfg.gx and n >= 41:
                nl = max(nl, cfg.xstep + 2)
                pre2.setdefault((nl, cfg.dm), []).append(lambda: p.wait_ds(xrh[0]))
            pre2.setdefault((nl, cfg.dm), []).append(lambda n=n: g_wd(n))
        dsig = nl + HW + (0 if (cfg.dm == 1 or cfg.g2o != 1) else -1)
        assert dsig <= 27 - cfg.adist - 3, dsig
        add2(dsig, 0, lambda: (p.wait_vm(gwh[42]), lds_add(vCk, C_W4, 7)))
        add2(27 - cfg.adist - 2, 0, lambda: lds_pre(vCk, C_W4, 3)); add2(27 - cfg.adist - 1, 1, lambda: lds_post(vCk, C_W4, 2, 3))
    add2(0, 0, lambda: lds_add(vCk, C_W3, 7))
    add2(n2 - 2, 0, lambda: lds_pre(vCk, C_W3, 3)); add2(n2 - 1, 1, lambda: lds_post(vCk, C_W3, 2, 3))
    add2(24, 1, lambda: (lds_add(vCk, C_F, 7), tn('g_n27')))
    add2(cfg.ystep - 1, 0, lambda: lds_pre(vCk, C_Y, 3)); add2(cfg.ystep, 0, lambda: (lds_post(vCk, C_Y, 2, 3), tn('g_y')))
    for Q in range(4): add2(cfg.ystep, 1, f'ds_read_b64_tr_b16 {vr(fY + 2*Q, 2)}, v{vYA} offset:{1024*Q}')
    yw = []
    for j in range(8):
        yw += [f'v_lshlrev_b32 v1, 16, v{fY + j}', f'v_and_b32 v2, 0xffff0000, v{fY + j}',
               f'v_add_f32 v{fB + 2*j}, v{fB + 2*j}, v1', f'v_add_f32 v{fB + 2*j + 1}, v{fB + 2*j + 1}, v2']
    ng = 2*(42 - cfg.ystep) - 2
    per = -(-len(yw) // ng)
    for k, x in enumerate(yw): gi = 2*(cfg.ystep + 1) + 1 + k // per; add2(gi >> 1, gi & 1, x)
    add2(40, 0, lambda: lds_pre(vCk, C_F, 4)); add2(41, 1, lambda: lds_post(vCk, C_F, 2, 4))
    for n in range(43):
        for m in range(2):
            dt = m if n < 42 else 1 - m
            a = AC2 + 16 * dt
            c = '0' if n == 0 else vr(a, 16)
            p(f'v_mfma_f32_32x32x16_bf16 {vr(a, 16)}, {vr(afr(n) + 4*dt, 4)}, {vr(HB + 4*(n % HW), 4)}, {c}')
            if n == 0 and m == 0: tn('g_h0')
            if n == 16 and m == 0: tn('g_n16')
            if m == 0: tn(f'g_s{n}')
            for x in pre2.get((n, m), []): emit(x)
            if cfg.g2o == 0:
                if NRF <= n + cfg.adist <= 42:
                    for s_ in range(2): aread(n + cfg.adist, m, s_)
                if m == 1 and n + HW < 43: hload(n + HW)
            elif cfg.g2o == 1:
                if m == 0 and n >= 1 and n - 1 + HW < 43: hload(n - 1 + HW)
                if m == 1 and NRF <= n + cfg.adist <= 42:
                    for dd in range(2):
                        for s_ in range(2): aread(n + cfg.adist, dd, s_)
            elif cfg.g2o == 2:
                if m == 1 and n + HW < 43: hload(n + HW)
                if m == 0 and NRF <= n + cfg.adist <= 42:
                    for dd in range(2):
                        for s_ in range(2): aread(n + cfg.adist, dd, s_)
            elif cfg.g2o == 3:
                if m == 1 and n + HW < 43: hload(n + HW)
                if NRF <= n + cfg.adist <= 42:
                    for s_ in range(2): aread(n + cfg.adist, m, s_)
            for x in g2.get((n, m), []): emit(x)
    tn('g_g2')
    for Q in range(4): p(f'ds_write_b128 v5, {vr(AC2 + 16 + 4*Q, 4)} offset:{1024*Q}')
    for e in range(16): p(f'v_fmac_f32 v{fB + e}, v{AC2 + e}, v{fR}')
    p('s_waitcnt lgkmcnt(0)\ns_barrier')
    ts(8)
    for Q in range(4): p(f'ds_read_b128 {vr(fP + 4*Q, 4)}, v6 offset:{1024*Q}')
    for h in range(2):
        for e in range(8*h, 8*h + 8): p(f'v_fmac_f32 v{fB + e}, v{fP + e}, v{fR}')
        for j in range(4*h, 4*h + 4): p(f'v_cvt_pk_bf16_f32 v{fX + j}, v{fB + 2*j}, v{fB + 2*j + 1}')
        p(f'v_permlane32_swap_b32 v{fX + 4*h}, v{fX + 4*h + 2}\nv_permlane32_swap_b32 v{fX + 4*h + 1}, v{fX + 4*h + 3}')
        p(f'buffer_store_dwordx4 {vr(fX + 4*h, 4)}, v{vOut}, {srd(OUT)}, 0 offen offset:{32*h}{["", " nt", " sc1", " sc0 sc1", " nt sc1"][cfg.omod]}')
    finish()

    p.label('L_S')
    p.vmq, p.dsq = st0
    prio = [0]
    def setprio(x):
        if prio[0] != x: p(f's_setprio {x}'); prio[0] = x
    setprio((cfg.sprio >> 8) & 1)
    vXo, vWo, vWd, vIdx, vL16, vPar = 10, 14, 17, 20, 31, 32
    LAM, Wv, P1, P2, P4, Q1, Q2, Q4, Q8, Q16, E1, E2, E4, E8, T0, T1 = range(40, 72, 2)
    hW, hP1, hP2, hP4, hE1, hE2, hE4, hE8 = range(72, 80)
    hq = lambda j: 79 + j
    vSR, vDW, vDR = 109, 110, 111
    AFr, BFr, DK = 112, 144, 176
    vTA, vCA, vUB, vXB, vYS, vYL, vYW, vCk, vF, vUo, vPoll, vM, vOne, vCSr, vXS = 224, 228, 229, 233, 234, 235, 236, 237, 238, 239, 240, 244, 245, 248, 226
    sX4, sX3, sX1, sWc, sWs, sWe, sYB, sCS, sFA, sFYo, sFYi = 6, 7, 8, 9, 10, 11, 22, 30, 31, 32, 33
    p(f'''s_sub_u32 s74, s{sW}, 4
      s_lshr_b32 s75, s74, 1
      s_and_b32 s77, s74, 1
      s_lshr_b32 s66, s2, 3
      s_lshl_b32 s66, s66, 1
      s_add_u32 s66, s66, s75
      s_lshl_b32 s66, s66, 3
      s_and_b32 s67, s2, 7
      s_add_u32 s73, s66, s67
      s_lshl_b32 s67, s73, 8
      s_lshl_b32 s68, s77, 7
      s_add_u32 s67, s67, s68
      v_lshl_add_u32 v18, v0, 1, s67
      s_lshl_b32 s66, s73, 1
      v_mov_b32 v19, s66''')
    def par_loads():
        p(f'global_load_ushort v{vPar + 6}, v19, s[18:19]')
        for i in range(6): p(f'global_load_ushort v{vPar + i}, v18, s[{6 + 2*i}:{7 + 2*i}]')
        p(f'global_load_ushort v{vPar + 7}, v19, s[20:21]')
    p(f'''s_and_b32 s66, s{sRB}, 1
      s_lshl_b32 s67, s66, 2
      v_and_b32 v1, 7, v0
      v_lshrrev_b32 v2, 4, v0
      v_xor_b32 v1, v1, v2
      v_xor_b32 v1, s67, v1
      v_lshrrev_b32 v2, 3, v0
      s_lshl_b32 s68, s74, 15
      {f's_lshl_b32 s69, s{sRB}, 17' if cfg.kw else ''}
      {f's_add_u32 s68, s68, s69' if cfg.kw else ''}
      v_lshl_add_u32 v2, v2, 10, s68
      v_lshl_add_u32 v{vXo}, v1, 4, v2
      v_xor_b32 v1, 4, v1
      v_lshl_add_u32 v2, v1, 4, v2
      v_add_u32 v{vXo + 1}, {7168}, v2
      v_add_u32 v{vXo + 2}, {2*7168}, v{vXo}
      v_add_u32 v{vXo + 3}, {3*7168}, v2''')
    wcalc = lambda i: f'''v_add_u32 v1, {64*i}, v0
          v_mul_u32_u24 v2, 0x5556, v1
          v_lshrrev_b32 v2, 18, v2
          v_mul_u32_u24 v3, 12, v2
          v_sub_u32 v3, v1, v3
          v_add_u32 v2, s33, v2
          v_xor_b32 v2, s32, v2
          {'v_lshl_add_u32 v3, v3, 4, s70' if cfg.kw else 'v_lshlrev_b32 v3, 4, v3'}
          v_mad_u32_u24 v2, v2, s31, v3
          v_subrev_u32 v{vWo + i}, {1024*i}, v2'''
    p(f'''s_lshl_b32 s66, s74, 12
      s_add_u32 s66, s66, {XR}
      s_mul_i32 s68, s74, 3072
      s_add_u32 s67, s68, {GR}
      s_add_u32 s68, s68, {UR}
      {'' if cfg.kw else f's_lshl_b32 s69, s{sRB}, 17'}
      s_mul_i32 s70, s{sCB}, 192
      s_lshr_b32 s71, s{sRB}, 1
      {f's_and_b32 s71, s71, {8 - cfg.rho}' if cfg.rho > 1 else ''}
      {'s_lshl_b32 s76, s71, 7' if cfg.kw else ''}
      v_lshlrev_b32 v{vL16}, 4, v0''')
    if cfg.ypois: p('v_mov_b64 v[4:5], -1\nv_mov_b64 v[6:7], -1')
    p('s_waitcnt lgkmcnt(0)')
    tn('s_karg')
    p('s_barrier')
    if cfg.parfirst: par_loads()
    srds('S')
    m0 = [None]
    def setm0(key, text):
        if m0[0] != key: p(text); m0[0] = key
    slabh = {}
    def dma_items(s):
        sl = s % 3
        it = []
        def x(i):
            if i == 0 and s == 0 and cfg.kw: assert cfg.parfirst; p('s_mul_i32 s23, s76, 1376')
            if i == 0 and not cfg.kw:
                p(f's_add_u32 s78, s71, {s}\ns_and_b32 s78, s78, 7\ns_lshl_b32 s76, s78, 7\ns_add_u32 s76, s76, s69')
                p(f's_mul_i32 s23, s78, {64*2752}\ns_add_u32 s23, s23, s70')
            setm0(('x', s), f's_add_u32 m0, s66, {sl*16384}')
            p(f'buffer_load_dwordx4 v{vXo + i}, {srd(XD)}, s76 offen offset:{1024*i} lds')
            if cfg.kw and i == 3:
                setm0(('w', s, 0), f's_add_u32 m0, s67, {sl*12288}')
                if s < 7: p('s_add_u32 s76, s76, 128\ns_and_b32 s76, s76, 0x3ff')
        def w(k, i):
            setm0(('w', s, k), f's_add_u32 m0, s{67 + k}, {sl*12288}')
            slabh[s] = p(f'buffer_load_dwordx4 v{vWo + i}, {srd((WG, WU)[k])}, s23 offen offset:{1024*i} lds')
            if cfg.kw and i == 2:
                if k == 0: setm0(('w', s, 1), f's_add_u32 m0, s68, {sl*12288}')
                elif s < 7:
                    setm0(('x', s + 1), f's_add_u32 m0, s66, {(s + 1) % 3*16384}')
                    p('s_mul_i32 s23, s76, 1376')
        for i in range(4): it.append(lambda i=i: x(i))
        for k in range(2):
            for i in range(3): it.append(lambda k=k, i=i: w(k, i))
        return it
    def seg(work, dma=()):
        work = list(work); dma = list(dma)
        gap = max(1, -(-len(work) // len(dma))) if dma else len(work)
        if cfg.dmaf and dma: gap = min(gap, cfg.dmaf - 1)
        while work or dma:
            if dma: emit(dma.pop(0))
            for _ in range(gap if dma else len(work)):
                if work: emit(work.pop(0))
    d0 = dma_items(0)
    p(f's_and_b32 s32, s{sRB}, 1\ns_lshl_b32 s32, s32, 5\ns_lshl_b32 s33, s74, 4\ns_movk_i32 s31, 2752')
    for i in range(4):
        emit(d0.pop(0))
        if i < 3: p(wcalc(i))
    if not cfg.parfirst: par_loads()
    srds2('S')
    p(f's_lshl_b32 s{sYB}, s73, 12\ns_add_u32 s{sYB}, s{sYB}, {WS_YT}')
    d1 = dma_items(1)
    if cfg.ypois:
        p(f's_lshl_b32 s72, s77, 11\ns_add_u32 s72, s72, s{sYB}')
        d1.insert(9, f'buffer_store_dwordx4 v[4:7], v{vL16}, {srd(WS)}, s72 offen sc1\nbuffer_store_dwordx4 v[4:7], v{vL16}, {srd(WS)}, s72 offen offset:1024 sc1')
    sT0 = 17
    vTX, vTY = vTA, vTA + 1
    w_idx = []
    A = w_idx.append
    A('v_and_b32 v1, 31, v0'); A('v_lshrrev_b32 v2, 5, v0')
    A(f's_xor_b32 s24, s74, 1\ns_mul_i32 s24, s24, 8704\ns_add_u32 s24, s24, {KS}'); A(f'v_add_u32 v{vDR}, s24, v{vL16}')
    A(f'''s_mul_i32 s{sT0}, s75, {TCH}
      s_add_u32 s{sT0}, s{sT0}, {TT + 16}
      s_mul_i32 s18, s77, 62
      s_add_u32 s18, s18, 128
      s_lshl_b32 s19, s77, 3
      s_add_u32 s19, s19, s{sT0}
      s_add_u32 s19, s19, 1024''')
    A('v_sub_u32 v8, 2, v2'); A('v_lshlrev_b32 v3, v8, v1'); A('v_mad_u32_u24 v3, v2, s18, v3'); A(f'v_lshl_add_u32 v{vTX}, v3, 2, s19')
    A(f'''s_mul_i32 s18, s77, 124
      s_add_u32 s18, s18, 4
      s_lshl_b32 s19, s77, 11
      s_add_u32 s19, s19, s{sT0}
      s_mul_i32 s20, s77, 3
      s_sub_u32 s20, 3, s20''')
    A('v_lshlrev_b32 v3, s20, v1'); A('v_mad_u32_u24 v3, v2, s18, v3'); A(f'v_lshl_add_u32 v{vTY}, v3, 2, s19')
    w_idxB = w_idx
    w_idx = []
    A = w_idx.append
    A(f's_mul_i32 s25, s74, 8704'); A(f's_add_u32 s25, s25, {KS}')
    A('v_and_b32 v1, 31, v0'); A('v_lshrrev_b32 v2, 5, v0'); A('v_mul_u32_u24 v3, 272, v1'); A('v_lshl_add_u32 v3, v2, 4, v3')
    A(f'v_add_u32 v{vSR}, s25, v3'); A(f'v_add_u32 v{vDW}, s25, v{vL16}')
    vSB = 9
    if cfg.kw:
        assert cfg.gk != 1
        A('v_lshl_add_u32 v9, v0, 2, s25')
    if cfg.gk == 1:
        A(f's_lshl_b32 s25, s74, 12\ns_add_u32 s25, s25, {XR + 32768}\ns_mul_i32 s24, s74, 3072\ns_add_u32 s24, s24, {GR2 + 240 - 15*272}')
        A('v_mov_b32 v2, s25'); A('v_mov_b32 v8, s24'); A('v_cmp_lt_u32 vcc, 14, v1'); A('v_cndmask_b32 v2, v2, v8, vcc')
        A(f'v_add_u32 v8, {UR2 - GR2 + 112 - 240 - 10*272}, v8'); A('v_cmp_lt_u32 vcc, 24, v1'); A('v_cndmask_b32 v2, v2, v8, vcc')
        A(f'v_add_u32 v{vSB}, v2, v3'); A(f's_mul_i32 s25, s74, 8704\ns_add_u32 s25, s25, {KS}')
    A(f'v_mov_b32 v{vM}, {MISC}'); A(f'v_mov_b32 v{vOne}, 1')
    A(f's_lshl_b32 s24, s75, 2\ns_add_u32 s24, s24, {MISC}'); A(f'v_mov_b32 v{vCk}, s24')
    if not cfg.gcs:
        A(f's_mul_i32 s24, s74, 96\ns_add_u32 s24, s24, {CSL}'); A(f'v_add_u32 v{vCSr}, s24, v{vL16}')
    A(('' if cfg.gcs else f'''s_mul_i32 s{sCS}, s{sCB}, 6144
      s_mul_i32 s24, s{sRB}, 192
      s_add_u32 s{sCS}, s{sCS}, s24
      s_mul_i32 s24, s75, 3072
      s_add_u32 s{sCS}, s{sCS}, s24
      s_mul_i32 s24, s77, 96
      s_add_u32 s{sCS}, s{sCS}, s24
      s_add_u32 s{sCS}, s{sCS}, {WS_CSP}
      ''') + f'''s_lshl_b32 s{sFA}, s{sTB}, 2
      s_add_u32 s{sFA}, s{sFA}, {WS_FA if cfg.nca < 0 else WS_FA2}
      s_cmp_eq_u32 s74, 0
      s_cselect_b32 s{sFA}, s{sFA}, {BIG}''')
    A(lambda: tn('s_idx'))

    def cmul(o, d, x, y, t):
        o.append(f'v_pk_mul_f32 {vr(t, 2)}, {vr(x, 2)}, {vr(y, 2)} op_sel:[0,0] op_sel_hi:[1,0]')
        o.append(f'v_pk_fma_f32 {vr(d, 2)}, {vr(x, 2)}, {vr(y, 2)}, {vr(t, 2)} op_sel:[1,1,0] op_sel_hi:[0,1,1] neg_lo:[1,0,0]')
    tv = [0]
    def hmul(o, d, x, y):
        t = 107 + tv[0] % 2; tv[0] += 1
        o.append(f'v_pk_mul_f16 v{t}, v{x}, v{y} op_sel:[0,0] op_sel_hi:[1,0]')
        o.append(f'v_pk_fma_f16 v{d}, v{x}, v{y}, v{t} op_sel:[1,1,0] op_sel_hi:[0,1,1] neg_lo:[1,0,0]')
    def put(o, row, r):
        if cfg.kw: o.append(f'ds_write_b32 v9, v{r} offset:{272*row}')
        else: o.append(lambda: (setm0('ks', 's_mov_b32 m0, s25'), p(f'ds_write_addtid_b32 v{r} offset:{272*row}')))
    w_set = []
    A = w_set.append
    for i in (6, 0, 1, 2, 3, 4, 5, 7): A(f'v_lshlrev_b32 v{vPar + i}, 16, v{vPar + i}')
    A(lambda: tn('s_par'))
    ld = vPar + 6
    A(f's_mov_b32 s24, {LOG2E}'); A(f'v_mul_f32 v1, s24, v{ld}'); A(f'v_fma_f32 v2, v{ld}, s24, -v1')
    A(f'v_fmac_f32 v2, {LOG2E_LO}, v{ld}'); A('v_exp_f32 v1, v1'); A(f'v_mul_f32 v2, {LN2}, v2'); A('v_fmac_f32 v1, v1, v2')
    A('v_cvt_pk_bf16_f32 v1, v1, v1'); A('v_and_b32 v1, 0xffff0000, v1')
    for i in range(4): A(f'v_mul_f32 v{vPar + i}, v{vPar + i}, v1')
    cmul(w_set, Wv, vPar + 4, vPar + 2, T0)
    A(f'v_mul_f32 v{LAM}, s24, v{vPar}'); A(f'v_mul_f32 v{LAM + 1}, {INV2PI}, v{vPar + 1}')
    A(f'v_max_f32 v8, |v{Wv}|, |v{Wv + 1}|')
    mx = [f'v_max_u32_dpp v8, v8, v8 {m} row_mask:0xf bank_mask:0xf' for m in DP]
    for (dst, n) in (((P1, 1), (E1, 256)) if cfg.gk else ((P1, 1), (Q1, 8), (E1, 256))):
        if n == 1: A(f'v_exp_f32 v1, v{LAM}'); A(f'v_fract_f32 v2, v{LAM + 1}')
        else:
            lit = {8: 0x41000000, 256: 0x43800000}[n]
            A(f'v_mul_f32 v1, {lit}, v{LAM}'); A(f'v_mul_f32 v2, {lit}, v{LAM + 1}'); A('v_exp_f32 v1, v1'); A('v_fract_f32 v2, v2')
        if mx: A(mx.pop(0))
        A('v_cos_f32 v3, v2'); A(f'v_sin_f32 v{dst + 1}, v2')
        if mx: A(mx.pop(0))
        A(f'v_mul_f32 v{dst}, v1, v3'); A(f'v_mul_f32 v{dst + 1}, v1, v{dst + 1}')
    for k in range(4): A(f'v_readlane_b32 s{26 + k}, v8, {16*k}')
    cmul(w_set, P2, P1, P1, T0); cmul(w_set, E2, E1, E1, T1)
    A(f's_max_u32 s26, s26, s27\ns_max_u32 s28, s28, s29\ns_max_u32 s26, s26, s28\ns_lshr_b32 s26, s26, 23\ns_sub_u32 s26, 266, s26\ns_min_u32 s26, s26, 253')
    A(f's_sub_u32 s27, 254, s26\ns_lshl_b32 s27, s27, 23\ns_lshl_b32 s26, s26, 23')
    cmul(w_set, P4, P2, P2, T0); cmul(w_set, E4, E2, E2, T1)
    A(f'v_mul_f32 v{Wv}, s26, v{Wv}'); A(f'v_mul_f32 v{Wv + 1}, s26, v{Wv + 1}')
    if not cfg.gk: cmul(w_set, Q2, Q1, Q1, T0)
    cmul(w_set, E8, E4, E4, T1)
    for (h, f) in ((hW, Wv), (hP1, P1), (hE1, E1), (hP2, P2)): A(f'v_cvt_pk_f16_f32 v{h}, v{f}, -v{f + 1}')
    if not cfg.gk: cmul(w_set, Q4, Q2, Q2, T0)
    for (h, f) in ((hE2, E2), (hP4, P4)): A(f'v_cvt_pk_f16_f32 v{h}, v{f}, -v{f + 1}')
    if not cfg.gk: cmul(w_set, Q8, Q4, Q4, T0)
    for (h, f) in ((hE4, E4), (hE8, E8)): A(f'v_cvt_pk_f16_f32 v{h}, v{f}, -v{f + 1}')
    if not cfg.gk:
        cmul(w_set, Q16, Q8, Q8, T0)
        for (j, f) in ((1, Q1), (2, Q2), (4, Q4), (8, Q8), (16, Q16)): A(f'v_cvt_pk_f16_f32 v{hq(j)}, v{f}, v{f + 1}')
    w_k = []
    keep = {0: hW, 1: 96, 2: 97, 3: 98, 8: 99, 9: 100, 12: 101, 14: 102}
    ov = [0]
    rows = [(1, 0, hP1), (8, 0, hE1), (2, 0, hP2), (12, 0, hE2), (3, 1, hP2), (9, 8, hP2), (14, 8, hE2), (4, 0, hP4), (5, 1, hP4), (6, 2, hP4),
            (7, 3, hP4), (10, 8, hP4), (11, 9, hP4), (13, 12, hP4), (15, 14, hP4), (16, 0, hE4), (17, 8, hE4), (18, 12, hE4), (19, 14, hE4), (20, 0, hE8)]
    put(w_k, 0, hW)
    pend = None
    for (row, src, fac) in rows:
        if row in keep: d = keep[row]
        else: d = 103 + ov[0] % 4; ov[0] += 1
        hmul(w_k, d, keep[src], fac)
        if pend: put(w_k, *pend)
        pend = (row, d)
    put(w_k, *pend)
    for ks in range(8): w_k.append(f'ds_read_b128 {vr(AFr + 4*ks, 4)}, v{vSR} offset:{32*ks}')
    if not cfg.gk:
        w_k.append('v_mov_b32 v1, 0x3c00'); put(w_k, 0, 1)
        for j in (1, 2, 4, 8, 16): put(w_k, j, hq(j))
        pend = None
        for j in [3, 5, 6, 7] + list(range(9, 16)) + list(range(17, 32)):
            hb = 1 << (j.bit_length() - 1)
            if j < 16: d = hq(j)
            else: d = 103 + ov[0] % 4; ov[0] += 1
            hmul(w_k, d, hq(j - hb), hq(hb))
            if pend: put(w_k, *pend)
            pend = (j, d)
        put(w_k, *pend)
        for ks in range(8): w_k.append(f'ds_read_b128 {vr(BFr + 4*ks, 4)}, v{vSR} offset:{32*ks}')
    if cfg.gk == 2:
        for ks in range(8): w_k.append(f'ds_read_b128 {vr(BFr + 4*ks, 4)}, v{vSR} offset:{32*ks}')
    for ks in range(8):
        w_k.append(f'v_mfma_f32_32x32x16_f16 {vr(DK, 16)}, {vr(AFr + 4*ks, 4)}, {vr(BFr + 4*ks, 4)}, {"0" if ks == 0 else vr(DK, 16)}')
    def two_way(f0, f1):
        L1 = p.newlabel('HF'); L2 = p.newlabel('HFX')
        p(f's_cmp_eq_u32 s77, 0\ns_cbranch_scc0 {L1}')
        p.cond_begin(); f0(); p(f's_branch {L2}'); p.cond_end()
        p.label(L1)
        p.cond_begin(); f1(); p.cond_end()
        p.label(L2)
    def xadr0():
        p(f'''s_sub_u32 s18, s{sT0}, 12
          s_add_u32 s19, s18, 512
          v_lshl_add_u32 v1, v0, 5, s18
          v_lshl_add_u32 v2, v0, 4, s19
          v_min_u32 v21, v1, v2
          v_lshrrev_b32 v1, 5, v0
          v_add_u32 v2, 31, v0
          v_mad_i32_i24 v22, v1, -4, v21
          v_lshrrev_b32 v2, 6, v2
          v_mad_i32_i24 v23, v1, -8, v21
          v_lshl_add_u32 v20, v2, 2, v21
          v_mad_i32_i24 v24, v1, -12, v21
          v_lshrrev_b32 v1, 1, v0
          v_mul_u32_u24 v1, {CST - 32}, v1
          v_add_u32 v25, v1, v{vXB}
          v_mov_b64 v[4:5], 0
          v_mov_b64 v[6:7], 0''')
    def xadr1():
        p(f'''s_add_u32 s18, s{sT0}, 1528
          s_add_u32 s19, s{sT0}, 2044
          v_min_u32 v1, 1, v0
          v_lshl_add_u32 v20, v0, 3, s18
          v_lshl_add_u32 v22, v0, 2, s19
          v_and_b32 v2, 1, v0
          v_lshl_add_u32 v21, v1, 2, v20
          v_lshl_add_u32 v24, v1, 2, v22
          v_lshl_add_u32 v23, v2, 2, v22''')
    def exp0():
        p('''ds_read2_b32 v[80:81], v20 offset0:0 offset1:1
          ds_read_b32 v82, v20 offset:8
          ds_read_b32 v83, v21 offset:12
          ds_read2_b32 v[84:85], v22 offset0:4 offset1:5
          ds_read_b32 v86, v22 offset:24
          ds_read_b32 v87, v23 offset:28
          ds_read2_b32 v[88:89], v24 offset0:8 offset1:9
          ds_read_b32 v90, v24 offset:40''')
        p('s_mov_b64 exec, 0xff\nds_write_b128 v25, v[4:7]\ns_mov_b64 exec, -1')
        for g in (3, 2, 1, 0):
            d = 104 + 4*g
            for j in range(4): p(f'v_cvt_pk_bf16_f32 v{d + j}, v{83 - g + 2*j}, v{84 - g + 2*j}')
            p(f'ds_write_b128 v{vXB}, {vr(d, 4)} offset:{32 + CST*g}')
    def exp1():
        p('''ds_read2_b32 v[82:83], v20 offset0:2 offset1:3
          ds_read_b32 v84, v20 offset:16
          ds_read2_b32 v[86:87], v22 offset0:1 offset1:2
          ds_read_b32 v88, v23 offset:4
          ds_read2_b32 v[90:91], v22 offset0:65 offset1:66
          ds_read_b32 v92, v23 offset:260
          ds_read2_b32 v[80:81], v21 offset0:0 offset1:1
          ds_read_b32 v89, v24''')
        a_, b_, c_, d_, e_ = 80, 81, 82, 83, 84
        seqB = {-3: a_, -2: b_, -1: c_, 0: c_, 1: c_, 2: c_, 3: d_, 4: d_, 5: d_, 6: e_, 7: e_}
        def seqC(j, j1, X, a): return {-3: a, -2: j, -1: j, 0: j, 1: j, 2: j, 3: j, 4: X, 5: j1, 6: j1, 7: j1}
        passes = [(seqB, 104, 1024), (seqC(86, 87, 88, 89), 108, 2048), (seqC(90, 91, 92, 90), 112, 3072)]
        cur = {}
        for g in range(4):
            for (sq, q, off) in passes:
                for j in range(4):
                    pr = (sq[2*j - g], sq[2*j + 1 - g])
                    if cur.get(q + j) != pr: p(f'v_cvt_pk_bf16_f32 v{q + j}, v{pr[0]}, v{pr[1]}'); cur[q + j] = pr
                p(f'ds_write_b128 v{vXB}, {vr(q, 4)} offset:{32 + off + CST*g}')
    def dump(r):
        for i in range(6): p(f'v_mul_f32 v{80 + i}, s27, v{r + i}')
        p(f'ds_write_b128 v{vDW}, v[80:83]\nds_write_b64 v{vDW}, v[84:85] offset:1024')
    w_k.append(lambda: two_way(lambda: (xadr0(), dump(DK + 6)), lambda: (xadr1(), dump(DK))))
    w_T = [f'ds_read_b128 v[80:83], v{vDR}', f'ds_read_b64 v[84:85], v{vDR} offset:1024']
    def t0():
        for i in range(6): p(f'v_fma_f32 v{80 + i}, v{DK + i}, s27, v{80 + i}')
        one_lane(lambda: p(f'v_add_f32 v80, v80, v{vPar + 7}'))
        p(f'ds_write_b128 v{vTY}, v[80:83]\nds_write_b64 v{vTX}, v[84:85]')
    def t1():
        for i in range(6): p(f'v_fma_f32 v{80 + i}, v{DK + 6 + i}, s27, v{80 + i}')
        p(f'ds_write_b64 v{vTX}, v[80:81]\nds_write_b32 v{vTY}, v82')
        p(f's_mov_b32 exec_hi, 0\nds_write2_b32 v{vTY}, v83, v84 offset0:32 offset1:64\nds_write_b32 v{vTY}, v85 offset:384\ns_mov_b64 exec, -1')
    def bar(s, h):
        tn(f's_w{s}')
        p.wait_vm(h); tn(f's_l{s}')
        if cfg.tch & 32 and cfg.spos < s <= cfg.spos + cfg.sskip: assert s <= 4; p('s_barrier')
        else: p('s_waitcnt lgkmcnt(0)\ns_barrier')
        tn(f's_b{s}')
    sKC, sXT = 21, 18
    w_mid = []
    A = w_mid.append
    A('v_lshrrev_b32 v1, 4, v0'); A('v_and_b32 v2, 15, v0'); A('v_bfe_u32 v3, v0, 2, 2'); A('v_and_b32 v8, 3, v0')
    A(f'v_mul_u32_u24 v3, {CST}, v3'); A('v_lshl_add_u32 v3, v8, 3, v3'); A('v_mad_i32_i24 v3, v1, -16, v3')
    A(f's_mul_i32 s{sKC}, s75, {CCH}\ns_add_u32 s{sKC}, s{sKC}, {KS}\ns_lshl_b32 s72, s77, 8\ns_add_u32 s72, s72, s{sKC}\ns_add_u32 s72, s72, 56')
    A(f'v_add_u32 v{vCA}, s72, v3')
    A(f'v_add_u32 v{vXB}, s{sKC}, v{vL16}')
    A('v_lshl_add_u32 v3, v2, 1, v1')
    A(f's_lshl_b32 s72, s77, 4\ns_sub_u32 s72, 30, s72\ns_lshl_b32 s28, s75, 9\ns_add_u32 s28, s28, {UP}')
    A(f'v_add_u32 v{vUB + 3}, s72, v3')
    def ub(rr):
        o = [f'v_subrev_u32 v{vUB + 3}, 4, v{vUB + 3}'] if rr else []
        return o + [f'v_and_b32 v8, 32, v{vUB + 3}', f'v_add_u32 v8, v8, v{vUB + 3}', f'v_lshl_add_u32 v{vUB + rr}, v8, 4, s28']
    w_mid += ub(0) + ub(1)
    w_gap = ub(2) + ub(3)
    A = w_gap.append
    A(f's_lshl_b32 s72, s74, 2\ns_add_u32 s72, s72, {MISC}'); A(f'v_mov_b32 v{vF}, s72'); A(f'v_xor_b32 v7, 4, v{vF}')
    A('v_lshrrev_b32 v1, 4, v0'); A('v_and_b32 v2, 15, v0')
    A('v_and_b32 v3, 1, v1'); A('v_lshlrev_b32 v3, 9, v3'); A('v_lshl_add_u32 v3, v2, 5, v3'); A('v_lshrrev_b32 v8, 1, v1')
    A(f'v_lshl_add_u32 v{vYS}, v8, 4, v3')
    if not cfg.gx:
        A('v_and_b32 v3, 3, v0'); A('v_xor_b32 v3, v3, v1'); A('v_lshlrev_b32 v3, 4, v3'); A('v_lshrrev_b32 v8, 2, v0'); A(f'v_lshl_add_u32 v{vXS}, v8, 10, v3')
    if cfg.ydma:
        A('v_lshrrev_b32 v3, 3, v0'); A(f'v_and_b32 v8, 0x7f, v{vWd}'); A(f'v_lshl_add_u32 v{vYL}, v3, 12, v8')
        A(f's_lshl_b32 s72, s77, 11\ns_add_u32 s72, s72, s{sKC}\ns_add_u32 s19, s72, 12288\ns_add_u32 s14, s72, 8192')
    else:
        A('v_lshrrev_b32 v3, 3, v0'); A('v_and_b32 v8, 7, v0'); A(f'v_lshlrev_b32 v8, 4, v8'); A(f'v_lshl_add_u32 v{vYL}, v3, 12, v8')
        A(f'v_and_b32 v8, 0x7f, v{vWd}'); A('v_lshl_add_u32 v8, v3, 7, v8')
        A(f's_lshl_b32 s72, s77, 11\ns_add_u32 s72, s72, s{sKC}\ns_add_u32 s19, s72, 12288\ns_add_u32 s72, s72, 8192')
        A(f'v_add_u32 v{vYW}, s72, v8')
    if not cfg.gx:
        A(f's_lshl_b32 s{sXT}, s{sRB2}, 16\ns_lshl_b32 s72, s77, 15\ns_add_u32 s{sXT}, s{sXT}, s72')
        A(f's_lshl_b32 s72, s{sCB2}, 7\ns_add_u32 s{sXT}, s{sXT}, s72\ns_lshl_b32 s72, s75, 6')
        A(f's_add_u32 s{sXT}, s{sXT}, s72\ns_add_u32 s20, s{sXT}, {16384 - 1024}\ns_mov_b32 s{XD + 2}, 0x200000')
    A(f's_lshl_b32 s12, s{sCB2}, 18\ns_lshl_b32 s13, s74, 16\ns_add_u32 s12, s12, s13')
    A(f's_lshl_b32 s13, s{sRB2}, 7\ns_add_u32 s12, s12, s13\ns_add_u32 s12, s12, {WS_YT}\ns_add_u32 s13, s12, {32768 - 1024*cfg.ydma}')
    if not cfg.ypois:
        fl = f'''s_lshr_b32 s{sFYo}, s2, 3
          s_lshl_b32 s{sFYo}, s{sFYo}, 1
          s_add_u32 s{sFYo}, s{sFYo}, s77
          s_lshl_b32 s{sFYo}, s{sFYo}, 1
          s_add_u32 s{sFYo}, s{sFYo}, s75
          s_lshl_b32 s{sFYo}, s{sFYo}, 3
          s_and_b32 s24, s2, 7
          s_add_u32 s{sFYo}, s{sFYo}, s24
          s_lshl_b32 s{sFYo}, s{sFYo}, {cfg.fsh}
          s_add_u32 s{sFYo}, s{sFYo}, {WS_FY}
          s_lshl_b32 s{sFYi}, s{sCB2}, 2
          s_add_u32 s{sFYi}, s{sFYi}, s74
          s_lshl_b32 s{sFYi}, s{sFYi}, 1
          s_lshr_b32 s24, s{sRB2}, 4
          s_add_u32 s{sFYi}, s{sFYi}, s24
          s_lshl_b32 s{sFYi}, s{sFYi}, {4 + cfg.fsh}
          s_add_u32 s{sFYi}, s{sFYi}, {WS_FY}'''.split('\n')
        if cfg.ncy >= 0:
            fl = f'''s_lshr_b32 s{sFYo}, s2, 3
          s_lshl_b32 s{sFYo}, s{sFYo}, 1
          s_add_u32 s{sFYo}, s{sFYo}, s77
          s_lshl_b32 s{sFYo}, s{sFYo}, {2 + cfg.ncy}
          s_add_u32 s{sFYo}, s{sFYo}, s75
          s_lshl_b32 s{sFYo}, s{sFYo}, 3
          s_and_b32 s24, s2, 7
          s_add_u32 s{sFYo}, s{sFYo}, s24
          s_lshl_b32 s{sFYo}, s{sFYo}, 2
          s_add_u32 s{sFYo}, s{sFYo}, {WS_FY}
          s_lshl_b32 s{sFYi}, s{sCB2}, 2
          s_add_u32 s{sFYi}, s{sFYi}, s74
          s_lshl_b32 s{sFYi}, s{sFYi}, 1
          s_lshr_b32 s24, s{sRB2}, 4
          s_add_u32 s{sFYi}, s{sFYi}, s24
          s_lshl_b32 s{sFYi}, s{sFYi}, {cfg.ncy}
          s_and_b32 s24, s{sRB2}, {(1 << cfg.ncy) - 1}
          s_add_u32 s{sFYi}, s{sFYi}, s24
          s_lshl_b32 s{sFYi}, s{sFYi}, 7
          s_add_u32 s{sFYi}, s{sFYi}, {WS_FY}'''.split('\n')
        for i in range(0, len(fl), 3): A('\n'.join(fl[i:i + 3]))
    w_adr = []
    A = w_adr.append
    A('v_lshrrev_b32 v3, 3, v0'); A('v_and_b32 v8, 7, v0')
    A('v_bfe_u32 v18, v0, 4, 1'); A('v_lshlrev_b32 v18, 2, v18'); A('v_xor_b32 v8, v8, v18'); A('v_lshlrev_b32 v8, 4, v8')
    A(f'v_lshl_add_u32 v{vWd}, v3, 10, v8')
    A('v_and_b32 v3, 31, v0'); A('v_lshrrev_b32 v8, 5, v0'); A('v_lshlrev_b32 v8, 4, v8'); A(f'v_lshl_add_u32 v{vUo}, v3, {4 + xs}, v8')
    A(rot_setup())
    A(f'''s_lshl_b32 s{sX4}, s74, 12
      s_mul_i32 s{sX3}, s74, 3072
      s_lshl_b32 s{sX1}, s74, 10
      s_mul_i32 s{sWs}, s75, {43*16384}
      s_lshl_b32 s72, s77, 13
      s_add_u32 s{sWs}, s{sWs}, s72
      s_lshl_b32 s72, s{sCB2}, 7
      s_add_u32 s{sWs}, s{sWs}, s72
      s_add_u32 s{sWe}, s{sWs}, {43*16384}
      s_lshl_b32 s72, s{sROT}, 14
      s_add_u32 s{sWc}, s{sWs}, s72''')
    wdh = {}
    def wd_dma(n):
        base, stride = piece_loc(n)
        setm0(('wd', n), f's_add_u32 m0, s{ {4096: sX4, 3072: sX3, 1024: sX1}[stride] }, {base}')
        wdh[n] = p(f'buffer_load_dwordx4 v{vWd}, {srd(WD)}, s{sWc} offen lds')
        if n < 42: p(f's_add_u32 s{sWc}, s{sWc}, 16384\ns_cmp_eq_u32 s{sWc}, s{sWe}\ns_cselect_b32 s{sWc}, s{sWs}, s{sWc}')
    k = len(w_adr)
    npre = 0
    nm = len(w_k) - 9
    blk = w_idxB + w_mid
    ipos = min(cfg.ipos, nm)
    assert cfg.apos <= ipos
    tail = w_k[nm:]
    nmix = min(cfg.mix, len(blk)); mixb = blk[len(blk) - nmix:]; blk = blk[:len(blk) - nmix]
    t2 = []
    for i in range(8):
        t2.append(tail[i]); q = -(-len(mixb) // (8 - i)); t2 += mixb[:q]; mixb = mixb[q:]
    Wl = w_k[:cfg.apos] + w_adr + w_k[cfg.apos:ipos] + blk + w_k[ipos:nm] + t2 + [tail[8], lambda: tn('s_dump'), ('P', C_D)]
    iadr = cfg.apos + k
    Wl += [('C', C_D), lambda: tn('s_cd')] + w_T + [lambda: (two_way(t0, t1), tn('s_t')), ('P', C_T), ('C', C_T), lambda: (tn('s_ct'), two_way(exp0, exp1), tn('s_exp')), ('P', C_E)]
    if cfg.nok: Wl = w_adr + [('P', C_E)]; iadr = 0
    cuts = [0, cfg.c0, cfg.c1, cfg.c2, cfg.c3, cfg.c4, cfg.c5, cfg.c6, cfg.c7, len(Wl)]
    if cfg.nok: cuts = [0, 0, 0, 0, 20, 40, 60, k, k, len(Wl)]
    assert cuts == sorted(cuts) and iadr <= cfg.c6 and cuts[-2] < len(Wl), (iadr, len(Wl))
    if cfg.verbose: print('len Wl', len(Wl), 'adr', k, 'w_k', len(w_k), 'idx', len(w_idx), len(w_idxB), 'set', len(w_set))
    if cfg.verbose: print('sync', [(i, x) for i, x in enumerate(Wl) if isinstance(x, tuple)])
    stg = lambda i: max(j for j in range(9) if cuts[j] <= i)
    if cfg.gk == 2:
        ia = max(i for i, x in enumerate(Wl) if isinstance(x, str) and x.startswith(f'ds_read_b128 {vr(AFr + 28, 4)}'))
        ib = min(i for i, x in enumerate(Wl) if isinstance(x, str) and x.startswith(f'ds_read_b128 {vr(BFr, 4)}'))
        if cfg.verbose: print('AFr last', ia, 'BFr first', ib, 'G done before B', gacc[1])
        assert stg(ia) <= cfg.gga and stg(ib) - 1 >= gacc[1], (ia, ib, gacc)
    ppos = {x[1]: i for i, x in enumerate(Wl) if isinstance(x, tuple) and x[0] == 'P'}
    cpos = {x[1]: i for i, x in enumerate(Wl) if isinstance(x, tuple) and x[0] == 'C'}
    def sync_item(x):
        kind, c = x
        reg, tgt = (vCk, 2) if c in (C_D, C_T) else (vM, 4)
        need = c not in cpos or stg(ppos[c]) == stg(cpos[c])
        if not need: return lambda: None
        if kind == 'P': return lambda: lds_add(reg, c, vOne)
        return lambda: lds_spin(reg, c, tgt, 1)
    Wl = [sync_item(x) if isinstance(x, tuple) else x for x in Wl]
    stage = {j - 1: Wl[cuts[j]:cuts[j + 1]] for j in range(9)}
    pro = w_idx + ([] if cfg.nok == 1 else w_set) + stage[-1]
    seg(pro[:cfg.i0], d0)
    tn('s_dma0')
    seg(pro[cfg.i0:cfg.d1]); seg(pro[cfg.d1:], d1)
    csh = [None]
    assert cfg.nca < 0 or cfg.kw
    fapo = f'0 offen offset:{WS_FA}' if cfg.nca < 0 else f's{sFA} offen'
    for sb in range(6):
        if sb == 1: mktag()
        if sb == cfg.rho + 1 and (cfg.rho > 1 or cfg.fab == 2) and not cfg.gcs: p.wait_vm(csh[0])
        bar(sb, slabh[sb])
        setprio((cfg.sprio >> sb) & 1)
        dm = dma_items(sb + 2)
        if sb == 0 and cfg.gk == 1:
            for ks in range(8): hb_ = p(f'ds_read_b128 {vr(BFr + 4*ks, 4)}, v{vSB} offset:{32*ks}')
            for _ in range(cfg.nbw):
                if stage[0]: emit(stage[0].pop(0))
            p.wait_ds(hb_)
        if sb == cfg.rho and not cfg.gcs:
            p(f'ds_read_b128 {vr(vCSr, 4)}, v{vCSr}')
            def cst():
                p('s_mov_b64 exec, 63')
                csh[0] = p(f'buffer_store_dwordx4 {vr(vCSr, 4)}, v{vL16}, {srd(WS)}, s{sCS} offen sc1')
                p('s_mov_b64 exec, -1')
            dm.insert(2 if cfg.rho == 1 and cfg.fab == 3 else cfg.csp, cst)
        if sb == max(cfg.fab, cfg.rho + 1):
            if cfg.nca < 0:
                p(f'v_mov_b32 v{vCSr}, s{sTAG}\nv_mov_b32 v{vCSr + 1}, s{sFA}')
                one_lane(lambda: p(f'buffer_store_dword v{vCSr}, v{vCSr + 1}, {srd(WS)}, 0 offen sc1'))
            else:
                dm.insert(cfg.fpos, f'''v_mov_b32 v{vCSr}, s{sTAG}
                  v_mul_u32_u24 v{vCSr + 1}, {cfg.fas}, v0
                  {f's_bfm_b64 exec, {1 << cfg.nca}, 0' if cfg.nca < 6 else ''}
                  buffer_store_dword v{vCSr}, v{vCSr + 1}, {srd(WS)}, s{sFA} offen sc1
                  s_mov_b64 exec, -1
                  s_lshr_b32 s{sFA}, s2, 3
                  s_lshl_b32 s{sFA}, s{sFA}, 2
                  s_add_u32 s{sFA}, s{sFA}, s74
                  s_lshl_b32 s{sFA}, s{sFA}, 3
                  s_and_b32 s78, s2, 7
                  s_add_u32 s{sFA}, s{sFA}, s78
                  s_and_b32 s{sFA}, s{sFA}, {(1 << cfg.nca) - 1}
                  s_mul_i32 s{sFA}, s{sFA}, {cfg.fas}
                  s_add_u32 s{sFA}, s{sFA}, {WS_FA2}''')
        if cfg.tch & 32 and sb == cfg.spos:
            def stouch():
                p(f's_mul_i32 s12, s74, {11*128}\ns_min_u32 s12, s12, {32*128}\ns_mul_i32 s13, s2, {43*128}\ns_add_u32 s12, s12, s13')
                for i in range(11): p(f's_buffer_load_dword s79, {srd(WD)}, s12 offset:{128*i}')
            dm.insert(3 if sb == 1 else 1, stouch)
        if cfg.npf and cfg.pf0 <= sb < cfg.pf0 + cfg.npf:
            q = sb - cfg.pf0; nl = -(-86 // cfg.npf)
            def pfx(q=q, nl=nl):
                if q == 0: p(f's_lshr_b32 s12, s2, 3\ns_lshl_b32 s12, s12, 2\ns_add_u32 s12, s12, s74\ns_mul_i32 s12, s12, {86*128}\nv_lshlrev_b32 v252, 7, v0')
                else: p(f's_add_u32 s12, s12, {nl*128}')
                p(f's_bfm_b64 exec, {nl}, 0\nbuffer_load_dword v{253 + q % 3}, v252, {srd(WD)}, s12 offen\ns_mov_b64 exec, -1')
            dm.insert(cfg.pfi, pfx)
        if sb == 5: p(f'buffer_load_dwordx4 {vr(vPoll, 4)}, v{vL16}, {srd(WS)}, {fapo} sc1')
        seg(stage[sb], dm)
    bar(6, slabh[6])
    setprio((cfg.sprio >> 6) & 1)
    def fa_check():
        for j in range(4): p(f'v_xor_b32 v{vPoll + j}, s{sTAG}, v{vPoll + j}')
        p(f'v_or3_b32 v{vPoll}, v{vPoll}, v{vPoll + 1}, v{vPoll + 2}\nv_or_b32 v{vPoll}, v{vPoll}, v{vPoll + 3}\nv_cmp_ne_u32 vcc, 0, v{vPoll}\ns_cmp_eq_u64 vcc, 0')
    Lx = p.newlabel('FAX'); L = p.newlabel('FA')
    fa_check()
    p(f's_cbranch_scc1 {Lx}')
    p.cond_begin()
    p(f's_mov_b32 s79, {cfg.spin}')
    p.label(L)
    p(f'buffer_load_dwordx4 {vr(vPoll, 4)}, v{vL16}, {srd(WS)}, {fapo} sc1')
    fa_check()
    p(f's_cbranch_scc1 {Lx}')
    p(f's_sub_u32 s79, s79, 1\ns_cmp_lg_u32 s79, 0\ns_cbranch_scc1 {L}')
    p.cond_end()
    p.label(Lx)
    tn('s_fa')
    p(f'''s_mul_i32 s15, s{sCB}, 6144
      s_add_u32 s15, s15, s{sX1}
      s_add_u32 s15, s15, {WS_CSP}
      s_add_u32 s16, s{sX1}, {GR2}
      s_cmp_lt_u32 s74, 3
      s_cselect_b32 m0, s16, {UR2}
      s_add_u32 s16, s15, 4096''')
    p(f'buffer_load_dwordx4 v{vL16}, {srd(WS)}, s15 offen sc1 lds')
    p(f'''s_lshl_b32 s15, s{sRB}, 10
      s_add_u32 s15, s15, {WS_ST}
      s_cmp_lt_u32 s74, 2
      s_cselect_b32 s15, s16, s15
      s_min_u32 s16, s{sX1}, 2048
      s_add_u32 m0, s16, {UR2 + 1024}''')
    sth = p(f'buffer_load_dwordx4 v{vL16}, {srd(WS)}, s15 offen sc1 lds')
    uh = [None]
    def u_dma(k):
        if k == 0:
            p(f'''s_lshr_b32 s13, s2, {2 + xs}
              s_lshl_b32 s13, s13, 3
              s_and_b32 s14, s2, 7
              s_add_u32 s13, s13, s14
              s_lshl_b32 s13, s13, {12 + xs}
              s_bfe_u32 s14, s2, {0x10000*(xs - 1) + 3}
              s_lshl_b32 s14, s14, 5
              s_add_u32 s13, s13, s14
              s_lshl_b32 s14, s74, {10 + xs}
              s_add_u32 s13, s13, s14
              s_lshl_b32 s14, s74, 11
              s_add_u32 s13, s13, {WS_XNT}''')
        elif cfg.xa > 2: p(f's_add_u32 s13, s13, {512*cfg.xa - 1024}')
        setm0('u', f's_add_u32 m0, s14, {UP + 1024}')
        uh[0] = p(f'buffer_load_dwordx4 v{vUo}, {srd(WS)}, s13 offen offset:{1024*k} sc1 lds')
    m0[0] = None
    L = p.newlabel('EP')
    p(f's_or_b32 s15, s2, s74\ns_cmp_eq_u32 s15, 0\ns_cbranch_scc0 {L}')
    p.cond_begin()
    p(f'v_mov_b32 v194, s{sTAG}\nv_mov_b32 v195, {WS_E}')
    one_lane(lambda: p(f'buffer_store_dword v194, v195, {srd(WS)}, 0 offen sc1'))
    p.cond_end()
    p.label(L)
    zp = [f's_lshr_b32 s15, s{sX1}, 2\ns_add_u32 s15, s15, {UP}\nv_add_u32 v192, s15, v{vL16}', 'v_mov_b64 v[196:197], 0', 'v_mov_b64 v[198:199], 0',
          's_mov_b64 exec, 0xffff\nds_write_b128 v192, v[196:199]\ns_mov_b64 exec, -1']
    dq = [(lambda n=n: wd_dma(n)) for n in range(16)]
    dq[cfg.upos:cfg.upos] = [lambda: u_dma(0), lambda: u_dma(1)]
    assert cfg.na6 <= 6 + (2 if cfg.upos <= 6 else 0)
    seg(zp + stage[6], dq[:cfg.na6])
    bar(7, slabh[7])
    setprio((cfg.sprio >> 7) & 1)
    w7 = list(stage[7])
    w7.insert(min(cfg.cs_at, len(w7) - 1), lambda: (p.wait_vm(sth), lds_add(vM, C_S, vOne), tn('s_cs')))
    w7.insert(len(w7) - 1, lambda: p.wait_vm(uh[0]))
    cwsig = lambda: (p.wait_vm(wdh[15]), lds_add(vCk, C_W, vOne), tn('s_cw'))
    if cfg.cw_k < 0:
        assert -cfg.cw_k >= cfg.bspan
        w7.insert(min(-cfg.cw_k, len(w7)), cwsig)
    assert cfg.bspan <= len(w7) - 2
    dq7 = dq[cfg.na6:]; dqc = dq7[cfg.nb7:]; dq7 = dq7[:cfg.nb7]
    seg(w7[:cfg.bspan], dq7)
    tn('s_bi')
    seg(w7[cfg.bspan:])
    setprio(cfg.cprio)
    lds_spin(vM, C_E, 4, 1)
    tn('s_ce')
    CAf, CBf, CD = [32, 64], [96, 128], 192
    def cfrags(rr):
        o = []; st_ = rr & 1
        for k in range(8):
            o.append(f'ds_read_b128 {vr(CBf[st_] + 4*k, 4)}, v{vUB + rr} offset:{1024*k}')
            for s in range(2):
                o.append(f'ds_read_b64_tr_b16 {vr(CAf[st_] + 4*k + 2*s, 2)}, v{vCA} offset:{512*k + 64*rr + 8*(1 - s)}')
        return o
    cev = {}
    def addc(k, x): cev.setdefault(min(k, 144), []).append(x)
    for i, x in enumerate(dqc): addc(cfg.bc0 + cfg.bcs*i, x)
    if cfg.cw_k >= 0:
        assert cfg.cw_k > cfg.bc0 + cfg.bcs*len(dqc)
        addc(cfg.cw_k, cwsig)
    addc(3*36 + 28, lambda: one_lane(lambda: p(f'ds_write_b32 v{vF}, v{vOne} offset:{F1}')))
    for x in cfrags(0): p(x)
    kk = 0
    for rr in range(4):
        nxt = cfrags(rr + 1) if rr < 3 else []
        st_ = rr & 1
        pairs = sorted(((a, b) for a in range(8) for b in range(8 - a)), key=lambda ab: (max(ab), ab[0]))
        seen = set()
        for k, (a, b) in enumerate(pairs):
            c = a + b; d = CD + 4*c
            cc = '0' if (rr == 0 and c not in seen) else vr(d, 4)
            seen.add(c)
            p(f'v_mfma_f32_16x16x32_bf16 {vr(d, 4)}, {vr(CAf[st_] + 4*a, 4)}, {vr(CBf[st_] + 4*b, 4)}, {cc}')
            if nxt and k >= 2: p(nxt.pop(0))
            elif w_gap and kk >= cfg.gap0: p(w_gap.pop(0))
            for x in cev.get(kk, []): emit(x)
            kk += 1
        assert not nxt
    assert not w_gap
    tn('s_conv')
    if cfg.yprio >= 0: setprio(cfg.yprio)
    lds_spin(7, F1, 1, 6)
    xdma = lambda: p(f's_mov_b32 m0, s19\nbuffer_load_dwordx4 v{vXS}, {srd(XD)}, s{sXT} offen lds\nbuffer_load_dwordx4 v{vXS}, {srd(XD)}, s20 offen offset:1024 lds')
    if cfg.ydma and not cfg.gx: xdma()
    Lb = p.newlabel('XB'); Le = p.newlabel('XE')
    p(f's_cmp_eq_u32 s77, 0\ns_cbranch_scc0 {Lb}')
    for hf in range(2):
        if hf == 1: p.label(Lb)
        p.cond_begin()
        snd, kp = (4, 0) if hf == 0 else (0, 4)
        for k in range(4): p(f'ds_write_b128 v{vXB}, {vr(CD + 4*(snd + k), 4)} offset:{4096*hf + 1024*k}')
        one_lane(lambda: p(f'ds_write_b32 v{vF}, v{vOne} offset:{F2}'))
        lds_spin(7, F2, 1, 6)
        tn('s_f2')
        for k in range(4): p(f'ds_read_b128 {vr(32 + 4*k, 4)}, v{vXB} offset:{4096*(1 - hf) + 1024*k}')
        for k in range(4):
            for j in range(4): p(f'v_add_f32 v{32 + 4*k + j}, v{32 + 4*k + j}, v{CD + 4*(kp + k) + j}')
            for j in range(2): p(f'v_cvt_pk_bf16_f32 v{48 + 2*k + j}, v{32 + 4*k + 2*j}, v{32 + 4*k + 2*j + 1}')
            if cfg.ypois:
                for j in range(2): p(f'v_min_u32 v{48 + 2*k + j}, -2, v{48 + 2*k + j}')
            if k & 1:
                r = 48 + 2*(k - 1)
                p(f'v_permlane16_swap_b32 v{r}, v{r + 2}\nv_permlane16_swap_b32 v{r + 1}, v{r + 3}')
                p(f'buffer_store_dwordx4 {vr(r, 4)}, v{vYS}, {srd(WS)}, s{sYB} offen offset:{512*(kp + k - 1)} sc1')
        if hf == 0: p(f's_branch {Le}')
        p.cond_end()
    p.label(Le)
    tn('s_yst')
    for x in cev.get(144, []): emit(x)
    if not cfg.ydma and not cfg.gx: xdma()
    assert not (cfg.ydma and cfg.ypois)
    if cfg.ypois:
        p('s_waitcnt vmcnt(0)')
        tn('s_yack')
        lds_add(vCk, C_X, vOne)
        L = p.newlabel('YP'); Lx = p.newlabel('YPX')
        p(f's_mov_b32 s79, {cfg.spin}')
        p.label(L)
        for k in range(2): p(f'buffer_load_dwordx4 {vr(32 + 4*k, 4)}, v{vYL}, {srd(WS)}, s{12 + k} offen sc1')
        p('''v_max3_u32 v1, v32, v33, v34
          v_max3_u32 v1, v1, v35, v36
          v_max3_u32 v1, v1, v37, v38
          v_max_u32 v1, v1, v39
          v_cmp_eq_u32 vcc, -1, v1
          s_cmp_eq_u64 vcc, 0''')
        p(f's_cbranch_scc1 {Lx}')
        p(f's_sub_u32 s79, s79, 1\ns_cmp_lg_u32 s79, 0\ns_cbranch_scc1 {L}')
        p.label(Lx)
        tn('s_fy')
    else:
        if cfg.ncy >= 0: p(f'v_mov_b32 v1, s{sTAG}\nv_lshlrev_b32 v2, 7, v0')
        p('s_waitcnt vmcnt(0)')
        tn('s_yack')
        if cfg.ncy >= 0: p(f's_mov_b64 exec, {(1 << (1 << cfg.ncy)) - 1}\nbuffer_store_dword v1, v2, {srd(WS)}, s{sFYo} offen sc1\ns_mov_b64 exec, -1')
        else: flag_store(sFYo)
        if not cfg.gx: lds_add(vCk, C_X, vOne)
        if cfg.spoll & 2: spoll(36, 16, sFYi)
        else: vpoll(16, sFYi)
        tn('s_fy')
        if cfg.ydma:
            p('s_mov_b32 m0, s14')
            for k in range(2): p(f'buffer_load_dwordx4 v{vYL}, {srd(WS)}, s{12 + k} offen offset:{1024*k} sc1 lds')
        else:
            for k in range(2): p(f'buffer_load_dwordx4 {vr(32 + 4*k, 4)}, v{vYL}, {srd(WS)}, s{12 + k} offen sc1')
        p('s_waitcnt vmcnt(0)')
        tn('s_yl')
    if not cfg.ydma:
        for k in range(2): p(f'ds_write_b128 v{vYW}, {vr(32 + 4*k, 4)} offset:{1024*k}')
    lds_add(vCk, C_Y, vOne)
    p('s_waitcnt lgkmcnt(0)')
    tn('s_yw')
    p('s_barrier')
    ts(8)
    finish()
    p.label('L_END')
    p('s_endpgm')
    return p.text()

HEADER = open('cdna_kernels/' + KNAME + '.s.ref').read().split('; Override launch')[0]

def build(cfg):
    k = dict(name=KNAME + '_kernel', grid=(256, 1, 1), block=(512, 1, 1), lds=LDS_SIZE, body=gen(cfg), vgpr=256, sgpr=102, accum=256)
    return build_file([k], header_comment=HEADER)

if __name__ == '__main__':
    cfg = Cfg()
    out = sys.argv[1]
    for a in sys.argv[2:]:
        k, v = a.split('='); setattr(cfg, k, type(getattr(Cfg, k))(int(v, 0)))
    open(out, 'w').write(build(cfg))
```

```python
import sys, copy
from asmlib import build_file, KNAME
from asm2 import Prog

WS_E = 0; WS_FA = 1024; WS_ST = 4096; WS_FH = 0xA00000; WS_FY = 0xA40000; WS_CSP = 32768; WS_FA2 = 0xA80000
WS_XNT = 0x40000; WS_YT = 0x240000; WS_H = 0x440000; WS_DBG = 0x1000000
WS_SIZE = 0x2000000
BIG = 0x40000000
KS = 0; XR = 34816; GR = 83968; UR = 120864; TT = 157760; TCH = 2704; MISC = 163168; LDS_SIZE = 163840
CCH = 17408; CST = 4160
GR2 = GR + 24576; UR2 = UR + 24576; UP = GR2 + 3072; MB = UR2 + 3072; LNX = MISC + 128
C_W, C_R, C_W3, C_Y, C_F, C_D, C_L, C_S, C_G, C_T, C_E, F1, F2, C_X, C_W4 = 0, 8, 16, 24, 32, 40, 48, 52, 56, 72, 64, 80, 96, 112, 120
CSL = LNX
sW = 3
XD, WG, WU, WD, OUT, WS = 36, 40, 44, 48, 52, 56
sTAG, sRB, sCB, sTB, sRB2, sCB2, sROT = 60, 62, 63, 64, 65, 100, 101
def srd(b): return f's[{b}:{b + 3}]'
def vr(a, n): return f'v[{a}:{a + n - 1}]'
LOG2E = 0x3FB8AA3B; LOG2E_LO = 0x32A57060; LN2 = 0x3F317218; INV2PI = 0x3E22F983

class Cfg:
    ts = False
    hwin = 10
    adist = 2
    parfirst = 1
    r2c = 88; r2j = 176; r2x = 22
    xa = 8
    gfa = 0; gfb = 99; gf = 1; gf0 = 2
    d1 = 200
    c0 = 30; c1 = 60; c2 = 90; c3 = 120; c4 = 150; c5 = 180; c6 = 210; c7 = 240
    ipre = 0; ipos = 150; npf = 0; pf0 = 1; pfi = 5
    apos = 150
    sprio = 0xff
    gprio = 7
    gp2 = 0; gp3 = 2
    cprio = 0
    cs_at = 0
    bspan = 40
    cw_k = 0
    pearly = 0; hl = 0; hs = 0; na6 = 2; upos = 0
    i0 = 50
    cfirst = 2
    spoll = 3
    fsh = 2
    ystep = 37
    xstep = 10
    ypois = 0
    wbl2 = 0
    spin = 1 << 16
    tset = 0
    padph = 0; padw = 0; padcyc = 0; rt8 = 0; rt = 0
    nch = -1; ncy = -1
    tch = 0; tpos = 0
    rgrp = 0; omod = 0
    ylate = 0; pkm = 0; xbal = 0; gcs = 0; fab = 3; fpos = 0; nca = -1; fas = 4352; spos = 2; sskip = 2; mf16 = 0; kw = 0; rho = 1; csp = 1; ggs = 10; ggr = 26; gga = 3; gk = 0; gk1 = 37; nbw = 6; gx = 0; yprio = -1
    dpre = 16; dper = 1; dst = 0; dm = 1; ydma = 1
    nb7 = 99; bc0 = 0; bcs = 2; mix = 99; gap0 = 26; cpf = 0; g2x = 0; g2o = 0; hat = 0; verbose = 0; nok = 0; dmaf = 0; nost = 0; wsoff = 0

TSETS = [
  (['g_lns', 'g_b0', 'g_b4', 'g_b8', 'g_hst', 'g_fh'], ['s_b0', 's_b4', 's_b7', 's_ce', 's_conv', 's_fy']),
  (['g_karg', 'g_ln', 'g_lnw', 'g_lnx', 'g_lns', 'g_b0'], ['s_karg', 's_dma0', 's_idx', 's_par', 's_w0', 's_l0']),
  (['g_b0', 'g_b1', 'g_b2', 'g_b3', 'g_b4', 'g_b5'], ['s_w1', 's_l1', 's_w2', 's_l2', 's_w3', 's_l3']),
  (['g_b8', 'g_hst', 'g_ack', 'g_cw', 'g_d', 'g_fh'], ['s_b7', 's_cs', 's_bi', 's_ce', 's_cw', 's_conv']),
  (['g_b4', 'g_b5', 'g_b6', 'g_b7', 'g_b8', 'g_h0'], ['s_w4', 's_w5', 's_w6', 's_fa', 's_w7', 's_l7']),
  (['g_fh', 'g_h0', 'g_n16', 'g_n27', 'g_y', 'g_g2'], ['s_conv', 's_yst', 's_yack', 's_fy', 's_yl', 's_yw']),
  (['g_b8', 'g_corr', 'g_hst', 'g_cw', 'g_pre', 'g_ack'], ['s_w4', 's_l4', 's_w5', 's_l5', 's_w6', 's_l6']),
  (['g_b8', 'g_hst', 'g_c', 'g_ack', 'g_cw', 'g_d'], ['s_dump', 's_cd', 's_t', 's_ct', 's_exp', 's_ce']),
  ([], []),
  (['g_fh', 'g_h0', 'g_s5', 'g_s10', 'g_s20', 'g_s30'], ['s_conv', 's_f2', 's_yst', 's_yack', 's_fy', 's_yl']),
]
def gen(cfg):
    p = Prog()
    def ts(i, real=False):
        if cfg.ts: p(f'{"s_memrealtime" if (real or (cfg.padph and not cfg.padcyc) or (cfg.rt and i not in (1,))) else "s_memtime"} s[{80 + 2 * i}:{81 + 2 * i}]')
    def tn(name):
        for l in TSETS[cfg.tset]:
            if name in l: ts(2 + l.index(name))
            if cfg.ts and name + '#' in l: i = 2 + l.index(name + '#'); p(f's_memtime s[{80 + 2 * i}:{81 + 2 * i}]')
    def one_lane(f):
        p('s_mov_b64 exec, 1'); r = f(); p('s_mov_b64 exec, -1'); return r
    def lds_spin(addr_v, off, target, tmpv):
        L = p.newlabel('SPIN'); Lx = p.newlabel('SPINX')
        p(f's_mov_b32 s79, {cfg.spin * 8}')
        p.label(L)
        p(f'ds_read_b32 v{tmpv}, v{addr_v} offset:{off}')
        p(f'v_readfirstlane_b32 s78, v{tmpv}')
        p(f's_cmp_ge_u32 s78, {target}')
        p(f's_cbranch_scc1 {Lx}')
        p('s_sub_u32 s79, s79, 1')
        p('s_cmp_lg_u32 s79, 0')
        p(f's_cbranch_scc1 {L}')
        p.label(Lx)
    def lds_pre(addr_v, off, tmpv): p(f'ds_read_b32 v{tmpv}, v{addr_v} offset:{off}')
    def lds_post(addr_v, off, target, tmpv):
        Lx = p.newlabel('POK')
        p(f'v_readfirstlane_b32 s78, v{tmpv}\ns_cmp_ge_u32 s78, {target}\ns_cbranch_scc1 {Lx}')
        p.cond_begin(); lds_spin(addr_v, off, target, tmpv); p.cond_end()
        p.label(Lx)
    def lds_add(addr_v, off, onev): one_lane(lambda: p(f'ds_add_u32 v{addr_v}, v{onev} offset:{off}'))
    def emit(x):
        if callable(x): x()
        else: p(x)

    p('s_cmp_ge_u32 s2, 256\ns_cbranch_scc1 L_END')
    p('s_load_dwordx16 s[4:19], s[0:1], 0\ns_load_dwordx16 s[20:35], s[0:1], 64')
    ts(0, True); ts(1)
    p('v_lshrrev_b32 v1, 6, v0')
    p('v_lshlrev_b32 v2, 4, v0')
    p(f'v_readfirstlane_b32 s{sW}, v1')
    p(f'v_cmp_gt_u32 vcc, {(LNX - TT) // 16}, v0')
    p(f'v_add_u32 v2, {TT}, v2')
    p('v_and_b32 v0, 63, v0')
    p('v_mov_b64 v[4:5], 0\nv_mov_b64 v[6:7], 0')
    p('s_mov_b64 exec, vcc')
    p('ds_write_b128 v2, v[4:7]')
    p('s_mov_b64 exec, -1')
    p(f'''s_and_b32 s66, s2, 7
      s_lshr_b32 s67, s2, 3
      s_and_b32 s68, s66, 3
      s_lshr_b32 s69, s66, 2
      s_and_b32 s70, s67, 3
      s_lshl_b32 s71, s68, 2
      s_add_u32 s{sRB}, s71, s70
      s_lshl_b32 s{sRB2}, s68, 3
      s_lshl_b32 s72, s69, 2
      s_add_u32 s{sRB2}, s{sRB2}, s72
      s_add_u32 s{sRB2}, s{sRB2}, s70
      s_lshr_b32 s{sCB2}, s67, 2
      s_mul_i32 s{sCB}, s69, 7
      s_add_u32 s{sCB}, s{sCB}, s{sCB2}
      s_and_b32 s70, s67, 1
      s_add_u32 s71, s71, s70
      s_lshl_b32 s69, s69, 1
      s_add_u32 s71, s71, s69
      s_bfe_u32 s70, s67, 0x10001
      s_add_u32 s70, s70, 14
      s_cmp_lt_u32 s67, 28
      s_cselect_b32 s{sRB}, s{sRB}, s71
      s_cselect_b32 s{sCB}, s{sCB}, s70
      s_lshl_b32 s{sTB}, s{sRB}, 4
      s_add_u32 s{sTB}, s{sTB}, s{sCB}''')
    p(f's_cmp_ge_u32 s{sW}, 4')
    p('s_cbranch_scc1 L_S')
    st0 = (copy.deepcopy(p.vmq), copy.deepcopy(p.dsq))

    def srds(role):
        if cfg.wsoff: p(f's_add_u32 s34, s34, {cfg.wsoff}\ns_addc_u32 s35, s35, 0')
        p(f's_load_dword s{sTAG}, s[34:35], {WS_E}')
        if role == 'S':
            p(f's_cmp_eq_u32 s{sCB}, 15')
            p(f'''s_mov_b32 s{XD}, s4\ns_mov_b32 s{XD+1}, s5\ns_cselect_b32 s{XD+2}, 0, 0x200000\ns_mov_b32 s{XD+3}, 0x20000
              s_mov_b32 s{WG}, s24\ns_mov_b32 s{WG+1}, s25\ns_cselect_b32 s{WG+2}, 0, {512*2752}\ns_mov_b32 s{WG+3}, 0x20000
              s_mov_b32 s{WU}, s26\ns_mov_b32 s{WU+1}, s27\ns_mov_b32 s{WU+2}, s{WG+2}\ns_mov_b32 s{WU+3}, 0x20000''')
    def srds2(role):
        p(f's_mov_b32 s{WS}, s34\ns_mov_b32 s{WS+1}, s35\ns_mov_b32 s{WS+2}, {WS_SIZE}\ns_mov_b32 s{WS+3}, 0x20000')
        p(f's_mov_b32 s{WD}, s28\ns_mov_b32 s{WD+1}, s29\ns_mov_b32 s{WD+2}, {1376*1024}\ns_mov_b32 s{WD+3}, 0x20000')
    def mktag():
        p('s_waitcnt lgkmcnt(0)')
        p(f's_mul_i32 s{sTAG}, s{sTAG}, 0x9E3779B1\ns_add_u32 s{sTAG}, s{sTAG}, 0x7F4A7C15\ns_mov_b32 s{sTAG + 1}, s{sTAG}')
    def rot_setup():
        if cfg.rgrp:
            return f'''s_and_b32 s{sROT}, s{sCB2}, {cfg.rgrp - 1}
          s_mul_i32 s{sROT}, s{sROT}, {43*16 // cfg.rgrp}
          s_bfe_u32 s72, s2, 0x20003
          s_mul_i32 s72, s72, {cfg.r2j}
          s_add_u32 s{sROT}, s{sROT}, s72
          s_and_b32 s72, s2, 7
          s_mul_i32 s72, s72, {cfg.r2x}
          s_add_u32 s{sROT}, s{sROT}, s72
          s_lshr_b32 s{sROT}, s{sROT}, 4
          s_cmp_ge_u32 s{sROT}, 43
          s_cselect_b32 s72, 43, 0
          s_sub_u32 s{sROT}, s{sROT}, s72'''
        return f'''s_mul_i32 s{sROT}, s{sCB2}, {cfg.r2c}
          s_bfe_u32 s72, s2, 0x20003
          s_mul_i32 s72, s72, {cfg.r2j}
          s_add_u32 s{sROT}, s{sROT}, s72
          s_and_b32 s72, s2, 7
          s_mul_i32 s72, s72, {cfg.r2x}
          s_add_u32 s{sROT}, s{sROT}, s72
          s_lshr_b32 s{sROT}, s{sROT}, 4
          s_cmp_ge_u32 s{sROT}, 43
          s_cselect_b32 s72, 43, 0
          s_sub_u32 s{sROT}, s{sROT}, s72'''
    assert (7*cfg.r2c + 3*cfg.r2j + 7*cfg.r2x) // 16 < 86
    def spoll(base, n, soff, issued=False):
        L = p.newlabel('SP'); Lr = p.newlabel('SPR'); Lx = p.newlabel('SPX'); Li = p.newlabel('SPI')
        p(f's_mov_b32 s79, {cfg.spin}')
        if issued: p(f's_branch {Li}')
        p.label(L)
        p(f's_load_dwordx{n} s[{base}:{base + n - 1}], s[34:35], s{soff} glc')
        p.label(Li)
        p('s_waitcnt lgkmcnt(0)')
        for i in range(0, n, 2):
            p(f's_cmp_eq_u64 s[{base + i}:{base + i + 1}], s[{sTAG}:{sTAG + 1}]')
            p(f's_cbranch_scc0 {Lr}' if i < n - 2 else f's_cbranch_scc1 {Lx}')
        p.label(Lr)
        p(f's_sub_u32 s79, s79, 1\ns_cmp_lg_u32 s79, 0\ns_cbranch_scc1 {L}')
        p.label(Lx)
    def vpoll(n, soff):
        L = p.newlabel('VP'); Lx = p.newlabel('VPX')
        p(f'v_and_b32 v1, {n - 1}, v0\nv_lshlrev_b32 v1, {cfg.fsh}, v1\ns_mov_b32 s79, {cfg.spin}')
        p.label(L)
        p(f'buffer_load_dword v2, v1, {srd(WS)}, s{soff} offen sc1')
        p(f'v_cmp_ne_u32 vcc, s{sTAG}, v2\ns_cmp_eq_u64 vcc, 0')
        p(f's_cbranch_scc1 {Lx}')
        p(f's_sub_u32 s79, s79, 1\ns_cmp_lg_u32 s79, 0\ns_cbranch_scc1 {L}')
        p.label(Lx)
    def flag_store(soff):
        p(f'v_mov_b32 v1, s{sTAG}\nv_mov_b32 v2, 0')
        one_lane(lambda: p(f'buffer_store_dword v1, v2, {srd(WS)}, s{soff} offen sc1'))
    def finish():
        if cfg.ts:
            p('s_waitcnt vmcnt(0)')
            ts(9)
            if cfg.rt8: ts(8, True)
            if cfg.rt: p('s_memtime s[66:67]\ns_waitcnt lgkmcnt(0)\ns_sub_u32 s67, s66, s82')
            if cfg.rt and cfg.tset == 8: p('s_sub_u32 s86, s86, s82\ns_sub_u32 s90, s90, s82\ns_sub_u32 s94, s94, s82')
            if cfg.rt: p('s_mov_b32 s82, s67')
            p('s_waitcnt lgkmcnt(0)')
            if cfg.padph:
                L = p.newlabel('PAD'); Lx = p.newlabel('PADX')
                p(f's_cmp_eq_u32 s{sW}, {cfg.padw}\ns_cbranch_scc0 {Lx}')
                if cfg.padcyc: p(f's_sub_u32 s66, s{80 + 2*cfg.padph}, s82\ns_lshr_b32 s66, s66, 2')
                else: p(f's_sub_u32 s66, s{80 + 2*cfg.padph}, s80\ns_lshl_b32 s66, s66, 2')
                p(f's_min_u32 s66, s66, 20000\ns_add_u32 s66, s66, 3000')
                p.label(L)
                p(f's_memrealtime s[68:69]\ns_waitcnt lgkmcnt(0)\ns_sub_u32 s68, s68, s80\ns_cmp_lt_u32 s68, s66\ns_cbranch_scc1 {L}')
                p.label(Lx)
                p('s_endpgm')
                return
            for i in range(10): p(f'v_writelane_b32 v1, s{80 + 2*i}, {i}')
            p(f's_lshl_b32 s66, s2, 3\ns_add_u32 s66, s66, s{sW}\ns_lshl_b32 s66, s66, 6\ns_add_u32 s66, s66, {WS_DBG}')
            p('v_lshlrev_b32 v2, 2, v0')
            p('s_mov_b64 exec, 0x3ff')
            p(f'buffer_store_dword v1, v2, {srd(WS)}, s66 offen')
        p('s_endpgm')
    def piece_loc(n):
        if n >= 27: n -= 27
        groups = [(0, 4, XR + 32768, 4096), (4, 1, UR2 + 4096, 1024), (5, 1, UR2 + 8192, 1024), (6, 4, XR, 4096), (10, 3, GR, 3072),
                  (13, 3, UR, 3072), (16, 4, XR + 16384, 4096), (20, 3, GR + 12288, 3072), (23, 3, UR + 12288, 3072), (26, 1, UR2, 1024)]
        for (n0, cnt, base, stride) in groups:
            if n0 <= n < n0 + cnt: return base + 1024*(n - n0), stride

    vA4, vA3, vA1, vYA, vOut = 8, 10, 12, 14, 15
    vXa, vWg, vWu, vW1, vCS1, vCS2, vH01, vH2, vHl, vCk, vM, vWd, vMB = 16, 20, 21, 22, 23, 24, 25, 26, 27, 28, 29, 30, 31
    FR = [120, 140]
    ACC = 160
    XL, XC, MU, CSA, ONE = 32, 40, 56, 68, 116
    vSt, vXn, vLw, vSo = 60, 61, 62, 63
    LR, LD, PK = 68, 72, 76
    sHc, sHs, sHe, sFo, sFi, sXn, sSt = 6, 7, 8, 9, 10, 12, 14
    sX4, sX3, sX1, sWc, sWs, sWe, sW26 = 36, 37, 38, 39, 40, 41, 42
    xs = {2: 1, 4: 2, 8: 3}[cfg.xa]
    p(f'''v_lshrrev_b32 v6, 4, v0
      v_and_b32 v7, 15, v0
      v_lshlrev_b32 v1, 4, v7
      v_lshl_add_u32 v1, v6, 11, v1
      s_lshl_b32 s66, s{sTB}, 13
      s_lshl_b32 s67, s{sW}, 8
      s_add_u32 s66, s66, s67
      v_add_u32 v64, s66, v1
      v_lshlrev_b32 v{vHl}, 4, v0''')
    p(f's_and_b32 s74, s{sW}, 1\ns_lshr_b32 s75, s{sW}, 1')
    p(f'''v_and_b32 v1, 31, v0
      v_lshrrev_b32 v2, 5, v0
      v_bfe_u32 v3, v0, 1, 3
      v_xor_b32 v3, v3, v2
      s_lshl_b32 s66, s74, 13
      s_add_u32 s66, s66, {XR}
      v_lshl_add_u32 v4, v1, 7, s66''')
    for ks in range(4):
        p(f'v_xor_b32 v5, {2*ks}, v3\nv_lshl_add_u32 v{vXa + ks}, v5, 4, v4')
    p(f'''v_bfe_u32 v3, v0, 2, 2
      v_lshl_add_u32 v3, v2, 3, v3
      v_mul_u32_u24 v3, 192, v3
      v_and_b32 v4, 3, v0
      v_lshl_add_u32 v3, v4, 3, v3
      s_mul_i32 s66, s75, 96
      v_add_u32 v3, s66, v3
      v_bfe_u32 v4, v0, 4, 1
      v_lshl_add_u32 v5, v4, 5, v3
      v_add_u32 v{vWg}, {GR}, v5
      v_add_u32 v{vWu}, {UR}, v5
      v_mul_u32_u24 v4, {UR - GR}, v4
      v_add_u32 v3, {GR + 64}, v3
      v_add_u32 v{vW1}, v3, v4''')
    gP, gLAM, gQ, gT, gBX, gBG = 160, 164, 166, 176, 206, 207
    ghq = lambda j: 180 + j
    gA, gO, gz = 208, 200, 204
    if cfg.gk == 2:
        gP, gLAM, gQ, gT, gBX, gA, gO, gz = 32, 38, 40, 50, 52, 35, 86, 90
        ghq = lambda j: 68 + j
    if cfg.gk:
        p(f'''s_lshr_b32 s66, s2, 3
          s_lshl_b32 s66, s66, 1
          s_add_u32 s66, s66, s75
          s_lshl_b32 s66, s66, 3
          s_and_b32 s67, s2, 7
          s_add_u32 s66, s66, s67
          s_lshl_b32 s67, s66, 8
          s_lshl_b32 s68, s74, 7
          s_add_u32 s67, s67, s68
          v_lshl_add_u32 v208, v0, 1, s67
          s_lshl_b32 s66, s66, 1
          v_mov_b32 v209, s66''')
    p('s_waitcnt lgkmcnt(0)')
    tn('g_karg')
    p(f'''global_load_dwordx4 {vr(XL, 4)}, v64, s[4:5]
      global_load_dwordx4 {vr(XL + 4, 4)}, v64, s[4:5] offset:1024''')
    gw = []
    if cfg.gk:
        A = lambda x: gw.append(x.replace('v208', f'v{gA}').replace('v209', f'v{gA + 1}').replace('v210', f'v{gA + 2}'))
        if cfg.gk == 1:
            p(f'global_load_ushort v{gP + 2}, v209, s[18:19]\nglobal_load_ushort v{gP}, v208, s[6:7]\nglobal_load_ushort v{gP + 1}, v208, s[8:9]')
            for i in (2, 0, 1): A(f'v_lshlrev_b32 v{gP + i}, 16, v{gP + i}')
        else:
            p('global_load_ushort v66, v209, s[18:19]')
            p('global_load_short_d16 v64, v208, s[6:7]')
            p.auto = False
            p('global_load_short_d16_hi v64, v208, s[8:9]')
            p.auto = True
            A(f'v_lshlrev_b32 v{gP + 2}, 16, v66'); A(f'v_lshlrev_b32 v{gP}, 16, v64'); A(f'v_and_b32 v{gP + 1}, 0xffff0000, v64')
        ld = gP + 2
        A(f's_mov_b32 s69, {LOG2E}\nv_mul_f32 v208, s69, v{ld}'); A(f'v_fma_f32 v209, v{ld}, s69, -v208')
        A(f'v_fmac_f32 v209, {LOG2E_LO}, v{ld}'); A('v_exp_f32 v208, v208'); A(f'v_mul_f32 v209, {LN2}, v209'); A('v_fmac_f32 v208, v208, v209')
        A('v_cvt_pk_bf16_f32 v208, v208, v208'); A('v_and_b32 v208, 0xffff0000, v208')
        for i in range(2): A(f'v_mul_f32 v{gP + i}, v{gP + i}, v208')
        A(f'v_mul_f32 v{gLAM}, s69, v{gP}'); A(f'v_mul_f32 v{gLAM + 1}, {INV2PI}, v{gP + 1}')
        A(f'v_mul_f32 v208, 0x41000000, v{gLAM}'); A(f'v_mul_f32 v209, 0x41000000, v{gLAM + 1}'); A('v_exp_f32 v208, v208'); A('v_fract_f32 v209, v209')
        if cfg.gk == 1: A(f's_lshl_b32 s69, s{sW}, 12\ns_add_u32 s69, s69, {XR + 32768}\nv_lshl_add_u32 v{gBX}, v0, 2, s69')
        else: A(f's_mul_i32 s69, s{sW}, 8704\ns_add_u32 s69, s69, {KS}\nv_lshl_add_u32 v{gBX}, v0, 2, s69')
        A('v_cos_f32 v210, v209'); A(f'v_sin_f32 v{gQ + 1}, v209')
        if cfg.gk == 1: A(f's_mul_i32 s69, s{sW}, 3072\ns_add_u32 s69, s69, {GR2}\nv_lshl_add_u32 v{gBG}, v0, 2, s69')
        A(f'v_mul_f32 v{gQ}, v208, v210'); A(f'v_mul_f32 v{gQ + 1}, v208, v{gQ + 1}')
        def gput(row, r):
            if row < 15 or cfg.gk == 2: A(f'ds_write_b32 v{gBX}, v{r} offset:{272*row}')
            elif row < 25: A(f'ds_write_b32 v{gBG}, v{r} offset:{240 + 272*(row - 15)}')
            else: A(f'ds_write_b32 v{gBG}, v{r} offset:{UR2 - GR2 + 112 + 272*(row - 25)}')
        A('v_mov_b32 v210, 0x3c00')
        for k in range(4):
            x = gQ + 2*k
            A(f'v_pk_mul_f32 {vr(gT, 2)}, {vr(x, 2)}, {vr(x, 2)} op_sel:[0,0] op_sel_hi:[1,0]')
            A(f'v_cvt_pk_f16_f32 v{ghq(1 << k)}, v{x}, v{x + 1}')
            A(f'v_pk_fma_f32 {vr(x + 2, 2)}, {vr(x, 2)}, {vr(x, 2)}, {vr(gT, 2)} op_sel:[1,1,0] op_sel_hi:[0,1,1] neg_lo:[1,0,0]')
            if k == 0: gput(0, 210)
            gput(1 << k, ghq(1 << k))
        A(f'v_cvt_pk_f16_f32 v{ghq(16)}, v{gQ + 8}, v{gQ + 9}')
        pend = (16, ghq(16)); ov = 0
        for j in [3, 5, 6, 7] + list(range(9, 16)) + list(range(17, 32)):
            hb = 1 << (j.bit_length() - 1)
            if j < 16: d = ghq(j)
            else: d = gO + ov % 4; ov += 1
            t = gz + j % 2
            A(f'v_pk_mul_f16 v{t}, v{ghq(j - hb)}, v{ghq(hb)} op_sel:[0,0] op_sel_hi:[1,0]')
            A(f'v_pk_fma_f16 v{d}, v{ghq(j - hb)}, v{ghq(hb)}, v{t} op_sel:[1,1,0] op_sel_hi:[0,1,1] neg_lo:[1,0,0]')
            gput(*pend); pend = (j, d)
        gput(*pend)
        if cfg.verbose: print('gw', len(gw))
    if cfg.cpf:
        p('s_getpc_b64 s[68:69]')
        p.label('L_PC')
        p(f'''s_lshr_b32 s66, s2, 3
          s_lshl_b32 s66, s66, 2
          s_add_u32 s66, s66, s{sW}
          s_lshl_b32 s66, s66, 8
          v_lshl_add_u32 v65, v0, 7, s66
          v_min_u32 v65, L_END-L_PC, v65
          s_mov_b64 exec, 3
          global_load_dword v{67 if cfg.gk == 2 else 66}, v65, s[68:69]
          s_mov_b64 exec, -1''')
    def touch():
        p.auto = False
        if cfg.tch & 4: p('v_lshlrev_b32 v65, 21, v0\ns_mov_b64 exec, 0x3e\nglobal_load_dword v67, v65, s[34:35]')
        if cfg.tch & 8:
            p(f'''s_mul_i32 s66, s2, {43*128}
              s_mul_i32 s67, s{sW}, {11*128}
              s_add_u32 s66, s66, s67
              v_lshl_add_u32 v65, v0, 7, s66
              s_cmp_eq_u32 s{sW}, 3
              s_cselect_b32 s67, 10, 11
              s_bfm_b64 exec, s67, 0
              global_load_dword v67, v65, s[28:29]''')
        if cfg.tch & 16:
            p(f'''s_lshl_b32 s66, s2, 2
              s_add_u32 s66, s66, s{sW}
              s_and_b32 s67, s66, 1
              s_lshr_b32 s66, s66, 1
              s_lshl_b32 s66, s66, 7
              s_mul_i32 s67, s67, {WS_FY - WS_FH}
              s_add_u32 s66, s66, s67
              s_add_u32 s66, s66, {WS_FH}
              v_mov_b32 v65, s66
              s_mov_b64 exec, 1
              global_load_dword v67, v65, s[34:35]''')
            assert cfg.nch <= 3 and cfg.ncy <= 3
        p('s_mov_b64 exec, 1')
        if cfg.tch & 1: p(f'global_load_dword v67, v{vHl}, s[28:29]')
        if cfg.tch & 2: p(f'global_load_dword v67, v{vHl}, s[30:31]')
        p('s_mov_b64 exec, -1')
        p.auto = True
    if cfg.tch and cfg.tpos == 0: touch()
    srds('G')
    p(f's_mov_b32 s{WS}, s34\ns_mov_b32 s{WS+1}, s35\ns_mov_b32 s{WS+2}, {WS_SIZE}\ns_mov_b32 s{WS+3}, 0x20000')
    p('s_barrier')
    p(f'''v_and_b32 v3, 3, v0
      v_lshlrev_b32 v3, 4, v3
      v_lshl_add_u32 v3, v6, 6, v3
      v_add_u32 v{vSt}, {LNX}, v3
      s_lshl_b32 s66, s{sW}, 4
      s_add_u32 s66, s66, {LNX}
      v_lshl_add_u32 v{vLw}, v6, 6, s66
      v_lshrrev_b32 v3, {xs}, v7
      v_lshlrev_b32 v3, {15 + xs}, v3
      v_lshl_add_u32 v3, v6, {13 + xs}, v3
      v_and_b32 v4, {cfg.xa - 1}, v7
      v_lshl_add_u32 v{vXn}, v4, 4, v3
      s_lshl_b32 s{sXn}, s{sW}, 19
      s_lshl_b32 s66, s{sTB}, {4 + xs}
      s_add_u32 s{sXn}, s{sXn}, s66
      s_add_u32 s{sXn}, s{sXn}, {WS_XNT}
      s_add_u32 s{sXn + 1}, s{sXn}, {4096*cfg.xa}
      s_lshl_b32 s{sSt}, s{sTB}, 6
      s_add_u32 s{sSt}, s{sSt}, {WS_ST}
      s_cmp_eq_u32 s{sW}, 0
      s_cselect_b32 s66, 0, {BIG}
      v_lshl_add_u32 v{vSo}, v6, 4, s66
      s_mul_i32 s66, s75, 96
      {'' if cfg.gcs else f's_add_u32 s66, s66, {CSL}'}
      v_mul_u32_u24 v3, {3072 if cfg.gcs else 192}, v2
      v_lshl_add_u32 v3, v1, 1, v3
      v_add_u32 v{vCS1}, s66, v3
      v_bfe_u32 v3, v0, 4, 1
      v_mul_u32_u24 v3, {3072 if cfg.gcs else 192}, v3
      v_lshl_add_u32 v3, v7, 1, v3
      s_add_u32 s66, s66, 64
      v_add_u32 v{vCS2}, s66, v3
      v_mov_b32 v{vM}, {MISC}
      v_mov_b32 v7, 1
      s_mov_b32 s77, 0x3f803f80''')
    for r in range(4): p(f'v_mov_b32 v{ONE + r}, s77')
    if cfg.nch < 0:
        hflag_adr = f'''s_lshl_b32 s{sFo}, s{sRB}, 1
      s_add_u32 s{sFo}, s{sFo}, s74
      s_lshl_b32 s{sFo}, s{sFo}, 5
      s_lshl_b32 s66, s{sCB}, 1
      s_add_u32 s{sFo}, s{sFo}, s66
      s_add_u32 s{sFo}, s{sFo}, s75
      s_lshl_b32 s{sFo}, s{sFo}, {cfg.fsh}
      s_add_u32 s{sFo}, s{sFo}, {WS_FH}
      s_lshl_b32 s{sFi}, s{sRB2}, 5
      s_mul_i32 s66, s75, 14
      s_add_u32 s{sFi}, s{sFi}, s66
      s_lshl_b32 s{sFi}, s{sFi}, {cfg.fsh}
      s_add_u32 s{sFi}, s{sFi}, {WS_FH}'''
    else:
        hflag_adr = f'''s_lshl_b32 s{sFo}, s{sRB}, 1
      s_add_u32 s{sFo}, s{sFo}, s74
      s_lshl_b32 s{sFo}, s{sFo}, {8 + cfg.nch}
      s_add_u32 s{sFo}, s{sFo}, {WS_FH}
      s_lshl_b32 s11, s{sCB}, 1
      s_add_u32 s11, s11, s75
      s_lshl_b32 s{sFi}, s{sRB2}, 1
      s_add_u32 s{sFi}, s{sFi}, s75
      s_lshl_b32 s{sFi}, s{sFi}, {cfg.nch}
      s_lshl_b32 s66, s{sCB2}, 1
      s_add_u32 s66, s66, s74
      s_and_b32 s66, s66, {(1 << cfg.nch) - 1}
      s_add_u32 s{sFi}, s{sFi}, s66
      s_lshl_b32 s{sFi}, s{sFi}, 7
      s_add_u32 s{sFi}, s{sFi}, {WS_FH}'''
    fill = f'''s_lshl_b32 s66, s74, 9
      s_add_u32 s66, s66, {MB}
      v_lshl_add_u32 v{vMB}, v1, 3, s66
      s_mul_i32 s66, s{sCB}, 6
      s_mul_i32 s67, s75, 3
      s_add_u32 s66, s66, s67
      s_cmp_le_u32 s66, 84 @ s_cselect_b32 s67, 0, {BIG}
      v_add_u32 v{vH01}, s67, v{vHl}
      s_cmp_le_u32 s66, 83 @ s_cselect_b32 s67, 0, {BIG}
      v_add_u32 v{vH2}, s67, v{vHl}
      s_lshl_b32 s67, s{sRB}, 2
      s_lshl_b32 s68, s74, 1
      s_add_u32 s67, s67, s68
      s_mul_i32 s67, s67, 86
      s_add_u32 s66, s66, s67
      s_lshl_b32 s66, s66, 10
      s_add_u32 s70, s66, {WS_H}
      s_add_u32 s71, s70, {86*1024}
      v_bfe_u32 v3, v0, 2, 2
      v_lshl_add_u32 v3, v2, 2, v3
      v_bfe_u32 v4, v3, 1, 1
      v_lshlrev_b32 v4, 6, v4
      v_lshl_add_u32 v3, v3, 7, v4
      v_bfe_u32 v4, v0, 4, 1
      v_lshl_add_u32 v3, v4, 5, v3
      v_and_b32 v4, 3, v0
      v_lshl_add_u32 v3, v4, 3, v3
      s_lshl_b32 s66, s74, 6
      v_xor_b32 v4, s66, v3
      s_mul_i32 s66, s75, {CCH}
      s_add_u32 s66, s66, {KS + 8192}
      v_add_u32 v{vYA}, s66, v4
      s_lshl_b32 s66, s75, 6
      v_xor_b32 v3, s66, v3
      v_xor_b32 v4, 64, v3
      s_lshl_b32 s66, s75, 13
      s_add_u32 s66, s66, {XR}
      s_mul_i32 s67, s75, 6144
      s_add_u32 s67, s67, {GR}
      s_lshl_b32 s68, s75, 11
      s_add_u32 s68, s68, {UR2}
      v_add_u32 v{vA4}, s66, v3
      v_add_u32 v{vA4 + 1}, s66, v4
      v_add_u32 v{vA3}, s67, v3
      v_add_u32 v{vA3 + 1}, s67, v4
      v_add_u32 v{vA1}, s68, v3
      v_add_u32 v{vA1 + 1}, s68, v4
      s_lshl_b32 s66, s{sRB2}, 16
      s_lshl_b32 s67, s74, 15
      s_add_u32 s66, s66, s67
      s_lshl_b32 s67, s{sCB2}, 7
      s_add_u32 s66, s66, s67
      s_lshl_b32 s67, s75, 6
      s_add_u32 s66, s66, s67
      v_lshlrev_b32 v3, 10, v1
      v_lshl_add_u32 v3, v2, 4, v3
      v_add_u32 v{vOut}, s66, v3
      s_mov_b32 s15, s66
      s_lshl_b32 s66, s75, 2
      s_add_u32 s66, s66, {MISC}
      v_mov_b32 v{vCk}, s66
      v_lshrrev_b32 v3, 3, v0
      v_and_b32 v4, 7, v0
      v_bfe_u32 v5, v0, 4, 1
      v_lshlrev_b32 v5, 2, v5
      v_xor_b32 v4, v4, v5
      v_lshlrev_b32 v4, 4, v4
      v_lshl_add_u32 v{vWd}, v3, 10, v4
      {rot_setup()}
      s_lshl_b32 s{sHs}, s{sRB2}, 1
      s_add_u32 s{sHs}, s{sHs}, s74
      s_mul_i32 s{sHs}, s{sHs}, 86
      s_mul_i32 s66, s75, 43
      s_add_u32 s{sHs}, s{sHs}, s66
      s_lshl_b32 s{sHs}, s{sHs}, 10
      s_add_u32 s{sHs}, s{sHs}, {WS_H}
      s_add_u32 s{sHe}, s{sHs}, {43*1024}
      s_lshl_b32 s66, s{sROT}, 10
      s_add_u32 s{sHc}, s{sHs}, s66
      {hflag_adr}
      s_lshl_b32 s{sX4}, s{sW}, 12
      s_mul_i32 s{sX3}, s{sW}, 3072
      s_lshl_b32 s{sX1}, s{sW}, 10
      s_mul_i32 s{sWs}, s75, {43*16384}
      s_lshl_b32 s66, s74, 13
      s_add_u32 s{sWs}, s{sWs}, s66
      s_lshl_b32 s66, s{sCB2}, 7
      s_add_u32 s{sWs}, s{sWs}, s66
      s_add_u32 s{sWe}, s{sWs}, {43*16384}
      s_add_u32 s66, s{sROT}, 16
      s_cmp_ge_u32 s66, 43 @ s_cselect_b32 s67, 43, 0
      s_sub_u32 s66, s66, s67
      s_lshl_b32 s66, s66, 14
      s_add_u32 s{sWc}, s{sWs}, s66
      s_mov_b32 s{WD}, s28
      s_mov_b32 s{WD+1}, s29
      s_mov_b32 s{WD+2}, {1376*1024}
      s_mov_b32 s{WD+3}, 0x20000
      s_mov_b32 s{OUT}, s30
      s_mov_b32 s{OUT+1}, s31
      s_mov_b32 s{OUT+2}, 0x200000
      s_mov_b32 s{OUT+3}, 0x20000'''
    if cfg.gcs:
        assert not cfg.gx and not cfg.hat
        fill += f'''
          s_mul_i32 s44, s{sCB}, 6144
          s_mul_i32 s66, s{sRB}, 192
          s_add_u32 s44, s44, s66
          s_add_u32 s44, s44, {WS_CSP}
          s_cmp_eq_u32 s74, 0 @ s_cselect_b32 s44, s44, {BIG}'''
    fill = [x.strip().replace(' @ ', '\n') for x in fill.split('\n')]
    nv = max(i for i, x in enumerate(fill) if x.startswith('v_')) + 1
    for _ in range(nv + cfg.gfa): p(fill.pop(0))
    tn('g_adr')
    DP = ('quad_perm:[1,0,3,2]', 'quad_perm:[2,3,0,1]', 'row_half_mirror', 'row_mirror')
    for r in range(2): p(f'v_dot2_f32_bf16 v{1 + r}, v{XL + 4*r}, s77, 0')
    tn('g_ln')
    for j in range(1, 4):
        for r in range(2): p(f'v_dot2_f32_bf16 v{1 + r}, v{XL + 4*r + j}, s77, v{1 + r}')
    un = []
    for r in range(2):
        for j in range(4):
            un += [f'v_lshlrev_b32 v{XC + 8*r + 2*j}, 16, v{XL + 4*r + j}', f'v_and_b32 v{XC + 8*r + 2*j + 1}, 0xffff0000, v{XL + 4*r + j}']
    for _ in range(3): p(un.pop(0))
    for m in DP:
        for r in range(2): p(f'v_add_f32_dpp v{1 + r}, v{1 + r}, v{1 + r} {m} row_mask:0xf bank_mask:0xf')
        for _ in range(2): p(un.pop(0))
    while un: p(un.pop(0))
    p(f'v_mul_f32 v{MU}, 0x3c000000, v1\nv_mul_f32 v{MU + 2}, 0x3c000000, v2')
    for j in range(4):
        for r in range(2):
            x = XC + 8*r + 2*j
            p(f'v_pk_add_f32 {vr(x, 2)}, {vr(x, 2)}, {vr(MU + 2*r, 2)} op_sel_hi:[1,0] neg_lo:[0,1] neg_hi:[0,1]')
    for j in range(4):
        for r in range(2):
            x = XC + 8*r + 2*j
            if j == 0: p(f'v_pk_mul_f32 {vr(2 + 2*r, 2)}, {vr(x, 2)}, {vr(x, 2)}')
            else: p(f'v_pk_fma_f32 {vr(2 + 2*r, 2)}, {vr(x, 2)}, {vr(x, 2)}, {vr(2 + 2*r, 2)}')
    for r in range(2): p(f'v_add_f32 v{MU + 2*r + 1}, v{2 + 2*r}, v{3 + 2*r}')
    for m in DP:
        for r in range(2): p(f'v_add_f32_dpp v{MU + 2*r + 1}, v{MU + 2*r + 1}, v{MU + 2*r + 1} {m} row_mask:0xf bank_mask:0xf')
    p(f's_mov_b32 exec_lo, 0x10001\ns_mov_b32 exec_hi, 0x10001\nds_write_b128 v{vLw}, {vr(MU, 4)}')
    p(f's_mov_b64 exec, 1\nds_add_u32 v{vM}, v7 offset:{C_L}\ns_mov_b64 exec, -1')
    tn('g_lnw')
    for _ in range(cfg.gk1 if cfg.gk == 1 else 0):
        if gw: p(gw.pop(0))
    lds_spin(vM, C_L, 4, 1)
    tn('g_lnx')
    R2 = (0, 1)
    p(f'ds_read_b128 {vr(XL, 4)}, v{vSt}')
    for r in R2: p(f'v_mov_b32 v{LR + 2*r}, 0x3727c5ac')
    for r in R2: p(f'v_add_f32_dpp v{36 + r}, v{XL + 2*r}, v{XL + 2*r} quad_perm:[1,0,3,2] row_mask:0xf bank_mask:0xf')
    for r in R2: p(f'v_add_f32_dpp v{36 + r}, v{36 + r}, v{36 + r} quad_perm:[2,3,0,1] row_mask:0xf bank_mask:0xf')
    for r in R2: p(f'v_mul_f32 v{36 + r}, 0x3e800000, v{36 + r}')
    for r in R2: p(f'v_sub_f32 v{38 + r}, v{XL + 2*r}, v{36 + r}')
    for r in R2: p(f'v_mul_f32 v{38 + r}, v{38 + r}, v{38 + r}')
    for r in R2: p(f'v_fmac_f32 v{XL + 2*r + 1}, 0x43000000, v{38 + r}')
    for r in R2: p(f'v_sub_f32 v{LD + 2*r}, v{MU + 2*r}, v{36 + r}')
    for r in R2: p(f'v_add_f32_dpp v{38 + r}, v{XL + 2*r + 1}, v{XL + 2*r + 1} quad_perm:[1,0,3,2] row_mask:0xf bank_mask:0xf')
    for r in R2: p(f'v_cvt_pk_bf16_f32 v{MU + 2*r}, -v{36 + r}, -v{36 + r}')
    for r in R2: p(f'v_add_f32_dpp v{38 + r}, v{38 + r}, v{38 + r} quad_perm:[2,3,0,1] row_mask:0xf bank_mask:0xf')
    for r in R2: p(f'v_fmac_f32 v{LR + 2*r}, 0x3b000000, v{38 + r}')
    for r in R2: p(f'v_rsq_f32 v{LR + 2*r}, v{LR + 2*r}')
    for r in R2: p(f'v_mul_f32 v{LD + 2*r}, v{LD + 2*r}, v{LR + 2*r}')
    for j in range(4):
        for r in R2:
            x = XC + 8*r + 2*j
            p(f'v_pk_fma_f32 {vr(x, 2)}, {vr(x, 2)}, {vr(LR + 2*r, 2)}, {vr(LD + 2*r, 2)} op_sel_hi:[1,0,0]')
    pos = lambda i: 4*(i & 1) + 2*(i >> 2) + ((i >> 1) & 1)
    for z in range(2):
        for i in range(z, 8, 2): p(f'v_cvt_pk_bf16_f32 v{PK + pos(i)}, v{XC + i}, v{XC + 8 + i}')
    for r in R2: p(f'v_mul_f32 v{MU + 2*r + 1}, v{LR + 2*r}, v{LR + 2*r}')
    for k in range(2):
        for z in range(2): p(f'v_permlane32_swap_b32 v{PK + 4*z + k}, v{PK + 4*z + k + 2}')
    for z in range(2):
        for k in range(2): p(f'v_permlane16_swap_b32 v{PK + 4*z + 2*k}, v{PK + 4*z + 2*k + 1}')
    for z in range(2):
        if not cfg.nost & 1: p(f'buffer_store_dwordx4 {vr(PK + 4*z, 4)}, v{vXn}, {srd(WS)}, s{sXn + z} offen sc1')
    p(f's_mov_b32 exec_lo, 0x10001\ns_mov_b32 exec_hi, 0x10001\nbuffer_store_dwordx4 {vr(MU, 4)}, v{vSo}, {srd(WS)}, s{sSt} offen sc1\ns_mov_b64 exec, -1')
    tn('g_lns')
    if cfg.tch and cfg.tpos == 1: touch()
    while gw and cfg.gk == 1: p(gw.pop(0))
    tn('g_k')
    for _ in range(cfg.gfb):
        if fill: p(fill.pop(0))
    mktag()
    p('s_barrier')
    tn('g_b0')
    def reads(g):
        s, ks = g >> 2, g & 3; sl = s % 3; b = FR[g & 1]
        wo = sl * 12288 + ks * 16 * 192
        xr = lambda tt: f'ds_read_b128 {vr(b + 12 + 4*tt, 4)}, v{vXa + ks} offset:{sl*16384 + tt*4096}'
        if g == 32:
            xr = lambda tt: '\n'.join(f'ds_read2_b32 {vr(b + 12 + 4*tt + 2*k, 2)}, v{vMB} offset0:{64*tt} offset1:{64*tt}' for k in range(2))
        wr = lambda T, j: f'ds_read_b64_tr_b16 {vr(b + 4*T + 2*j, 2)}, v{(vWg, vW1, vWu)[T]} offset:{wo + j*768}'
        if g == 32: return [xr(0), wr(0, 0), wr(0, 1), wr(2, 0), wr(2, 1), wr(1, 0), wr(1, 1), xr(1)]
        return [xr(0), wr(0, 0), wr(0, 1), xr(1), wr(1, 0), wr(1, 1), wr(2, 0), wr(2, 1)]
    extra = {}
    def add(g, m, item): extra.setdefault((g, m), []).append(item)
    add(4*cfg.fab - 1, 1, 's_waitcnt vmcnt(0)')
    if cfg.tch & 31 and cfg.tpos >= 2: add(cfg.tpos, 2, touch)
    add(31, 0, lambda: lds_pre(vM, C_S, 1))
    add(31, 2, lambda: (lds_post(vM, C_S, 4, 1), tn('g_b8')))
    for g in range(32):
        nxt = reads(g + 1)
        if (g & 3) == 3:
            dist = {2: nxt[0:2], 3: nxt[2:4], 4: nxt[4:6], 5: nxt[6:8]}
            if g < 31: add(g, 2, 'BARRIER')
        else:
            dist = {0: nxt[0:2], 1: nxt[2:3], 2: nxt[3:5], 3: nxt[5:6], 4: nxt[6:7], 5: nxt[7:8]}
        for m, l in dist.items():
            for x in l: add(g, m, x)
    csm = lambda g, T: f'v_mfma_f32_32x32x16_bf16 {vr(CSA + 16*T, 16)}, {vr(ONE, 4)}, {vr(FR[g & 1] + 4*T, 4)}, {"0" if g & 1 == 0 else vr(CSA + 16*T, 16)}'
    if cfg.rho == 1:
        for g in range(2):
            for T in range(3): add(g, 2*T + 1, ('MFMA', csm(g, T)))
    else:
        def csc(g):
            L = p.newlabel('CS')
            p(f's_bfe_u32 s66, s{sRB}, {0x10000*(cfg.rho.bit_length() - 1) + 1}\ns_cmp_eq_u32 s66, {g >> 2}\ns_cbranch_scc0 {L}')
            p.cond_begin()
            for T in range(3): p(csm(g, T))
            p.cond_end()
            p.label(L)
        for j in range(cfg.rho):
            for g in (4*j, 4*j + 1): add(g, 5, ('MFMA', lambda g=g: csc(g)))
    gc = 4*(cfg.rho - 1)
    add(gc + 2, 3, f'v_permlane32_swap_b32 v{CSA}, v{CSA + 32}')
    add(gc + 2, 4, f'v_cvt_pk_bf16_f32 v{CSA}, v{CSA}, v{CSA + 16}')
    if cfg.gcs:
        add(gc + 2, 5, f'buffer_store_short v{CSA}, v{vCS1}, {srd(WS)}, s44 offen sc1')
        add(gc + 3, 0, f's_mov_b32 exec_hi, 0\nbuffer_store_short_d16_hi v{CSA}, v{vCS2}, {srd(WS)}, s44 offen sc1\ns_mov_b32 exec_hi, -1')
    else:
        add(gc + 2, 5, f'ds_write_b16 v{vCS1}, v{CSA}')
        add(gc + 3, 0, f'ds_write_b16_d16_hi v{vCS2}, v{CSA}')
    for x in reads(0): p(x)
    nb = 0
    gacc = [0, 0]
    assert cfg.gk != 2 or (cfg.ggs >= 4 and not fill)
    for g in range(32):
        b = FR[g & 1]
        for m in range(6):
            T, tt = m >> 1, m & 1
            a = ACC + 16 * (2*T + tt)
            c = '0' if g == 0 else vr(a, 16)
            if cfg.mf16:
                for z in range(2):
                    a4 = a + 8*(g & 1) + 4*z
                    p(f'v_mfma_f32_16x16x32_bf16 {vr(a4, 4)}, {vr(b + 4*T, 4)}, {vr(b + 12 + 4*(tt ^ z), 4)}, {"0" if g < 2 else vr(a4, 4)}')
            else: p(f'v_mfma_f32_32x32x16_bf16 {vr(a, 16)}, {vr(b + 4*T, 4)}, {vr(b + 12 + 4*tt, 4)}, {c}')
            late = []
            ex = extra.get((g, m), [])
            for x in ex:
                if x == 'BARRIER':
                    p('s_waitcnt lgkmcnt(0)\ns_barrier'); nb += 1
                    if nb == cfg.gprio: p('s_setprio 2')
                    tn(f'g_b{nb}')
                elif isinstance(x, tuple): late.append(x[1])
                else: emit(x)
            if g >= cfg.gf0 and 'BARRIER' not in ex:
                for _ in range(cfg.gf):
                    if fill: p(fill.pop(0))
            if gw and g >= cfg.ggs and 'BARRIER' not in ex:
                gacc[0] += cfg.ggr
                while gw and gacc[0] >= 10:
                    if gw[0].startswith('ds_write') and nb < cfg.gga: gacc[0] = 0; break
                    gacc[0] -= 10; p(gw.pop(0))
                    if not gw:
                        gacc[1] = nb + 1
                        if cfg.verbose: print('gw ends at', g, m)
            for x in late: emit(x)
        if g == 29: assert not fill
    for tt in range(2):
        for T in (0, 2, 1):
            a = ACC + 16 * (2*T + tt)
            p(f'v_mfma_f32_32x32x16_bf16 {vr(a, 16)}, {vr(FR[0] + 4*T, 4)}, {vr(FR[0] + 12 + 4*tt, 4)}, {vr(a, 16)}')
    lds_add(vM, C_G, 7)
    tn('g_corr')
    hmod = '' if cfg.wbl2 else [' sc1', ' sc0 sc1', ' nt sc1', ' nt sc0 sc1'][cfg.hs]
    for tt in range(2):
        for q in range(3):
            if q < 2: ga, ua = ACC + 16*tt + 8*q, ACC + 16*(4 + tt) + 8*q
            else: ga, ua = ACC + 16*(2 + tt), ACC + 16*(2 + tt) + 8
            if cfg.pkm:
                for e in range(0, 8, 2): p(f'v_pk_mul_f32 {vr(ga + e, 2)}, {vr(ga + e, 2)}, {vr(ua + e, 2)}')
            else:
                for e in range(8): p(f'v_mul_f32 v{ga + e}, v{ga + e}, v{ua + e}')
            for j in range(4): p(f'v_cvt_pk_bf16_f32 v{ga + j}, v{ga + 2*j}, v{ga + 2*j + 1}')
            hst = p(f'buffer_store_dwordx4 {vr(ga, 4)}, v{vH2 if q == 2 else vH01}, {srd(WS)}, s{70 + tt} offen offset:{1024*q}{hmod}')
    if cfg.wbl2:
        p('s_waitcnt vmcnt(0)')
        hst = p('buffer_wbl2 sc1')
    tn('g_hst')
    if cfg.gp2 != 2: p(f's_setprio {cfg.gp2}')
    HW = cfg.hwin; HB = 176; AC2 = 224; RF = 32; NRF = 16; RING = cfg.adist + 1
    assert HW <= 12 and RING <= 3
    def afr(n): return RF + 8 * (n if n < NRF else (n - NRF) % RING)
    def aread(n, dt, s):
        base, stride = piece_loc(n)
        reg, rb_ = {4096: (vA4, XR), 3072: (vA3, GR), 1024: (vA1, UR2)}[stride]
        p(f'ds_read_b64_tr_b16 {vr(afr(n) + 4*dt + 2*s, 2)}, v{reg + dt} offset:{base - rb_ + stride*s}')
    gwh = {}
    def g_wd(n):
        base, stride = piece_loc(n)
        p(f's_add_u32 m0, s{ {4096: sX4, 3072: sX3, 1024: sX1}[stride] }, {base}')
        gwh[n] = p(f'buffer_load_dwordx4 v{vWd}, {srd(WD)}, s{sWc} offen lds')
        adv = f's_add_u32 s{sWc}, s{sWc}, 16384\ns_cmp_eq_u32 s{sWc}, s{sWe}\ns_cselect_b32 s{sWc}, s{sWs}, s{sWc}'
        if n < 42: p(adv)
    def grpC():
        lds_spin(vM, C_G, 4, 1)
        for n in range(16, 27): g_wd(n)
        tn('g_c')
    def ackflag():
        if cfg.nch >= 0:
            p(f'''v_lshrrev_b32 v1, {cfg.nch}, v0
              v_mul_u32_u24 v1, 14, v1
              v_sub_u32 v1, s11, v1
              v_cmp_gt_u32 vcc, 16, v1
              v_lshlrev_b32 v2, 7, v0
              v_lshl_add_u32 v2, v1, 2, v2
              v_mov_b32 v1, s{sTAG}
              s_and_b32 vcc_lo, vcc_lo, {(1 << (2 << cfg.nch)) - 1}
              s_mov_b32 vcc_hi, 0''')
        p.wait_vm(hst)
        tn('g_ack')
        if cfg.nch >= 0: p(f's_mov_b64 exec, vcc\nbuffer_store_dword v1, v2, {srd(WS)}, s{sFo} offen sc1\ns_mov_b64 exec, -1')
        else: flag_store(sFo)
        p(f'v_lshrrev_b32 v1, 10, v{vOut}\nv_lshlrev_b32 v1, 3, v1\ns_movk_i32 s66, {WS_ST + 4}')
        p(f'buffer_load_dword v160, v1, {srd(WS)}, s66 offen sc1')
    def preread():
        lds_spin(vCk, C_W, 2, 1)
        tn('g_cw')
        for n in range(NRF):
            for dt in range(2):
                for s_ in range(2): aread(n, dt, s_)
        lds_add(vCk, C_R, 7)
        tn('g_pre')
    for x in {0: (ackflag, grpC, preread), 1: (grpC, ackflag, preread), 2: (grpC, preread, ackflag), 3: (preread, ackflag, grpC), 4: (preread, grpC, ackflag)}[cfg.cfirst]: x()
    if cfg.gx:
        p(f'''v_and_b32 v1, 3, v0
          v_lshrrev_b32 v2, 4, v0
          v_xor_b32 v1, v1, v2
          v_lshlrev_b32 v1, 4, v1
          v_lshrrev_b32 v2, 2, v0
          v_lshl_add_u32 v2, v2, 10, v1
          s_mov_b32 s44, s4
          s_mov_b32 s45, s5
          s_mov_b32 s46, 0x200000
          s_mov_b32 s47, 0x20000
          s_add_u32 s66, s15, {16384 - 1024}''')
        assert cfg.dpre <= 14 and not cfg.hat
    lds_spin(vCk, C_R, 2, 1)
    if cfg.gx: p(f's_add_u32 m0, s{sX3}, {UR + 1024}\nbuffer_load_dwordx4 v2, {srd(44)}, s15 offen lds\nbuffer_load_dwordx4 v2, {srd(44)}, s66 offen offset:1024 lds')
    early = cfg.spoll & 1 and cfg.pearly
    for n in range(27, 27 + cfg.dpre + 1):
        if early and n == 27 + cfg.pearly: p(f's_load_dwordx16 s[16:31], s[34:35], s{sFi} glc')
        if n < 27 + cfg.dpre: g_wd(n)
    tn('g_d')
    if cfg.spoll & 1: spoll(16, 16, sFi, early)
    else: vpoll(16, sFi)
    tn('g_fh')
    if cfg.gp3 != cfg.gp2: p(f's_setprio {cfg.gp3}')
    def hload(n):
        if cfg.g2x == 1 and n >= HW: return
        hm = [" sc1", "", " nt", " sc0 sc1", " nt sc1"][cfg.hl]
        if cfg.hat: p(f'buffer_load_dwordx4 {vr(HB + 4*(n % HW), 4)}, off, {srd(44)}, s{sHc}{hm}')
        else: p(f'buffer_load_dwordx4 {vr(HB + 4*(n % HW), 4)}, v{vHl}, {srd(WS)}, s{sHc} offen{hm}')
        if n < 42 and cfg.g2x != 2: p(f's_add_u32 s{sHc}, s{sHc}, 1024\ns_cmp_eq_u32 s{sHc}, s{sHe}\ns_cselect_b32 s{sHc}, s{sHs}, s{sHc}')
    if cfg.hat: p(f's_mov_b32 s44, s34\ns_or_b32 s45, s35, 0x100000\ns_mov_b32 s46, {WS_SIZE}\ns_mov_b32 s47, 0x800000')
    for n in range(HW): hload(n)
    fX, fR, fB, fY, fP, vXt = 56, 160, 72, 88, 96, 161
    g2 = {}
    def add2(n, m, x): g2.setdefault((n, m), []).append(x)
    xa_ = [f's_add_u32 s66, s{sX3}, {UR + 1024}' if cfg.gx else f's_mul_i32 s66, s75, {CCH}\ns_lshl_b32 s67, s74, 11\ns_add_u32 s66, s66, s67\ns_add_u32 s66, s66, {KS + 12288}',
           'v_and_b32 v1, 31, v0', 'v_bfe_u32 v2, v0, 2, 2', 'v_lshl_add_u32 v1, v1, 6, s66', 'v_lshl_add_u32 v1, v2, 4, v1',
           'v_lshrrev_b32 v2, 5, v0', f'v_lshl_add_u32 v{vXt}, v2, 3, v1'] + [f'v_xor_b32 v{vXt + j}, {16*j}, v{vXt}' for j in (1, 2, 3)]
    xa_ += [f's_lshl_b32 s66, s{sW}, 12\ns_add_u32 s66, s66, {XR + 16384}\nv_add_u32 v5, s66, v{vHl}',
            f's_xor_b32 s66, s{sW}, 2\ns_lshl_b32 s66, s66, 12\ns_add_u32 s66, s66, {XR + 16384}\nv_add_u32 v6, s66, v{vHl}']
    for k, x in enumerate(xa_): add2(1 + k // 2, k & 1, x)
    assert cfg.xstep >= 9
    if not cfg.gx: add2(cfg.xstep - 1, 0, lambda: lds_pre(vCk, C_X, 4)); add2(cfg.xstep, 0, lambda: lds_post(vCk, C_X, 2, 4))
    xrh = [None]
    def xread(j): xrh[0] = p(f'ds_read_b64 {vr(fX + 2*j, 2)}, v{vXt + j}')
    for j in range(4): add2(cfg.xstep, 1, lambda j=j: xread(j))
    xw = []
    for j in range(8): xw += [f'v_lshlrev_b32 v{fB + 2*j}, 16, v{fX + j}', f'v_and_b32 v{fB + 2*j + 1}, 0xffff0000, v{fX + j}']
    xs0 = cfg.xstep + 2
    for k, x in enumerate(xw): add2(xs0 + k // 4, (k >> 1) & 1, x)
    assert xs0 + len(xw) // 4 <= cfg.ystep
    n2 = NRF - cfg.adist
    pre2 = {}
    if cfg.dpre < 16:
        for k, n in enumerate(range(27 + cfg.dpre, 43)):
            nl = cfg.dst + k // cfg.dper
            if cfg.gx and n >= 41:
                nl = max(nl, cfg.xstep + 2)
                pre2.setdefault((nl, cfg.dm), []).append(lambda: p.wait_ds(xrh[0]))
            pre2.setdefault((nl, cfg.dm), []).append(lambda n=n: g_wd(n))
        dsig = nl + HW + (0 if (cfg.dm == 1 or cfg.g2o != 1) else -1)
        assert dsig <= 27 - cfg.adist - 3, dsig
        add2(dsig, 0, lambda: (p.wait_vm(gwh[42]), lds_add(vCk, C_W4, 7)))
        add2(27 - cfg.adist - 2, 0, lambda: lds_pre(vCk, C_W4, 3)); add2(27 - cfg.adist - 1, 1, lambda: lds_post(vCk, C_W4, 2, 3))
    add2(0, 0, lambda: lds_add(vCk, C_W3, 7))
    add2(n2 - 2, 0, lambda: lds_pre(vCk, C_W3, 3)); add2(n2 - 1, 1, lambda: lds_post(vCk, C_W3, 2, 3))
    add2(24, 1, lambda: (lds_add(vCk, C_F, 7), tn('g_n27')))
    if not cfg.ylate:
        add2(cfg.ystep - 1, 0, lambda: lds_pre(vCk, C_Y, 3)); add2(cfg.ystep, 0, lambda: (lds_post(vCk, C_Y, 2, 3), tn('g_y')))
        for Q in range(4): add2(cfg.ystep, 1, f'ds_read_b64_tr_b16 {vr(fY + 2*Q, 2)}, v{vYA} offset:{1024*Q}')
        yw = []
        for j in range(8):
            yw += [f'v_lshlrev_b32 v1, 16, v{fY + j}', f'v_and_b32 v2, 0xffff0000, v{fY + j}',
                   f'v_add_f32 v{fB + 2*j}, v{fB + 2*j}, v1', f'v_add_f32 v{fB + 2*j + 1}, v{fB + 2*j + 1}, v2']
        ng = 2*(42 - cfg.ystep) - 2
        per = -(-len(yw) // ng)
        for k, x in enumerate(yw): gi = 2*(cfg.ystep + 1) + 1 + k // per; add2(gi >> 1, gi & 1, x)
    add2(40, 0, lambda: lds_pre(vCk, C_F, 4)); add2(41, 1, lambda: lds_post(vCk, C_F, 2, 4))
    for n in range(43):
        for m in range(2):
            dt = m if n < 42 else 1 - m
            a = AC2 + 16 * dt
            c = '0' if n == 0 else vr(a, 16)
            p(f'v_mfma_f32_32x32x16_bf16 {vr(a, 16)}, {vr(afr(n) + 4*dt, 4)}, {vr(HB + 4*(n % HW), 4)}, {c}')
            if n == 0 and m == 0: tn('g_h0')
            if n == 16 and m == 0: tn('g_n16')
            if m == 0: tn(f'g_s{n}')
            for x in pre2.get((n, m), []): emit(x)
            if cfg.g2o == 0:
                if NRF <= n + cfg.adist <= 42:
                    for s_ in range(2): aread(n + cfg.adist, m, s_)
                if m == 1 and n + HW < 43: hload(n + HW)
            elif cfg.g2o == 1:
                if m == 0 and n >= 1 and n - 1 + HW < 43: hload(n - 1 + HW)
                if m == 1 and NRF <= n + cfg.adist <= 42:
                    for dd in range(2):
                        for s_ in range(2): aread(n + cfg.adist, dd, s_)
            elif cfg.g2o == 2:
                if m == 1 and n + HW < 43: hload(n + HW)
                if m == 0 and NRF <= n + cfg.adist <= 42:
                    for dd in range(2):
                        for s_ in range(2): aread(n + cfg.adist, dd, s_)
            elif cfg.g2o == 3:
                if m == 1 and n + HW < 43: hload(n + HW)
                if NRF <= n + cfg.adist <= 42:
                    for s_ in range(2): aread(n + cfg.adist, m, s_)
            for x in g2.get((n, m), []): emit(x)
    tn('g_g2')
    for Q in range(4): p(f'ds_write_b128 v5, {vr(AC2 + 16 + 4*Q, 4)} offset:{1024*Q}')
    def fma16(src, e0, e1):
        if cfg.pkm:
            for e in range(e0, e1, 2): p(f'v_pk_fma_f32 {vr(fB + e, 2)}, {vr(src + e, 2)}, {vr(fR, 2)}, {vr(fB + e, 2)} op_sel_hi:[1,0,1]')
        else:
            for e in range(e0, e1): p(f'v_fmac_f32 v{fB + e}, v{src + e}, v{fR}')
    if cfg.ylate: p('s_movk_i32 s66, 0x3f80\ns_mov_b32 s67, 0x3f800000')
    fma16(AC2, 0, 16)
    p('s_waitcnt lgkmcnt(0)\ns_barrier')
    ts(8)
    for Q in range(4):
        if cfg.ylate: p(f'ds_read_b64_tr_b16 {vr(fY + 2*Q, 2)}, v{vYA} offset:{1024*Q}')
        p(f'ds_read_b128 {vr(fP + 4*Q, 4)}, v6 offset:{1024*Q}')
    for h in range(2):
        if cfg.ylate:
            for e in range(8*h, 8*h + 8): p(f'v_dot2_f32_bf16 v{fB + e}, v{fY + e // 2}, s{66 + (e & 1)}, v{fB + e}')
        fma16(fP, 8*h, 8*h + 8)
        for j in range(4*h, 4*h + 4): p(f'v_cvt_pk_bf16_f32 v{fX + j}, v{fB + 2*j}, v{fB + 2*j + 1}')
        p(f'v_permlane32_swap_b32 v{fX + 4*h}, v{fX + 4*h + 2}\nv_permlane32_swap_b32 v{fX + 4*h + 1}, v{fX + 4*h + 3}')
        p(f'buffer_store_dwordx4 {vr(fX + 4*h, 4)}, v{vOut}, {srd(OUT)}, 0 offen offset:{32*h}{["", " nt", " sc1", " sc0 sc1", " nt sc1"][cfg.omod]}')
    finish()

    p.label('L_S')
    p.vmq, p.dsq = st0
    prio = [0]
    def setprio(x):
        if prio[0] != x: p(f's_setprio {x}'); prio[0] = x
    setprio((cfg.sprio >> 8) & 1)
    vXo, vWo, vWd, vIdx, vL16, vPar = 10, 14, 17, 20, 31, 32
    LAM, Wv, P1, P2, P4, Q1, Q2, Q4, Q8, Q16, E1, E2, E4, E8, T0, T1 = range(40, 72, 2)
    hW, hP1, hP2, hP4, hE1, hE2, hE4, hE8 = range(72, 80)
    hq = lambda j: 79 + j
    vSR, vDW, vDR = 109, 110, 111
    AFr, BFr, DK = 112, 144, 176
    vTA, vCA, vUB, vXB, vYS, vYL, vYW, vCk, vF, vUo, vPoll, vM, vOne, vCSr, vXS = 224, 228, 229, 233, 234, 235, 236, 237, 238, 239, 240, 244, 245, 248, 226
    sX4, sX3, sX1, sWc, sWs, sWe, sYB, sCS, sFA, sFYo, sFYi = 6, 7, 8, 9, 10, 11, 22, 30, 31, 32, 33
    p(f'''s_sub_u32 s74, s{sW}, 4
      s_lshr_b32 s75, s74, 1
      s_and_b32 s77, s74, 1
      s_lshr_b32 s66, s2, 3
      s_lshl_b32 s66, s66, 1
      s_add_u32 s66, s66, s75
      s_lshl_b32 s66, s66, 3
      s_and_b32 s67, s2, 7
      s_add_u32 s73, s66, s67
      s_lshl_b32 s67, s73, 8
      s_lshl_b32 s68, s77, 7
      s_add_u32 s67, s67, s68
      v_lshl_add_u32 v18, v0, 1, s67
      s_lshl_b32 s66, s73, 1
      v_mov_b32 v19, s66''')
    def par_loads():
        p(f'global_load_ushort v{vPar + 6}, v19, s[18:19]')
        for i in range(6): p(f'global_load_ushort v{vPar + i}, v18, s[{6 + 2*i}:{7 + 2*i}]')
        p(f'global_load_ushort v{vPar + 7}, v19, s[20:21]')
    p(f'''s_and_b32 s66, s{sRB}, 1
      s_lshl_b32 s67, s66, 2
      v_and_b32 v1, 7, v0
      v_lshrrev_b32 v2, 4, v0
      v_xor_b32 v1, v1, v2
      v_xor_b32 v1, s67, v1
      v_lshrrev_b32 v2, 3, v0
      s_lshl_b32 s68, s74, 15
      {f's_lshl_b32 s69, s{sRB}, 17' if cfg.kw else ''}
      {f's_add_u32 s68, s68, s69' if cfg.kw else ''}
      v_lshl_add_u32 v2, v2, 10, s68
      v_lshl_add_u32 v{vXo}, v1, 4, v2
      v_xor_b32 v1, 4, v1
      v_lshl_add_u32 v2, v1, 4, v2
      v_add_u32 v{vXo + 1}, {7168}, v2
      v_add_u32 v{vXo + 2}, {2*7168}, v{vXo}
      v_add_u32 v{vXo + 3}, {3*7168}, v2''')
    wcalc = lambda i: f'''v_add_u32 v1, {64*i}, v0
          v_mul_u32_u24 v2, 0x5556, v1
          v_lshrrev_b32 v2, 18, v2
          v_mul_u32_u24 v3, 12, v2
          v_sub_u32 v3, v1, v3
          v_add_u32 v2, s33, v2
          v_xor_b32 v2, s32, v2
          {'v_lshl_add_u32 v3, v3, 4, s70' if cfg.kw else 'v_lshlrev_b32 v3, 4, v3'}
          v_mad_u32_u24 v2, v2, s31, v3
          v_subrev_u32 v{vWo + i}, {1024*i}, v2'''
    p(f'''s_lshl_b32 s66, s74, 12
      s_add_u32 s66, s66, {XR}
      s_mul_i32 s68, s74, 3072
      s_add_u32 s67, s68, {GR}
      s_add_u32 s68, s68, {UR}
      {'' if cfg.kw else f's_lshl_b32 s69, s{sRB}, 17'}
      s_mul_i32 s70, s{sCB}, 192
      s_lshr_b32 s71, s{sRB}, 1
      {f's_and_b32 s71, s71, {8 - cfg.rho}' if cfg.rho > 1 else ''}
      {'s_lshl_b32 s76, s71, 7' if cfg.kw else ''}
      v_lshlrev_b32 v{vL16}, 4, v0''')
    if cfg.ypois: p('v_mov_b64 v[4:5], -1\nv_mov_b64 v[6:7], -1')
    p('s_waitcnt lgkmcnt(0)')
    tn('s_karg')
    p('s_barrier')
    if cfg.parfirst: par_loads()
    srds('S')
    m0 = [None]
    def setm0(key, text):
        if m0[0] != key: p(text); m0[0] = key
    slabh = {}
    def dma_items(s):
        sl = s % 3
        it = []
        def x(i):
            if i == 0 and s == 0 and cfg.kw: assert cfg.parfirst; p('s_mul_i32 s23, s76, 1376')
            if i == 0 and not cfg.kw:
                p(f's_add_u32 s78, s71, {s}\ns_and_b32 s78, s78, 7\ns_lshl_b32 s76, s78, 7\ns_add_u32 s76, s76, s69')
                p(f's_mul_i32 s23, s78, {64*2752}\ns_add_u32 s23, s23, s70')
            setm0(('x', s), f's_add_u32 m0, s66, {sl*16384}')
            p(f'buffer_load_dwordx4 v{vXo + i}, {srd(XD)}, s76 offen offset:{1024*i} lds')
            if cfg.kw and i == 3:
                setm0(('w', s, 0), f's_add_u32 m0, s67, {sl*12288}')
                if s < 7: p('s_add_u32 s76, s76, 128\ns_and_b32 s76, s76, 0x3ff')
        def w(k, i):
            setm0(('w', s, k), f's_add_u32 m0, s{67 + k}, {sl*12288}')
            slabh[s] = p(f'buffer_load_dwordx4 v{vWo + i}, {srd((WG, WU)[k])}, s23 offen offset:{1024*i} lds')
            if cfg.kw and i == 2:
                if k == 0: setm0(('w', s, 1), f's_add_u32 m0, s68, {sl*12288}')
                elif s < 7:
                    setm0(('x', s + 1), f's_add_u32 m0, s66, {(s + 1) % 3*16384}')
                    p('s_mul_i32 s23, s76, 1376')
        for i in range(4): it.append(lambda i=i: x(i))
        for k in range(2):
            for i in range(3): it.append(lambda k=k, i=i: w(k, i))
        return it
    def seg(work, dma=()):
        work = list(work); dma = list(dma)
        gap = max(1, -(-len(work) // len(dma))) if dma else len(work)
        if cfg.dmaf and dma: gap = min(gap, cfg.dmaf - 1)
        while work or dma:
            if dma: emit(dma.pop(0))
            for _ in range(gap if dma else len(work)):
                if work: emit(work.pop(0))
    d0 = dma_items(0)
    p(f's_and_b32 s32, s{sRB}, 1\ns_lshl_b32 s32, s32, 5\ns_lshl_b32 s33, s74, 4\ns_movk_i32 s31, 2752')
    for i in range(4):
        emit(d0.pop(0))
        if i < 3: p(wcalc(i))
    if not cfg.parfirst: par_loads()
    srds2('S')
    p(f's_lshl_b32 s{sYB}, s73, 12\ns_add_u32 s{sYB}, s{sYB}, {WS_YT}')
    d1 = dma_items(1)
    if cfg.ypois:
        p(f's_lshl_b32 s72, s77, 11\ns_add_u32 s72, s72, s{sYB}')
        d1.insert(9, f'buffer_store_dwordx4 v[4:7], v{vL16}, {srd(WS)}, s72 offen sc1\nbuffer_store_dwordx4 v[4:7], v{vL16}, {srd(WS)}, s72 offen offset:1024 sc1')
    sT0 = 17
    vTX, vTY = vTA, vTA + 1
    w_idx = []
    A = w_idx.append
    A('v_and_b32 v1, 31, v0'); A('v_lshrrev_b32 v2, 5, v0')
    A(f's_xor_b32 s24, s74, 1\ns_mul_i32 s24, s24, 8704\ns_add_u32 s24, s24, {KS}'); A(f'v_add_u32 v{vDR}, s24, v{vL16}')
    A(f'''s_mul_i32 s{sT0}, s75, {TCH}
      s_add_u32 s{sT0}, s{sT0}, {TT + 16}
      s_mul_i32 s18, s77, 62
      s_add_u32 s18, s18, 128
      s_lshl_b32 s19, s77, 3
      s_add_u32 s19, s19, s{sT0}
      s_add_u32 s19, s19, 1024''')
    A('v_sub_u32 v8, 2, v2'); A('v_lshlrev_b32 v3, v8, v1'); A('v_mad_u32_u24 v3, v2, s18, v3'); A(f'v_lshl_add_u32 v{vTX}, v3, 2, s19')
    A(f'''s_mul_i32 s18, s77, 124
      s_add_u32 s18, s18, 4
      s_lshl_b32 s19, s77, 11
      s_add_u32 s19, s19, s{sT0}
      s_mul_i32 s20, s77, 3
      s_sub_u32 s20, 3, s20''')
    A('v_lshlrev_b32 v3, s20, v1'); A('v_mad_u32_u24 v3, v2, s18, v3'); A(f'v_lshl_add_u32 v{vTY}, v3, 2, s19')
    w_idxB = w_idx
    w_idx = []
    A = w_idx.append
    A(f's_mul_i32 s25, s74, 8704'); A(f's_add_u32 s25, s25, {KS}')
    A('v_and_b32 v1, 31, v0'); A('v_lshrrev_b32 v2, 5, v0'); A('v_mul_u32_u24 v3, 272, v1'); A('v_lshl_add_u32 v3, v2, 4, v3')
    A(f'v_add_u32 v{vSR}, s25, v3'); A(f'v_add_u32 v{vDW}, s25, v{vL16}')
    vSB = 9
    if cfg.kw:
        assert cfg.gk != 1
        A('v_lshl_add_u32 v9, v0, 2, s25')
    if cfg.gk == 1:
        A(f's_lshl_b32 s25, s74, 12\ns_add_u32 s25, s25, {XR + 32768}\ns_mul_i32 s24, s74, 3072\ns_add_u32 s24, s24, {GR2 + 240 - 15*272}')
        A('v_mov_b32 v2, s25'); A('v_mov_b32 v8, s24'); A('v_cmp_lt_u32 vcc, 14, v1'); A('v_cndmask_b32 v2, v2, v8, vcc')
        A(f'v_add_u32 v8, {UR2 - GR2 + 112 - 240 - 10*272}, v8'); A('v_cmp_lt_u32 vcc, 24, v1'); A('v_cndmask_b32 v2, v2, v8, vcc')
        A(f'v_add_u32 v{vSB}, v2, v3'); A(f's_mul_i32 s25, s74, 8704\ns_add_u32 s25, s25, {KS}')
    A(f'v_mov_b32 v{vM}, {MISC}'); A(f'v_mov_b32 v{vOne}, 1')
    A(f's_lshl_b32 s24, s75, 2\ns_add_u32 s24, s24, {MISC}'); A(f'v_mov_b32 v{vCk}, s24')
    if not cfg.gcs:
        A(f's_mul_i32 s24, s74, 96\ns_add_u32 s24, s24, {CSL}'); A(f'v_add_u32 v{vCSr}, s24, v{vL16}')
    A(('' if cfg.gcs else f'''s_mul_i32 s{sCS}, s{sCB}, 6144
      s_mul_i32 s24, s{sRB}, 192
      s_add_u32 s{sCS}, s{sCS}, s24
      s_mul_i32 s24, s75, 3072
      s_add_u32 s{sCS}, s{sCS}, s24
      s_mul_i32 s24, s77, 96
      s_add_u32 s{sCS}, s{sCS}, s24
      s_add_u32 s{sCS}, s{sCS}, {WS_CSP}
      ''') + f'''s_lshl_b32 s{sFA}, s{sTB}, 2
      s_add_u32 s{sFA}, s{sFA}, {WS_FA if cfg.nca < 0 else WS_FA2}
      s_cmp_eq_u32 s74, 0
      s_cselect_b32 s{sFA}, s{sFA}, {BIG}''')
    A(lambda: tn('s_idx'))

    def cmul(o, d, x, y, t):
        o.append(f'v_pk_mul_f32 {vr(t, 2)}, {vr(x, 2)}, {vr(y, 2)} op_sel:[0,0] op_sel_hi:[1,0]')
        o.append(f'v_pk_fma_f32 {vr(d, 2)}, {vr(x, 2)}, {vr(y, 2)}, {vr(t, 2)} op_sel:[1,1,0] op_sel_hi:[0,1,1] neg_lo:[1,0,0]')
    tv = [0]
    def hmul(o, d, x, y):
        t = 107 + tv[0] % 2; tv[0] += 1
        o.append(f'v_pk_mul_f16 v{t}, v{x}, v{y} op_sel:[0,0] op_sel_hi:[1,0]')
        o.append(f'v_pk_fma_f16 v{d}, v{x}, v{y}, v{t} op_sel:[1,1,0] op_sel_hi:[0,1,1] neg_lo:[1,0,0]')
    def put(o, row, r):
        if cfg.kw: o.append(f'ds_write_b32 v9, v{r} offset:{272*row}')
        else: o.append(lambda: (setm0('ks', 's_mov_b32 m0, s25'), p(f'ds_write_addtid_b32 v{r} offset:{272*row}')))
    w_set = []
    A = w_set.append
    for i in (6, 0, 1, 2, 3, 4, 5, 7): A(f'v_lshlrev_b32 v{vPar + i}, 16, v{vPar + i}')
    A(lambda: tn('s_par'))
    ld = vPar + 6
    A(f's_mov_b32 s24, {LOG2E}'); A(f'v_mul_f32 v1, s24, v{ld}'); A(f'v_fma_f32 v2, v{ld}, s24, -v1')
    A(f'v_fmac_f32 v2, {LOG2E_LO}, v{ld}'); A('v_exp_f32 v1, v1'); A(f'v_mul_f32 v2, {LN2}, v2'); A('v_fmac_f32 v1, v1, v2')
    A('v_cvt_pk_bf16_f32 v1, v1, v1'); A('v_and_b32 v1, 0xffff0000, v1')
    for i in range(4): A(f'v_mul_f32 v{vPar + i}, v{vPar + i}, v1')
    cmul(w_set, Wv, vPar + 4, vPar + 2, T0)
    A(f'v_mul_f32 v{LAM}, s24, v{vPar}'); A(f'v_mul_f32 v{LAM + 1}, {INV2PI}, v{vPar + 1}')
    A(f'v_max_f32 v8, |v{Wv}|, |v{Wv + 1}|')
    mx = [f'v_max_u32_dpp v8, v8, v8 {m} row_mask:0xf bank_mask:0xf' for m in DP]
    for (dst, n) in (((P1, 1), (E1, 256)) if cfg.gk else ((P1, 1), (Q1, 8), (E1, 256))):
        if n == 1: A(f'v_exp_f32 v1, v{LAM}'); A(f'v_fract_f32 v2, v{LAM + 1}')
        else:
            lit = {8: 0x41000000, 256: 0x43800000}[n]
            A(f'v_mul_f32 v1, {lit}, v{LAM}'); A(f'v_mul_f32 v2, {lit}, v{LAM + 1}'); A('v_exp_f32 v1, v1'); A('v_fract_f32 v2, v2')
        if mx: A(mx.pop(0))
        A('v_cos_f32 v3, v2'); A(f'v_sin_f32 v{dst + 1}, v2')
        if mx: A(mx.pop(0))
        A(f'v_mul_f32 v{dst}, v1, v3'); A(f'v_mul_f32 v{dst + 1}, v1, v{dst + 1}')
    for k in range(4): A(f'v_readlane_b32 s{26 + k}, v8, {16*k}')
    cmul(w_set, P2, P1, P1, T0); cmul(w_set, E2, E1, E1, T1)
    A(f's_max_u32 s26, s26, s27\ns_max_u32 s28, s28, s29\ns_max_u32 s26, s26, s28\ns_lshr_b32 s26, s26, 23\ns_sub_u32 s26, 266, s26\ns_min_u32 s26, s26, 253')
    A(f's_sub_u32 s27, 254, s26\ns_lshl_b32 s27, s27, 23\ns_lshl_b32 s26, s26, 23')
    cmul(w_set, P4, P2, P2, T0); cmul(w_set, E4, E2, E2, T1)
    A(f'v_mul_f32 v{Wv}, s26, v{Wv}'); A(f'v_mul_f32 v{Wv + 1}, s26, v{Wv + 1}')
    if not cfg.gk: cmul(w_set, Q2, Q1, Q1, T0)
    cmul(w_set, E8, E4, E4, T1)
    for (h, f) in ((hW, Wv), (hP1, P1), (hE1, E1), (hP2, P2)): A(f'v_cvt_pk_f16_f32 v{h}, v{f}, -v{f + 1}')
    if not cfg.gk: cmul(w_set, Q4, Q2, Q2, T0)
    for (h, f) in ((hE2, E2), (hP4, P4)): A(f'v_cvt_pk_f16_f32 v{h}, v{f}, -v{f + 1}')
    if not cfg.gk: cmul(w_set, Q8, Q4, Q4, T0)
    for (h, f) in ((hE4, E4), (hE8, E8)): A(f'v_cvt_pk_f16_f32 v{h}, v{f}, -v{f + 1}')
    if not cfg.gk:
        cmul(w_set, Q16, Q8, Q8, T0)
        for (j, f) in ((1, Q1), (2, Q2), (4, Q4), (8, Q8), (16, Q16)): A(f'v_cvt_pk_f16_f32 v{hq(j)}, v{f}, v{f + 1}')
    w_k = []
    keep = {0: hW, 1: 96, 2: 97, 3: 98, 8: 99, 9: 100, 12: 101, 14: 102}
    ov = [0]
    rows = [(1, 0, hP1), (8, 0, hE1), (2, 0, hP2), (12, 0, hE2), (3, 1, hP2), (9, 8, hP2), (14, 8, hE2), (4, 0, hP4), (5, 1, hP4), (6, 2, hP4),
            (7, 3, hP4), (10, 8, hP4), (11, 9, hP4), (13, 12, hP4), (15, 14, hP4), (16, 0, hE4), (17, 8, hE4), (18, 12, hE4), (19, 14, hE4), (20, 0, hE8)]
    put(w_k, 0, hW)
    pend = None
    for (row, src, fac) in rows:
        if row in keep: d = keep[row]
        else: d = 103 + ov[0] % 4; ov[0] += 1
        hmul(w_k, d, keep[src], fac)
        if pend: put(w_k, *pend)
        pend = (row, d)
    put(w_k, *pend)
    for ks in range(8): w_k.append(f'ds_read_b128 {vr(AFr + 4*ks, 4)}, v{vSR} offset:{32*ks}')
    if not cfg.gk:
        w_k.append('v_mov_b32 v1, 0x3c00'); put(w_k, 0, 1)
        for j in (1, 2, 4, 8, 16): put(w_k, j, hq(j))
        pend = None
        for j in [3, 5, 6, 7] + list(range(9, 16)) + list(range(17, 32)):
            hb = 1 << (j.bit_length() - 1)
            if j < 16: d = hq(j)
            else: d = 103 + ov[0] % 4; ov[0] += 1
            hmul(w_k, d, hq(j - hb), hq(hb))
            if pend: put(w_k, *pend)
            pend = (j, d)
        put(w_k, *pend)
        for ks in range(8): w_k.append(f'ds_read_b128 {vr(BFr + 4*ks, 4)}, v{vSR} offset:{32*ks}')
    if cfg.gk == 2:
        for ks in range(8): w_k.append(f'ds_read_b128 {vr(BFr + 4*ks, 4)}, v{vSR} offset:{32*ks}')
    for ks in range(8):
        w_k.append(f'v_mfma_f32_32x32x16_f16 {vr(DK, 16)}, {vr(AFr + 4*ks, 4)}, {vr(BFr + 4*ks, 4)}, {"0" if ks == 0 else vr(DK, 16)}')
    def two_way(f0, f1):
        L1 = p.newlabel('HF'); L2 = p.newlabel('HFX')
        p(f's_cmp_eq_u32 s77, 0\ns_cbranch_scc0 {L1}')
        p.cond_begin(); f0(); p(f's_branch {L2}'); p.cond_end()
        p.label(L1)
        p.cond_begin(); f1(); p.cond_end()
        p.label(L2)
    def xadr0():
        p(f'''s_sub_u32 s18, s{sT0}, 12
          s_add_u32 s19, s18, 512
          v_lshl_add_u32 v1, v0, 5, s18
          v_lshl_add_u32 v2, v0, 4, s19
          v_min_u32 v21, v1, v2
          v_lshrrev_b32 v1, 5, v0
          v_add_u32 v2, 31, v0
          v_mad_i32_i24 v22, v1, -4, v21
          v_lshrrev_b32 v2, 6, v2
          v_mad_i32_i24 v23, v1, -8, v21
          v_lshl_add_u32 v20, v2, 2, v21
          v_mad_i32_i24 v24, v1, -12, v21
          v_lshrrev_b32 v1, 1, v0
          v_mul_u32_u24 v1, {CST - 32}, v1
          v_add_u32 v25, v1, v{vXB}
          v_mov_b64 v[4:5], 0
          v_mov_b64 v[6:7], 0''')
        if cfg.xbal: p(f's_add_u32 s19, s{sT0}, 2044\nv_and_b32 v2, 1, v0\nv_lshl_add_u32 v26, v0, 2, s19\nv_lshl_add_u32 v27, v2, 2, v26')
    def xadr1():
        p(f'''s_add_u32 s18, s{sT0}, 1528
          s_add_u32 s19, s{sT0}, 2044
          v_min_u32 v1, 1, v0
          v_lshl_add_u32 v20, v0, 3, s18
          v_lshl_add_u32 v22, v0, 2, s19
          v_and_b32 v2, 1, v0
          v_lshl_add_u32 v21, v1, 2, v20
          v_lshl_add_u32 v24, v1, 2, v22
          v_lshl_add_u32 v23, v2, 2, v22''')
    def exp0():
        p('''ds_read2_b32 v[80:81], v20 offset0:0 offset1:1
          ds_read_b32 v82, v20 offset:8
          ds_read_b32 v83, v21 offset:12
          ds_read2_b32 v[84:85], v22 offset0:4 offset1:5
          ds_read_b32 v86, v22 offset:24
          ds_read_b32 v87, v23 offset:28
          ds_read2_b32 v[88:89], v24 offset0:8 offset1:9
          ds_read_b32 v90, v24 offset:40''')
        p('s_mov_b64 exec, 0xff\nds_write_b128 v25, v[4:7]\ns_mov_b64 exec, -1')
        if cfg.xbal: p('ds_read2_b32 v[92:93], v26 offset0:65 offset1:66\nds_read_b32 v94, v27 offset:260')
        sq = {-3: 92, -2: 92, -1: 92, 0: 92, 1: 92, 2: 92, 3: 92, 4: 94, 5: 93, 6: 93, 7: 93}
        for g in (3, 2, 1, 0):
            d = 104 + 4*g
            for j in range(4): p(f'v_cvt_pk_bf16_f32 v{d + j}, v{83 - g + 2*j}, v{84 - g + 2*j}')
            p(f'ds_write_b128 v{vXB}, {vr(d, 4)} offset:{32 + CST*g}')
            if cfg.xbal:
                d = 120 + 4*g
                for j in range(4):
                    p(f'v_cvt_pk_bf16_f32 v{d + j}, v{sq[2*j - g]}, v{sq[2*j + 1 - g]}')
                p(f'ds_write_b128 v{vXB}, {vr(d, 4)} offset:{32 + 3072 + CST*g}')
    def exp1():
        p('''ds_read2_b32 v[82:83], v20 offset0:2 offset1:3
          ds_read_b32 v84, v20 offset:16
          ds_read2_b32 v[86:87], v22 offset0:1 offset1:2
          ds_read_b32 v88, v23 offset:4
          ds_read2_b32 v[80:81], v21 offset0:0 offset1:1
          ds_read_b32 v89, v24''')
        if not cfg.xbal: p('ds_read2_b32 v[90:91], v22 offset0:65 offset1:66\nds_read_b32 v92, v23 offset:260')
        a_, b_, c_, d_, e_ = 80, 81, 82, 83, 84
        seqB = {-3: a_, -2: b_, -1: c_, 0: c_, 1: c_, 2: c_, 3: d_, 4: d_, 5: d_, 6: e_, 7: e_}
        def seqC(j, j1, X, a): return {-3: a, -2: j, -1: j, 0: j, 1: j, 2: j, 3: j, 4: X, 5: j1, 6: j1, 7: j1}
        passes = [(seqB, 104, 1024), (seqC(86, 87, 88, 89), 108, 2048), (seqC(90, 91, 92, 90), 112, 3072)]
        cur = {}
        if cfg.xbal: passes = passes[:2]
        for g in range(4):
            for (sq, q, off) in passes:
                if cfg.xbal: q = 104 + 16*(off // 1024 - 1) + 4*g
                for j in range(4):
                    pr = (sq[2*j - g], sq[2*j + 1 - g])
                    if cur.get(q + j) != pr: p(f'v_cvt_pk_bf16_f32 v{q + j}, v{pr[0]}, v{pr[1]}'); cur[q + j] = pr
                p(f'ds_write_b128 v{vXB}, {vr(q, 4)} offset:{32 + off + CST*g}')
    def dump(r):
        for i in range(6): p(f'v_mul_f32 v{80 + i}, s27, v{r + i}')
        p(f'ds_write_b128 v{vDW}, v[80:83]\nds_write_b64 v{vDW}, v[84:85] offset:1024')
    w_k.append(lambda: two_way(lambda: (xadr0(), dump(DK + 6)), lambda: (xadr1(), dump(DK))))
    w_T = [f'ds_read_b128 v[80:83], v{vDR}', f'ds_read_b64 v[84:85], v{vDR} offset:1024']
    def t0():
        for i in range(6): p(f'v_fma_f32 v{80 + i}, v{DK + i}, s27, v{80 + i}')
        one_lane(lambda: p(f'v_add_f32 v80, v80, v{vPar + 7}'))
        p(f'ds_write_b128 v{vTY}, v[80:83]\nds_write_b64 v{vTX}, v[84:85]')
    def t1():
        for i in range(6): p(f'v_fma_f32 v{80 + i}, v{DK + 6 + i}, s27, v{80 + i}')
        p(f'ds_write_b64 v{vTX}, v[80:81]\nds_write_b32 v{vTY}, v82')
        p(f's_mov_b32 exec_hi, 0\nds_write2_b32 v{vTY}, v83, v84 offset0:32 offset1:64\nds_write_b32 v{vTY}, v85 offset:384\ns_mov_b64 exec, -1')
    def bar(s, h):
        tn(f's_w{s}')
        p.wait_vm(h); tn(f's_l{s}')
        if cfg.tch & 32 and cfg.spos < s <= cfg.spos + cfg.sskip: assert s <= 4; p('s_barrier')
        else: p('s_waitcnt lgkmcnt(0)\ns_barrier')
        tn(f's_b{s}')
    sKC, sXT = 21, 18
    w_mid = []
    A = w_mid.append
    A('v_lshrrev_b32 v1, 4, v0'); A('v_and_b32 v2, 15, v0'); A('v_bfe_u32 v3, v0, 2, 2'); A('v_and_b32 v8, 3, v0')
    A(f'v_mul_u32_u24 v3, {CST}, v3'); A('v_lshl_add_u32 v3, v8, 3, v3'); A('v_mad_i32_i24 v3, v1, -16, v3')
    A(f's_mul_i32 s{sKC}, s75, {CCH}\ns_add_u32 s{sKC}, s{sKC}, {KS}\ns_lshl_b32 s72, s77, 8\ns_add_u32 s72, s72, s{sKC}\ns_add_u32 s72, s72, 56')
    A(f'v_add_u32 v{vCA}, s72, v3')
    A(f'v_add_u32 v{vXB}, s{sKC}, v{vL16}')
    A('v_lshl_add_u32 v3, v2, 1, v1')
    A(f's_lshl_b32 s72, s77, 4\ns_sub_u32 s72, 30, s72\ns_lshl_b32 s28, s75, 9\ns_add_u32 s28, s28, {UP}')
    A(f'v_add_u32 v{vUB + 3}, s72, v3')
    def ub(rr):
        o = [f'v_subrev_u32 v{vUB + 3}, 4, v{vUB + 3}'] if rr else []
        return o + [f'v_and_b32 v8, 32, v{vUB + 3}', f'v_add_u32 v8, v8, v{vUB + 3}', f'v_lshl_add_u32 v{vUB + rr}, v8, 4, s28']
    w_mid += ub(0) + ub(1)
    w_gap = ub(2) + ub(3)
    A = w_gap.append
    A(f's_lshl_b32 s72, s74, 2\ns_add_u32 s72, s72, {MISC}'); A(f'v_mov_b32 v{vF}, s72'); A(f'v_xor_b32 v7, 4, v{vF}')
    A('v_lshrrev_b32 v1, 4, v0'); A('v_and_b32 v2, 15, v0')
    A('v_and_b32 v3, 1, v1'); A('v_lshlrev_b32 v3, 9, v3'); A('v_lshl_add_u32 v3, v2, 5, v3'); A('v_lshrrev_b32 v8, 1, v1')
    A(f'v_lshl_add_u32 v{vYS}, v8, 4, v3')
    if not cfg.gx:
        A('v_and_b32 v3, 3, v0'); A('v_xor_b32 v3, v3, v1'); A('v_lshlrev_b32 v3, 4, v3'); A('v_lshrrev_b32 v8, 2, v0'); A(f'v_lshl_add_u32 v{vXS}, v8, 10, v3')
    if cfg.ydma:
        A('v_lshrrev_b32 v3, 3, v0'); A(f'v_and_b32 v8, 0x7f, v{vWd}'); A(f'v_lshl_add_u32 v{vYL}, v3, 12, v8')
        A(f's_lshl_b32 s72, s77, 11\ns_add_u32 s72, s72, s{sKC}\ns_add_u32 s19, s72, 12288\ns_add_u32 s14, s72, 8192')
    else:
        A('v_lshrrev_b32 v3, 3, v0'); A('v_and_b32 v8, 7, v0'); A(f'v_lshlrev_b32 v8, 4, v8'); A(f'v_lshl_add_u32 v{vYL}, v3, 12, v8')
        A(f'v_and_b32 v8, 0x7f, v{vWd}'); A('v_lshl_add_u32 v8, v3, 7, v8')
        A(f's_lshl_b32 s72, s77, 11\ns_add_u32 s72, s72, s{sKC}\ns_add_u32 s19, s72, 12288\ns_add_u32 s72, s72, 8192')
        A(f'v_add_u32 v{vYW}, s72, v8')
    if not cfg.gx:
        A(f's_lshl_b32 s{sXT}, s{sRB2}, 16\ns_lshl_b32 s72, s77, 15\ns_add_u32 s{sXT}, s{sXT}, s72')
        A(f's_lshl_b32 s72, s{sCB2}, 7\ns_add_u32 s{sXT}, s{sXT}, s72\ns_lshl_b32 s72, s75, 6')
        A(f's_add_u32 s{sXT}, s{sXT}, s72\ns_add_u32 s20, s{sXT}, {16384 - 1024}\ns_mov_b32 s{XD + 2}, 0x200000')
    A(f's_lshl_b32 s12, s{sCB2}, 18\ns_lshl_b32 s13, s74, 16\ns_add_u32 s12, s12, s13')
    A(f's_lshl_b32 s13, s{sRB2}, 7\ns_add_u32 s12, s12, s13\ns_add_u32 s12, s12, {WS_YT}\ns_add_u32 s13, s12, {32768 - 1024*cfg.ydma}')
    if not cfg.ypois:
        fl = f'''s_lshr_b32 s{sFYo}, s2, 3
          s_lshl_b32 s{sFYo}, s{sFYo}, 1
          s_add_u32 s{sFYo}, s{sFYo}, s77
          s_lshl_b32 s{sFYo}, s{sFYo}, 1
          s_add_u32 s{sFYo}, s{sFYo}, s75
          s_lshl_b32 s{sFYo}, s{sFYo}, 3
          s_and_b32 s24, s2, 7
          s_add_u32 s{sFYo}, s{sFYo}, s24
          s_lshl_b32 s{sFYo}, s{sFYo}, {cfg.fsh}
          s_add_u32 s{sFYo}, s{sFYo}, {WS_FY}
          s_lshl_b32 s{sFYi}, s{sCB2}, 2
          s_add_u32 s{sFYi}, s{sFYi}, s74
          s_lshl_b32 s{sFYi}, s{sFYi}, 1
          s_lshr_b32 s24, s{sRB2}, 4
          s_add_u32 s{sFYi}, s{sFYi}, s24
          s_lshl_b32 s{sFYi}, s{sFYi}, {4 + cfg.fsh}
          s_add_u32 s{sFYi}, s{sFYi}, {WS_FY}'''.split('\n')
        if cfg.ncy >= 0:
            fl = f'''s_lshr_b32 s{sFYo}, s2, 3
          s_lshl_b32 s{sFYo}, s{sFYo}, 1
          s_add_u32 s{sFYo}, s{sFYo}, s77
          s_lshl_b32 s{sFYo}, s{sFYo}, {2 + cfg.ncy}
          s_add_u32 s{sFYo}, s{sFYo}, s75
          s_lshl_b32 s{sFYo}, s{sFYo}, 3
          s_and_b32 s24, s2, 7
          s_add_u32 s{sFYo}, s{sFYo}, s24
          s_lshl_b32 s{sFYo}, s{sFYo}, 2
          s_add_u32 s{sFYo}, s{sFYo}, {WS_FY}
          s_lshl_b32 s{sFYi}, s{sCB2}, 2
          s_add_u32 s{sFYi}, s{sFYi}, s74
          s_lshl_b32 s{sFYi}, s{sFYi}, 1
          s_lshr_b32 s24, s{sRB2}, 4
          s_add_u32 s{sFYi}, s{sFYi}, s24
          s_lshl_b32 s{sFYi}, s{sFYi}, {cfg.ncy}
          s_and_b32 s24, s{sRB2}, {(1 << cfg.ncy) - 1}
          s_add_u32 s{sFYi}, s{sFYi}, s24
          s_lshl_b32 s{sFYi}, s{sFYi}, 7
          s_add_u32 s{sFYi}, s{sFYi}, {WS_FY}'''.split('\n')
        for i in range(0, len(fl), 3): A('\n'.join(fl[i:i + 3]))
    w_adr = []
    A = w_adr.append
    A('v_lshrrev_b32 v3, 3, v0'); A('v_and_b32 v8, 7, v0')
    A('v_bfe_u32 v18, v0, 4, 1'); A('v_lshlrev_b32 v18, 2, v18'); A('v_xor_b32 v8, v8, v18'); A('v_lshlrev_b32 v8, 4, v8')
    A(f'v_lshl_add_u32 v{vWd}, v3, 10, v8')
    A('v_and_b32 v3, 31, v0'); A('v_lshrrev_b32 v8, 5, v0'); A('v_lshlrev_b32 v8, 4, v8'); A(f'v_lshl_add_u32 v{vUo}, v3, {4 + xs}, v8')
    A(rot_setup())
    A(f'''s_lshl_b32 s{sX4}, s74, 12
      s_mul_i32 s{sX3}, s74, 3072
      s_lshl_b32 s{sX1}, s74, 10
      s_mul_i32 s{sWs}, s75, {43*16384}
      s_lshl_b32 s72, s77, 13
      s_add_u32 s{sWs}, s{sWs}, s72
      s_lshl_b32 s72, s{sCB2}, 7
      s_add_u32 s{sWs}, s{sWs}, s72
      s_add_u32 s{sWe}, s{sWs}, {43*16384}
      s_lshl_b32 s72, s{sROT}, 14
      s_add_u32 s{sWc}, s{sWs}, s72''')
    wdh = {}
    def wd_dma(n):
        base, stride = piece_loc(n)
        setm0(('wd', n), f's_add_u32 m0, s{ {4096: sX4, 3072: sX3, 1024: sX1}[stride] }, {base}')
        wdh[n] = p(f'buffer_load_dwordx4 v{vWd}, {srd(WD)}, s{sWc} offen lds')
        if n < 42: p(f's_add_u32 s{sWc}, s{sWc}, 16384\ns_cmp_eq_u32 s{sWc}, s{sWe}\ns_cselect_b32 s{sWc}, s{sWs}, s{sWc}')
    k = len(w_adr)
    npre = 0
    nm = len(w_k) - 9
    blk = w_idxB + w_mid
    ipos = min(cfg.ipos, nm)
    assert cfg.apos <= ipos
    tail = w_k[nm:]
    nmix = min(cfg.mix, len(blk)); mixb = blk[len(blk) - nmix:]; blk = blk[:len(blk) - nmix]
    t2 = []
    for i in range(8):
        t2.append(tail[i]); q = -(-len(mixb) // (8 - i)); t2 += mixb[:q]; mixb = mixb[q:]
    Wl = w_k[:cfg.apos] + w_adr + w_k[cfg.apos:ipos] + blk + w_k[ipos:nm] + t2 + [tail[8], lambda: tn('s_dump'), ('P', C_D)]
    iadr = cfg.apos + k
    Wl += [('C', C_D), lambda: tn('s_cd')] + w_T + [lambda: (two_way(t0, t1), tn('s_t')), ('P', C_T), ('C', C_T), lambda: (tn('s_ct'), two_way(exp0, exp1), tn('s_exp')), ('P', C_E)]
    if cfg.nok: Wl = w_adr + [('P', C_E)]; iadr = 0
    cuts = [0, cfg.c0, cfg.c1, cfg.c2, cfg.c3, cfg.c4, cfg.c5, cfg.c6, cfg.c7, len(Wl)]
    if cfg.nok: cuts = [0, 0, 0, 0, 20, 40, 60, k, k, len(Wl)]
    assert cuts == sorted(cuts) and iadr <= cfg.c6 and cuts[-2] < len(Wl), (iadr, len(Wl))
    if cfg.verbose: print('len Wl', len(Wl), 'adr', k, 'w_k', len(w_k), 'idx', len(w_idx), len(w_idxB), 'set', len(w_set))
    if cfg.verbose: print('sync', [(i, x) for i, x in enumerate(Wl) if isinstance(x, tuple)])
    stg = lambda i: max(j for j in range(9) if cuts[j] <= i)
    if cfg.gk == 2:
        ia = max(i for i, x in enumerate(Wl) if isinstance(x, str) and x.startswith(f'ds_read_b128 {vr(AFr + 28, 4)}'))
        ib = min(i for i, x in enumerate(Wl) if isinstance(x, str) and x.startswith(f'ds_read_b128 {vr(BFr, 4)}'))
        if cfg.verbose: print('AFr last', ia, 'BFr first', ib, 'G done before B', gacc[1])
        assert stg(ia) <= cfg.gga and stg(ib) - 1 >= gacc[1], (ia, ib, gacc)
    ppos = {x[1]: i for i, x in enumerate(Wl) if isinstance(x, tuple) and x[0] == 'P'}
    cpos = {x[1]: i for i, x in enumerate(Wl) if isinstance(x, tuple) and x[0] == 'C'}
    def sync_item(x):
        kind, c = x
        reg, tgt = (vCk, 2) if c in (C_D, C_T) else (vM, 4)
        need = c not in cpos or stg(ppos[c]) == stg(cpos[c])
        if not need: return lambda: None
        if kind == 'P': return lambda: lds_add(reg, c, vOne)
        return lambda: lds_spin(reg, c, tgt, 1)
    Wl = [sync_item(x) if isinstance(x, tuple) else x for x in Wl]
    stage = {j - 1: Wl[cuts[j]:cuts[j + 1]] for j in range(9)}
    pro = w_idx + ([] if cfg.nok == 1 else w_set) + stage[-1]
    seg(pro[:cfg.i0], d0)
    tn('s_dma0')
    seg(pro[cfg.i0:cfg.d1]); seg(pro[cfg.d1:], d1)
    csh = [None]
    assert cfg.nca < 0 or cfg.kw
    fapo = f'0 offen offset:{WS_FA}' if cfg.nca < 0 else f's{sFA} offen'
    for sb in range(6):
        if sb == 1: mktag()
        if sb == cfg.rho + 1 and (cfg.rho > 1 or cfg.fab == 2) and not cfg.gcs: p.wait_vm(csh[0])
        bar(sb, slabh[sb])
        setprio((cfg.sprio >> sb) & 1)
        dm = dma_items(sb + 2)
        if sb == 0 and cfg.gk == 1:
            for ks in range(8): hb_ = p(f'ds_read_b128 {vr(BFr + 4*ks, 4)}, v{vSB} offset:{32*ks}')
            for _ in range(cfg.nbw):
                if stage[0]: emit(stage[0].pop(0))
            p.wait_ds(hb_)
        if sb == cfg.rho and not cfg.gcs:
            p(f'ds_read_b128 {vr(vCSr, 4)}, v{vCSr}')
            def cst():
                p('s_mov_b64 exec, 63')
                csh[0] = p(f'buffer_store_dwordx4 {vr(vCSr, 4)}, v{vL16}, {srd(WS)}, s{sCS} offen sc1')
                p('s_mov_b64 exec, -1')
            dm.insert(2 if cfg.rho == 1 and cfg.fab == 3 else cfg.csp, cst)
        if sb == max(cfg.fab, cfg.rho + 1):
            if cfg.nca < 0:
                p(f'v_mov_b32 v{vCSr}, s{sTAG}\nv_mov_b32 v{vCSr + 1}, s{sFA}')
                one_lane(lambda: p(f'buffer_store_dword v{vCSr}, v{vCSr + 1}, {srd(WS)}, 0 offen sc1'))
            else:
                dm.insert(cfg.fpos, f'''v_mov_b32 v{vCSr}, s{sTAG}
                  v_mul_u32_u24 v{vCSr + 1}, {cfg.fas}, v0
                  {f's_bfm_b64 exec, {1 << cfg.nca}, 0' if cfg.nca < 6 else ''}
                  buffer_store_dword v{vCSr}, v{vCSr + 1}, {srd(WS)}, s{sFA} offen sc1
                  s_mov_b64 exec, -1
                  s_lshr_b32 s{sFA}, s2, 3
                  s_lshl_b32 s{sFA}, s{sFA}, 2
                  s_add_u32 s{sFA}, s{sFA}, s74
                  s_lshl_b32 s{sFA}, s{sFA}, 3
                  s_and_b32 s78, s2, 7
                  s_add_u32 s{sFA}, s{sFA}, s78
                  s_and_b32 s{sFA}, s{sFA}, {(1 << cfg.nca) - 1}
                  s_mul_i32 s{sFA}, s{sFA}, {cfg.fas}
                  s_add_u32 s{sFA}, s{sFA}, {WS_FA2}''')
        if cfg.tch & 32 and sb == cfg.spos:
            def stouch():
                p(f's_mul_i32 s12, s74, {11*128}\ns_min_u32 s12, s12, {32*128}\ns_mul_i32 s13, s2, {43*128}\ns_add_u32 s12, s12, s13')
                for i in range(11): p(f's_buffer_load_dword s79, {srd(WD)}, s12 offset:{128*i}')
            dm.insert(3 if sb == 1 else 1, stouch)
        if cfg.npf and cfg.pf0 <= sb < cfg.pf0 + cfg.npf:
            q = sb - cfg.pf0; nl = -(-86 // cfg.npf)
            def pfx(q=q, nl=nl):
                if q == 0: p(f's_lshr_b32 s12, s2, 3\ns_lshl_b32 s12, s12, 2\ns_add_u32 s12, s12, s74\ns_mul_i32 s12, s12, {86*128}\nv_lshlrev_b32 v252, 7, v0')
                else: p(f's_add_u32 s12, s12, {nl*128}')
                p(f's_bfm_b64 exec, {nl}, 0\nbuffer_load_dword v{253 + q % 3}, v252, {srd(WD)}, s12 offen\ns_mov_b64 exec, -1')
            dm.insert(cfg.pfi, pfx)
        if sb == 5: p(f'buffer_load_dwordx4 {vr(vPoll, 4)}, v{vL16}, {srd(WS)}, {fapo} sc1')
        seg(stage[sb], dm)
    bar(6, slabh[6])
    setprio((cfg.sprio >> 6) & 1)
    def fa_check():
        for j in range(4): p(f'v_xor_b32 v{vPoll + j}, s{sTAG}, v{vPoll + j}')
        p(f'v_or3_b32 v{vPoll}, v{vPoll}, v{vPoll + 1}, v{vPoll + 2}\nv_or_b32 v{vPoll}, v{vPoll}, v{vPoll + 3}\nv_cmp_ne_u32 vcc, 0, v{vPoll}\ns_cmp_eq_u64 vcc, 0')
    Lx = p.newlabel('FAX'); L = p.newlabel('FA')
    fa_check()
    p(f's_cbranch_scc1 {Lx}')
    p.cond_begin()
    p(f's_mov_b32 s79, {cfg.spin}')
    p.label(L)
    p(f'buffer_load_dwordx4 {vr(vPoll, 4)}, v{vL16}, {srd(WS)}, {fapo} sc1')
    fa_check()
    p(f's_cbranch_scc1 {Lx}')
    p(f's_sub_u32 s79, s79, 1\ns_cmp_lg_u32 s79, 0\ns_cbranch_scc1 {L}')
    p.cond_end()
    p.label(Lx)
    tn('s_fa')
    p(f'''s_mul_i32 s15, s{sCB}, 6144
      s_add_u32 s15, s15, s{sX1}
      s_add_u32 s15, s15, {WS_CSP}
      s_add_u32 s16, s{sX1}, {GR2}
      s_cmp_lt_u32 s74, 3
      s_cselect_b32 m0, s16, {UR2}
      s_add_u32 s16, s15, 4096''')
    p(f'buffer_load_dwordx4 v{vL16}, {srd(WS)}, s15 offen sc1 lds')
    p(f'''s_lshl_b32 s15, s{sRB}, 10
      s_add_u32 s15, s15, {WS_ST}
      s_cmp_lt_u32 s74, 2
      s_cselect_b32 s15, s16, s15
      s_min_u32 s16, s{sX1}, 2048
      s_add_u32 m0, s16, {UR2 + 1024}''')
    sth = p(f'buffer_load_dwordx4 v{vL16}, {srd(WS)}, s15 offen sc1 lds')
    uh = [None]
    def u_dma(k):
        if k == 0:
            p(f'''s_lshr_b32 s13, s2, {2 + xs}
              s_lshl_b32 s13, s13, 3
              s_and_b32 s14, s2, 7
              s_add_u32 s13, s13, s14
              s_lshl_b32 s13, s13, {12 + xs}
              s_bfe_u32 s14, s2, {0x10000*(xs - 1) + 3}
              s_lshl_b32 s14, s14, 5
              s_add_u32 s13, s13, s14
              s_lshl_b32 s14, s74, {10 + xs}
              s_add_u32 s13, s13, s14
              s_lshl_b32 s14, s74, 11
              s_add_u32 s13, s13, {WS_XNT}''')
        elif cfg.xa > 2: p(f's_add_u32 s13, s13, {512*cfg.xa - 1024}')
        setm0('u', f's_add_u32 m0, s14, {UP + 1024}')
        uh[0] = p(f'buffer_load_dwordx4 v{vUo}, {srd(WS)}, s13 offen offset:{1024*k} sc1 lds')
    m0[0] = None
    L = p.newlabel('EP')
    p(f's_or_b32 s15, s2, s74\ns_cmp_eq_u32 s15, 0\ns_cbranch_scc0 {L}')
    p.cond_begin()
    p(f'v_mov_b32 v194, s{sTAG}\nv_mov_b32 v195, {WS_E}')
    one_lane(lambda: p(f'buffer_store_dword v194, v195, {srd(WS)}, 0 offen sc1'))
    p.cond_end()
    p.label(L)
    zp = [f's_lshr_b32 s15, s{sX1}, 2\ns_add_u32 s15, s15, {UP}\nv_add_u32 v192, s15, v{vL16}', 'v_mov_b64 v[196:197], 0', 'v_mov_b64 v[198:199], 0',
          's_mov_b64 exec, 0xffff\nds_write_b128 v192, v[196:199]\ns_mov_b64 exec, -1']
    dq = [(lambda n=n: wd_dma(n)) for n in range(16)]
    dq[cfg.upos:cfg.upos] = [lambda: u_dma(0), lambda: u_dma(1)]
    assert cfg.na6 <= 6 + (2 if cfg.upos <= 6 else 0)
    seg(zp + stage[6], dq[:cfg.na6])
    bar(7, slabh[7])
    setprio((cfg.sprio >> 7) & 1)
    w7 = list(stage[7])
    w7.insert(min(cfg.cs_at, len(w7) - 1), lambda: (p.wait_vm(sth), lds_add(vM, C_S, vOne), tn('s_cs')))
    w7.insert(len(w7) - 1, lambda: p.wait_vm(uh[0]))
    cwsig = lambda: (p.wait_vm(wdh[15]), lds_add(vCk, C_W, vOne), tn('s_cw'))
    if cfg.cw_k < 0:
        assert -cfg.cw_k >= cfg.bspan
        w7.insert(min(-cfg.cw_k, len(w7)), cwsig)
    assert cfg.bspan <= len(w7) - 2
    dq7 = dq[cfg.na6:]; dqc = dq7[cfg.nb7:]; dq7 = dq7[:cfg.nb7]
    seg(w7[:cfg.bspan], dq7)
    tn('s_bi')
    seg(w7[cfg.bspan:])
    setprio(cfg.cprio)
    lds_spin(vM, C_E, 4, 1)
    tn('s_ce')
    CAf, CBf, CD = [32, 64], [96, 128], 192
    def cfrags(rr):
        o = []; st_ = rr & 1
        for k in range(8):
            o.append(f'ds_read_b128 {vr(CBf[st_] + 4*k, 4)}, v{vUB + rr} offset:{1024*k}')
            for s in range(2):
                o.append(f'ds_read_b64_tr_b16 {vr(CAf[st_] + 4*k + 2*s, 2)}, v{vCA} offset:{512*k + 64*rr + 8*(1 - s)}')
        return o
    cev = {}
    def addc(k, x): cev.setdefault(min(k, 144), []).append(x)
    for i, x in enumerate(dqc): addc(cfg.bc0 + cfg.bcs*i, x)
    if cfg.cw_k >= 0:
        assert cfg.cw_k > cfg.bc0 + cfg.bcs*len(dqc)
        addc(cfg.cw_k, cwsig)
    addc(3*36 + 28, lambda: one_lane(lambda: p(f'ds_write_b32 v{vF}, v{vOne} offset:{F1}')))
    for x in cfrags(0): p(x)
    kk = 0
    for rr in range(4):
        nxt = cfrags(rr + 1) if rr < 3 else []
        st_ = rr & 1
        pairs = sorted(((a, b) for a in range(8) for b in range(8 - a)), key=lambda ab: (max(ab), ab[0]))
        seen = set()
        for k, (a, b) in enumerate(pairs):
            c = a + b; d = CD + 4*c
            cc = '0' if (rr == 0 and c not in seen) else vr(d, 4)
            seen.add(c)
            p(f'v_mfma_f32_16x16x32_bf16 {vr(d, 4)}, {vr(CAf[st_] + 4*a, 4)}, {vr(CBf[st_] + 4*b, 4)}, {cc}')
            if nxt and k >= 2: p(nxt.pop(0))
            elif w_gap and kk >= cfg.gap0: p(w_gap.pop(0))
            for x in cev.get(kk, []): emit(x)
            kk += 1
        assert not nxt
    assert not w_gap
    tn('s_conv')
    if cfg.yprio >= 0: setprio(cfg.yprio)
    lds_spin(7, F1, 1, 6)
    xdma = lambda: p(f's_mov_b32 m0, s19\nbuffer_load_dwordx4 v{vXS}, {srd(XD)}, s{sXT} offen lds\nbuffer_load_dwordx4 v{vXS}, {srd(XD)}, s20 offen offset:1024 lds')
    if cfg.ydma and not cfg.gx: xdma()
    Lb = p.newlabel('XB'); Le = p.newlabel('XE')
    p(f's_cmp_eq_u32 s77, 0\ns_cbranch_scc0 {Lb}')
    for hf in range(2):
        if hf == 1: p.label(Lb)
        p.cond_begin()
        snd, kp = (4, 0) if hf == 0 else (0, 4)
        for k in range(4): p(f'ds_write_b128 v{vXB}, {vr(CD + 4*(snd + k), 4)} offset:{4096*hf + 1024*k}')
        one_lane(lambda: p(f'ds_write_b32 v{vF}, v{vOne} offset:{F2}'))
        lds_spin(7, F2, 1, 6)
        tn('s_f2')
        for k in range(4): p(f'ds_read_b128 {vr(32 + 4*k, 4)}, v{vXB} offset:{4096*(1 - hf) + 1024*k}')
        for k in range(4):
            for j in range(4): p(f'v_add_f32 v{32 + 4*k + j}, v{32 + 4*k + j}, v{CD + 4*(kp + k) + j}')
            for j in range(2): p(f'v_cvt_pk_bf16_f32 v{48 + 2*k + j}, v{32 + 4*k + 2*j}, v{32 + 4*k + 2*j + 1}')
            if cfg.ypois:
                for j in range(2): p(f'v_min_u32 v{48 + 2*k + j}, -2, v{48 + 2*k + j}')
            if k & 1:
                r = 48 + 2*(k - 1)
                p(f'v_permlane16_swap_b32 v{r}, v{r + 2}\nv_permlane16_swap_b32 v{r + 1}, v{r + 3}')
                p(f'buffer_store_dwordx4 {vr(r, 4)}, v{vYS}, {srd(WS)}, s{sYB} offen offset:{512*(kp + k - 1)} sc1')
        if hf == 0: p(f's_branch {Le}')
        p.cond_end()
    p.label(Le)
    tn('s_yst')
    for x in cev.get(144, []): emit(x)
    if not cfg.ydma and not cfg.gx: xdma()
    assert not (cfg.ydma and cfg.ypois)
    if cfg.ypois:
        p('s_waitcnt vmcnt(0)')
        tn('s_yack')
        lds_add(vCk, C_X, vOne)
        L = p.newlabel('YP'); Lx = p.newlabel('YPX')
        p(f's_mov_b32 s79, {cfg.spin}')
        p.label(L)
        for k in range(2): p(f'buffer_load_dwordx4 {vr(32 + 4*k, 4)}, v{vYL}, {srd(WS)}, s{12 + k} offen sc1')
        p('''v_max3_u32 v1, v32, v33, v34
          v_max3_u32 v1, v1, v35, v36
          v_max3_u32 v1, v1, v37, v38
          v_max_u32 v1, v1, v39
          v_cmp_eq_u32 vcc, -1, v1
          s_cmp_eq_u64 vcc, 0''')
        p(f's_cbranch_scc1 {Lx}')
        if cfg.ypois > 1: p('s_mov_b64 exec, vcc')
        p(f's_sub_u32 s79, s79, 1\ns_cmp_lg_u32 s79, 0\ns_cbranch_scc1 {L}')
        p.label(Lx)
        if cfg.ypois > 1: p('s_mov_b64 exec, -1')
        tn('s_fy')
    else:
        if cfg.ncy >= 0: p(f'v_mov_b32 v1, s{sTAG}\nv_lshlrev_b32 v2, 7, v0')
        p('s_waitcnt vmcnt(0)')
        tn('s_yack')
        if cfg.ncy >= 0: p(f's_mov_b64 exec, {(1 << (1 << cfg.ncy)) - 1}\nbuffer_store_dword v1, v2, {srd(WS)}, s{sFYo} offen sc1\ns_mov_b64 exec, -1')
        else: flag_store(sFYo)
        if not cfg.gx: lds_add(vCk, C_X, vOne)
        if cfg.spoll & 2: spoll(36, 16, sFYi)
        else: vpoll(16, sFYi)
        tn('s_fy')
        if cfg.ydma:
            p('s_mov_b32 m0, s14')
            for k in range(2): p(f'buffer_load_dwordx4 v{vYL}, {srd(WS)}, s{12 + k} offen offset:{1024*k} sc1 lds')
        else:
            for k in range(2): p(f'buffer_load_dwordx4 {vr(32 + 4*k, 4)}, v{vYL}, {srd(WS)}, s{12 + k} offen sc1')
        p('s_waitcnt vmcnt(0)')
        tn('s_yl')
    if not cfg.ydma:
        for k in range(2): p(f'ds_write_b128 v{vYW}, {vr(32 + 4*k, 4)} offset:{1024*k}')
    if not cfg.ylate: lds_add(vCk, C_Y, vOne)
    p('s_waitcnt lgkmcnt(0)')
    tn('s_yw')
    p('s_barrier')
    ts(8)
    finish()
    p.label('L_END')
    p('s_endpgm')
    return p.text()

HEADER = open('cdna_kernels/' + KNAME + '.s.ref').read().split('; Override launch')[0]

def build(cfg):
    k = dict(name=KNAME + '_kernel', grid=(256, 1, 1), block=(512, 1, 1), lds=LDS_SIZE, body=gen(cfg), vgpr=256, sgpr=102, accum=256)
    return build_file([k], header_comment=HEADER)

if __name__ == '__main__':
    cfg = Cfg()
    out = sys.argv[1]
    for a in sys.argv[2:]:
        k, v = a.split('='); setattr(cfg, k, type(getattr(Cfg, k))(int(v, 0)))
    open(out, 'w').write(build(cfg))
```
